```python
import torch

def _softmax(x, axis=-1):
    return torch.softmax(x, dim=axis)
def _gelu(x):
    return torch.nn.functional.gelu(x, approximate="tanh")
def _silu(x):
    return torch.nn.functional.silu(x)
def _sigmoid(x):
    return torch.sigmoid(x)
def _layernorm(x, axis=-1, eps=1e-5):
    m = x.mean(dim=axis, keepdim=True)
    v = x.var(dim=axis, keepdim=True, unbiased=False)
    return (x - m) / torch.sqrt(v + eps)
def _scatter_add(tgt, idx, src, axis=0):
    return tgt.clone().index_add_(axis, idx, src)
def _segment_sum(src, seg, n):
    out = torch.zeros((n,) + src.shape[1:], dtype=src.dtype)
    return out.index_add_(0, seg, src)
def _pad(x, pw):
    flat = tuple(v for pair in reversed(pw) for v in pair)
    return torch.nn.functional.pad(x, flat)

kernel_name = 'gated_mix__ssm_conv_s5__dense_activation_squared_relu__prompt'

def setup_inputs():

    _w = (lambda a: (lambda t: t.to(torch.bfloat16) if t.is_floating_point() else t)(torch.as_tensor(a)))
    def _A_setup():
        B, S, D = 1, 2048, 512
        P = D
        Lambda_re = -0.5 * (lambda _x: torch.exp(torch.as_tensor(_x)))((lambda *s: torch.randn(*s, dtype=torch.bfloat16) * 0.4)(P))
        Lambda_im = (lambda *s: torch.randn(*s, dtype=torch.bfloat16) * 0.8)(P) * 1.0
        B_re = (lambda *s: torch.randn(*s, dtype=torch.bfloat16) * 0.8)(P, D) * (D ** -0.5)
        B_im = (lambda *s: torch.randn(*s, dtype=torch.bfloat16) * 0.8)(P, D) * (D ** -0.5)
        C_re = (lambda *s: torch.randn(*s, dtype=torch.bfloat16) * 0.8)(D, P) * (P ** -0.5)
        C_im = (lambda *s: torch.randn(*s, dtype=torch.bfloat16) * 0.8)(D, P) * (P ** -0.5)
        log_dt = (lambda *s: torch.randn(*s, dtype=torch.bfloat16) * 0.4)(P) * 0.3 - 2.0
        Dskip = (lambda *s: torch.randn(*s, dtype=torch.bfloat16) * 0.1)(D)
        return {
            "x": _w((lambda *s: torch.randn(*s, dtype=torch.bfloat16) * 0.05)(B, S, D)),
            "Lambda_re": _w(Lambda_re),
            "Lambda_im": _w(Lambda_im),
            "B_re": _w(B_re),
            "B_im": _w(B_im),
            "C_re": _w(C_re),
            "C_im": _w(C_im),
            "log_dt": _w(log_dt),
            "Dskip": _w(Dskip),
        }
    _A_in = _A_setup()

    def _B_setup():
        B, S, D, F = 1, 2048, 512, 1792
        return {
            "x": _w((lambda *s: torch.randn(*s, dtype=torch.bfloat16) * 0.05)(B, S, D)),
            "w1": _w((lambda *s: torch.randn(*s, dtype=torch.bfloat16) * 0.05)(D, F)),
            "b1": _w((lambda *s: torch.randn(*s, dtype=torch.bfloat16) * 0.05)(F)),
            "w2": _w((lambda *s: torch.randn(*s, dtype=torch.bfloat16) * 0.05)(F, D)),
            "b2": _w((lambda *s: torch.randn(*s, dtype=torch.bfloat16) * 0.05)(D)),
        }
    _B_in = _B_setup()

    return {
        "A_x": _A_in["x"],
        "A_Lambda_re": _A_in["Lambda_re"],
        "A_Lambda_im": _A_in["Lambda_im"],
        "A_B_re": _A_in["B_re"],
        "A_B_im": _A_in["B_im"],
        "A_C_re": _A_in["C_re"],
        "A_C_im": _A_in["C_im"],
        "A_log_dt": _A_in["log_dt"],
        "A_Dskip": _A_in["Dskip"],
        "B_x": _B_in["x"],
        "B_w1": _B_in["w1"],
        "B_b1": _B_in["b1"],
        "B_w2": _B_in["w2"],
        "B_b2": _B_in["b2"],
        "gate_w": _w((lambda *s: torch.randn(*s, dtype=torch.bfloat16) * 0.05)(512) * 16.0),
    }

def reference(A_x, A_Lambda_re, A_Lambda_im, A_B_re, A_B_im, A_C_re, A_C_im, A_log_dt, A_Dskip, B_x, B_w1, B_b1, B_w2, B_b2, gate_w):
    def _A_ref(x, Lambda_re, Lambda_im, B_re, B_im, C_re, C_im, log_dt, Dskip):
        Bsz, L, H = x.shape
        Lam = Lambda_re + 1j * Lambda_im
        Bmat = B_re + 1j * B_im
        Cmat = C_re + 1j * C_im
        dt = torch.exp(log_dt)
        Lam_bar = torch.exp(dt * Lam)
        B_bar = ((Lam_bar - 1.0) / Lam)[:, None] * Bmat
        Bu = torch.einsum("bld,pd->blp", x + 0j, B_bar)
        h = torch.zeros_like(Bu[:, 0, :])
        hs = []
        for t in range(L):
            h = Lam_bar[None, :] * h + Bu[:, t, :]
            hs.append(h)
        hseq = torch.stack(hs, 1)
        y = 2.0 * torch.einsum("blp,dp->bld", hseq, Cmat).real + x * Dskip[None, None, :]
        return y

    def _B_ref(x, w1, b1, w2, b2):
        h = torch.einsum("bsd,df->bsf", x, w1) + b1
        zero = torch.zeros_like(h)
        r = torch.where(h > zero, h, zero)
        h = r * r
        out = torch.einsum("bsf,fd->bsd", h, w2) + b2
        return out

    x = A_x
    g = _sigmoid((x * gate_w).sum(-1, keepdims=True))
    a = _A_ref(x, A_Lambda_re, A_Lambda_im, A_B_re, A_B_im, A_C_re, A_C_im, A_log_dt, A_Dskip)
    b = _B_ref(x, B_w1, B_b1, B_w2, B_b2)
    return g * a + (1 - g) * b
```

```python
import sys

KN = "gated_mix__ssm_conv_s5__dense_activation_squared_relu__prompt_kernel"
K2N = "gated_mix_stage2_kernel"

AF_RT = 88 * 4096
AF_OFF = 0
BF_OFF = 32 * AF_RT
E_OFF = BF_OFF + 8 * AF_RT
G_OFF = E_OFF + 65536
WS_USED = G_OFF + 2048 * 8
OOB = 0x7FFFFF00

LOG2E = 0x3FB8AA3B
INV2PI = 0x3E22F983


class Asm:
    def __init__(self):
        self.L = []
        self.vm = []
        self.nlab = 0

    def e(self, s):
        self.L.append("    " + s)

    def lab(self, s):
        self.L.append(s + ":")

    def c(self, s):
        self.L.append("    ; " + s)

    def newlab(self, p):
        self.nlab += 1
        return f"L_{p}_{self.nlab}"

    def vmi(self, tag, s):
        self.e(s)
        self.vm.append(tag)
        assert len(self.vm) <= 63, "vmcnt overflow"

    def vm_wait(self, *tags):
        idx = [i for i, t in enumerate(self.vm) if t in tags]
        if not idx:
            return
        i = max(idx)
        n = len(self.vm) - 1 - i
        self.e(f"s_waitcnt vmcnt({n})")
        self.vm = self.vm[i + 1:]

    def vm_all(self):
        self.e("s_waitcnt vmcnt(0)")
        self.vm = []

    def nop(self, n):
        while n > 0:
            k = min(n, 16)
            self.e(f"s_nop {k - 1}")
            n -= k


def vr(a, n=1):
    return f"v{a}" if n == 1 else f"v[{a}:{a + n - 1}]"


def ar(a, n=1):
    return f"a{a}" if n == 1 else f"a[{a}:{a + n - 1}]"


def sr(a, n=1):
    return f"s{a}" if n == 1 else f"s[{a}:{a + n - 1}]"


def srd(A, s, lo, hi, nrec):
    A.e(f"s_mov_b32 s{s}, s{lo}")
    A.e(f"s_and_b32 s{s + 1}, s{hi}, 0xffff")
    A.e(f"s_mov_b32 s{s + 2}, {nrec:#x}")
    A.e(f"s_mov_b32 s{s + 3}, 0x20000")


def cfma(A, dr, di, ar_, ai, br, bi):
    A.e(f"v_fmac_f32 v{dr}, v{ar_}, v{br}")
    A.e(f"v_fmac_f32 v{di}, v{ar_}, v{bi}")
    A.e(f"v_fma_f32 v{dr}, -v{ai}, v{bi}, v{dr}")
    A.e(f"v_fmac_f32 v{di}, v{ai}, v{br}")


def cmul(A, dr, di, ar_, ai, br, bi):
    A.e(f"v_mul_f32 v{dr}, v{ar_}, v{br}")
    A.e(f"v_mul_f32 v{di}, v{ar_}, v{bi}")
    A.e(f"v_fma_f32 v{dr}, -v{ai}, v{bi}, v{dr}")
    A.e(f"v_fmac_f32 v{di}, v{ai}, v{br}")


def interleave(main, fill, first=0, per=1):
    out = []
    fi = 0
    for i, m in enumerate(main):
        out.append(m)
        if i >= first:
            for _ in range(per):
                if fi < len(fill):
                    out.append(fill[fi])
                    fi += 1
    out.extend(fill[fi:])
    return out


LDS_S = 0
LDS_X = [65536, 98304, 131072]
LDS_F = [98304, 131072, 0, 65536]
LDS_SCR = 32768
LDS_T = 36864


def SACC(tb, ct, r=0):
    return 8 + (tb * 4 + ct) * 4 + r


def FACC(nt, tb, r=0):
    return 40 + (nt * 2 + tb) * 4 + r


V_L, V_PL, V_Q = 1, 2, 3
VX = 96
VS = 104
VRX = 108
VRX2 = 112
VRS = 116
VF = 120
VFR = 127
VBIAS = 128
CB = 156
VCIN = 200
VWIN = 204
VT = 208


def C(pb, k):
    return CB + 22 * pb + k


C_LR, C_LI, C_NLI = 0, 1, 2
C_L8, C_L16, C_L32, C_L8Q, C_MC, C_L32W, C_LQ, C_L4, C_MA, C_C2 = 3, 5, 7, 9, 11, 13, 15, 17, 19, 20


def XF(ks, tb):
    return (ks * 2 + tb) * 4


def gen_k1(A, cfg):
    e = A.e
    END = "L_k1_end"
    e("s_cmp_ge_u32 s2, 256")
    e(f"s_cbranch_scc1 {END}")
    e("s_load_dwordx16 s[16:31], s[0:1], 0")
    e("s_load_dwordx16 s[32:47], s[0:1], 64")
    e("s_load_dwordx4 s[48:51], s[0:1], 128")
    e("v_and_b32 v1, 63, v0")
    e("v_lshrrev_b32 v4, 6, v0")
    e("v_and_b32 v2, 15, v1")
    e("v_readfirstlane_b32 s6, v4")
    e("v_lshrrev_b32 v3, 4, v1")
    if cfg["map1"] == "2x16":
        e("s_and_b32 s3, s2, 7")
        e("s_lshl_b32 s3, s3, 1")
        e("s_lshr_b32 s7, s2, 7")
        e("s_add_u32 s4, s3, s7")
        e("s_lshr_b32 s5, s2, 3")
        e("s_and_b32 s5, s5, 15")
    else:
        e("s_lshr_b32 s3, s2, 1")
        e("s_and_b32 s3, s3, 3")
        e("s_lshl_b32 s3, s3, 2")
        e("s_lshr_b32 s7, s2, 6")
        e("s_add_u32 s4, s3, s7")
        e("s_lshr_b32 s5, s2, 3")
        e("s_and_b32 s5, s5, 7")
        e("s_and_b32 s7, s2, 1")
        e("s_lshl_b32 s7, s7, 3")
        e("s_add_u32 s5, s5, s7")
    e("v_xor_b32 v4, v2, v3")
    e("v_lshlrev_b32 v4, 4, v4")
    e("v_lshl_or_b32 v5, v3, 10, v4")
    for m in range(8):
        x = (m >> 1) << 6
        a = (m & 3) * 3072
        if x:
            e(f"v_xor_b32 v{VX + m}, {x}, v5")
            if a:
                e(f"v_add_u32 v{VX + m}, {a}, v{VX + m}")
        elif a:
            e(f"v_add_u32 v{VX + m}, {a}, v5")
        else:
            e(f"v_mov_b32 v{VX + m}, v5")
    for m in range(4):
        x = m << 6
        a = m * 3072
        if m:
            e(f"v_xor_b32 v{VS + m}, {x}, v5")
            e(f"v_add_u32 v{VS + m}, {a}, v{VS + m}")
        else:
            e(f"v_mov_b32 v{VS}, v5")
    e("s_lshl_b32 s64, s4, 7")
    e("s_lshl_b32 s3, s6, 5")
    e("s_add_u32 s64, s64, s3")
    e("s_lshl_b32 s64, s64, 10")
    e("s_lshl_b32 s65, s5, 5")
    e("s_and_b32 s3, s6, 1")
    e("s_lshl_b32 s3, s3, 4")
    e("s_add_u32 s65, s65, s3")
    e("s_lshl_b32 s65, s65, 10")
    e(f"s_mul_i32 s66, s6, {32 * 3584}")
    e("s_mul_i32 s3, s5, 224")
    e("s_add_u32 s66, s66, s3")
    e("s_lshl_b32 s67, s6, 13")
    e("s_lshl_b32 s68, s6, 12")
    e("s_mul_i32 s69, s6, 7168")
    e("s_lshl_b32 s3, s5, 5")
    e("v_add_u32 v6, s3, v2")
    e("v_lshlrev_b32 v6, 1, v6")
    e("s_waitcnt lgkmcnt(0)")
    T = VT
    for pb in range(2):
        A.vmi("cst", f"global_load_ushort v{T + 3 * pb + 0}, v6, s[18:19] offset:{32 * pb}")
        A.vmi("cst", f"global_load_ushort v{T + 3 * pb + 1}, v6, s[20:21] offset:{32 * pb}")
        A.vmi("cst", f"global_load_ushort v{T + 3 * pb + 2}, v6, s[30:31] offset:{32 * pb}")
    srd(A, 8, 16, 17, 2048 * 1024)
    e("s_cmp_lt_u32 s6, 2")
    e("s_cselect_b32 s12, s22, s24")
    e("s_cselect_b32 s13, s23, s25")
    e("s_and_b32 s13, s13, 0xffff")
    e(f"s_mov_b32 s14, {512 * 1024:#x}")
    e("s_mov_b32 s15, 0x20000")

    def dma_x(c, buf):
        for h in range(2):
            e(f"s_add_u32 m0, s67, {LDS_X[buf] + h * 4096}")
            e(f"s_add_u32 s70, s64, {h * 16384 + c * 256}")
            for mm in range(4):
                off = f" offset:{mm * 1024}" if mm else ""
                A.vmi(f"x{c}", f"buffer_load_dwordx4 v{VX + h * 4 + mm}, s[8:11], s70 offen{off} lds")

    def dma_s(c):
        e(f"s_add_u32 m0, s68, {LDS_S + c * 16384}")
        e(f"s_add_u32 s70, s65, {c * 256}")
        for mm in range(4):
            off = f" offset:{mm * 1024}" if mm else ""
            A.vmi(f"s{c}", f"buffer_load_dwordx4 v{VS + mm}, s[12:15], s70 offen{off} lds")

    def dma_f_items(c):
        items = []
        for h in range(2):
            for mm in range(4 if h == 0 else 3):
                def it(h=h, mm=mm):
                    if mm == 0:
                        e(f"s_add_u32 m0, s69, {LDS_F[c] + h * 4096}")
                        e(f"s_add_u32 s71, s66, {c * 128 * 3584}")
                    off = f" offset:{mm * 1024}" if mm else ""
                    A.vmi(f"f{c}", f"buffer_load_dwordx4 v{VF + h * 4 + mm}, s[52:55], s71 offen{off} lds")
                items.append(it)
        return items

    dma_x(0, 0)
    dma_s(0)
    dma_x(1, 1)
    dma_s(1)
    dma_x(2, 2)
    dma_s(2)
    dma_s(3)

    srd(A, 52, 36, 37, 512 * 3584)
    srd(A, 56, 50, 51, WS_USED)
    srd(A, 72, 48, 49, 256)
    e("s_lshl_b32 s3, s5, 12")
    e(f"s_add_u32 s3, s3, {E_OFF}")
    e("s_add_u32 s76, s50, s3")
    e("s_addc_u32 s77, s51, 0")
    e("s_and_b32 s77, s77, 0xffff")
    e("s_mov_b32 s78, 4096")
    e("s_mov_b32 s79, 0x20000")

    e("v_xor_b32 v4, v2, v3")
    e("v_lshrrev_b32 v5, 2, v2")
    e("v_lshlrev_b32 v5, 3, v5")
    e("v_and_b32 v6, 3, v2")
    e("v_add_u32 v5, v5, v6")
    e("v_lshlrev_b32 v5, 8, v5")
    e(f"s_add_u32 s3, s67, {LDS_X[0]}")
    e("v_add_u32 v5, s3, v5")
    e("v_lshlrev_b32 v6, 8, v2")
    for k in range(4):
        e(f"v_xor_b32 v7, {4 * k}, v4")
        e("v_lshlrev_b32 v7, 4, v7")
        e(f"v_add_u32 v{VRX + k}, v5, v7")
        e(f"v_add_u32 v{VRS + k}, v6, v7")
        e(f"v_add_u32 v{VRX2 + k}, 0x10000, v{VRX + k}")
    e("s_and_b32 s3, s5, 1")
    e("s_lshl_b32 s7, s3, 1")
    for m in range(7):
        d = VF + m
        e(f"v_add_u32 v4, {64 * m}, v1")
        e("v_mul_u32_u24 v5, 4682, v4")
        e("v_lshrrev_b32 v5, 16, v5")
        e("v_mul_u32_u24 v6, 14, v5")
        e("v_sub_u32 v4, v4, v6")
        e("v_add_u32 v4, s7, v4")
        e("v_subrev_u32 v6, 14, v4")
        e("v_min_u32 v4, v4, v6")
        e("v_and_b32 v6, 12, v5")
        e("v_lshlrev_b32 v6, 1, v6")
        e("v_and_b32 v7, 3, v5")
        e("v_add_u32 v6, v6, v7")
        e("v_lshrrev_b32 v7, 4, v5")
        e("v_lshl_add_u32 v6, v7, 2, v6")
        e("v_mul_u32_u24 v6, 3584, v6")
        e("v_lshl_add_u32 v6, v4, 4, v6")
        if m & 3:
            e(f"v_subrev_u32 v{d}, {(m & 3) * 1024}, v6")
        else:
            e(f"v_mov_b32 v{d}, v6")
    e("v_lshrrev_b32 v4, 2, v2")
    e("v_lshl_add_u32 v4, v3, 2, v4")
    e("v_mul_u32_u24 v4, 224, v4")
    e("v_and_b32 v5, 3, v2")
    e("v_lshl_add_u32 v4, v5, 3, v4")
    e(f"v_add_u32 v{VFR}, {LDS_F[0]}, v4")

    e("s_mul_i32 s3, s5, 224")
    e("v_lshlrev_b32 v4, 3, v3")
    e("v_add_u32 v4, s3, v4")
    e("s_and_b32 s3, s5, 1")
    e("s_lshl_b32 s7, s3, 5")
    e("v_add_u32 v5, s7, v4")
    e(f"s_mul_i32 s7, s3, {6 * 32}")
    e("s_sub_u32 s7, 192, s7")
    e("v_add_u32 v6, s7, v4")
    BT = VT + 8
    for nt in range(6):
        A.vmi("bias", f"global_load_dwordx2 {vr(BT + 2 * nt, 2)}, v5, s[38:39] offset:{32 * nt}")
    A.vmi("bias", f"global_load_dwordx2 {vr(BT + 12, 2)}, v6, s[38:39]")

    A.vm_wait("cst")
    Z = VT + 24
    e(f"s_mov_b32 s80, {LOG2E:#x}")
    e(f"s_mov_b32 s81, {INV2PI:#x}")
    for pb in range(2):
        for k in range(3):
            e(f"v_lshlrev_b32 v{T + 3 * pb + k}, 16, v{T + 3 * pb + k}")
    for pb in range(2):
        e(f"v_mul_f32 v{T + 3 * pb + 2}, s80, v{T + 3 * pb + 2}")
    for pb in range(2):
        e(f"v_exp_f32 v{T + 3 * pb + 2}, v{T + 3 * pb + 2}")
    A.nop(1)
    for pb in range(2):
        e(f"v_cvt_pk_bf16_f32 v{T + 3 * pb + 2}, v{T + 3 * pb + 2}, v{T + 3 * pb + 2}")
    for pb in range(2):
        e(f"v_lshlrev_b32 v{T + 3 * pb + 2}, 16, v{T + 3 * pb + 2}")
    for pb in range(2):
        z = Z + 4 * pb
        e(f"v_mov_b32 v{z}, v{T + 3 * pb}")
        e(f"v_mov_b32 v{z + 1}, v{T + 3 * pb + 1}")
        e(f"v_mul_f32 v{z + 2}, v{T + 3 * pb + 2}, v{z}")
        e(f"v_mul_f32 v{z + 3}, v{T + 3 * pb + 2}, v{z + 1}")
        e(f"v_mul_f32 v{z + 2}, s80, v{z + 2}")
        e(f"v_mul_f32 v{z + 3}, s81, v{z + 3}")

    TP = VT + 32

    def cpow(dst, kreg=None, kconst=None):
        for pb in range(2):
            z = Z + 4 * pb
            t = TP + 4 * pb
            if kreg is not None:
                e(f"v_mul_f32 v{t}, v{kreg}, v{z + 2}")
                e(f"v_mul_f32 v{t + 1}, v{kreg}, v{z + 3}")
            elif kconst == 1.0:
                e(f"v_mov_b32 v{t}, v{z + 2}")
                e(f"v_mov_b32 v{t + 1}, v{z + 3}")
            else:
                import struct
                lit = struct.unpack("<I", struct.pack("<f", kconst))[0]
                e(f"v_mul_f32 v{t}, {lit:#x}, v{z + 2}")
                e(f"v_mul_f32 v{t + 1}, {lit:#x}, v{z + 3}")
        for pb in range(2):
            t = TP + 4 * pb
            e(f"v_exp_f32 v{t}, v{t}")
            e(f"v_fract_f32 v{t + 1}, v{t + 1}")
        for pb in range(2):
            t = TP + 4 * pb
            e(f"v_cos_f32 v{t + 2}, v{t + 1}")
            e(f"v_sin_f32 v{t + 3}, v{t + 1}")
        A.nop(1)
        for pb in range(2):
            t = TP + 4 * pb
            e(f"v_mul_f32 v{C(pb, dst)}, v{t}, v{t + 2}")
            e(f"v_mul_f32 v{C(pb, dst + 1)}, v{t}, v{t + 3}")

    cpow(C_LR, kconst=1.0)
    for pb in range(2):
        e(f"v_sub_f32 v{C(pb, C_NLI)}, 0, v{C(pb, C_LI)}")
    for pb in range(2):
        z = Z + 4 * pb
        t = TP + 4 * pb
        e(f"v_subrev_f32 v{t}, 1.0, v{C(pb, C_LR)}")
        e(f"v_mul_f32 v{t + 1}, v{z}, v{z}")
        e(f"v_fmac_f32 v{t + 1}, v{z + 1}, v{z + 1}")
        e(f"v_rcp_f32 v{t + 1}, v{t + 1}")
        e(f"v_mul_f32 v{t + 2}, v{t}, v{z}")
        e(f"v_fmac_f32 v{t + 2}, v{C(pb, C_LI)}, v{z + 1}")
        e(f"v_mul_f32 v{t + 3}, v{C(pb, C_LI)}, v{z}")
        e(f"v_fma_f32 v{t + 3}, -v{t}, v{z + 1}, v{t + 3}")
        e(f"v_add_f32 v{t + 1}, v{t + 1}, v{t + 1}")
        e(f"v_mul_f32 v{C(pb, C_C2)}, v{t + 2}, v{t + 1}")
        e(f"v_mul_f32 v{C(pb, C_C2 + 1)}, v{t + 3}, v{t + 1}")
    cpow(C_L8, kconst=8.0)
    cpow(C_L16, kconst=16.0)
    cpow(C_L32, kconst=32.0)
    cpow(C_L4, kconst=512.0)
    KR = VT + 6
    e(f"v_cvt_f32_u32 v{KR}, v3")
    e(f"v_mul_f32 v{KR + 1}, 0x41000000, v{KR}")
    cpow(C_L8Q, kreg=KR + 1)
    e(f"v_mul_f32 v{KR + 1}, 0x43000000, v{KR}")
    cpow(C_LQ, kreg=KR + 1)
    e("s_lshl_b32 s3, s6, 5")
    e(f"v_cvt_f32_u32 v{KR + 1}, s3")
    cpow(C_L32W, kreg=KR + 1)
    e("v_cmp_eq_u32 vcc, 3, v3")
    e("v_cmp_eq_u32 s[82:83], 2, v3")
    e("v_and_b32 v4, 1, v3")
    e(f"v_cvt_f32_u32 v{C(0, C_MA)}, v4")
    e("v_cndmask_b32 v5, 0, 1.0, s[82:83]")
    for pb in range(2):
        e(f"v_cndmask_b32 v{C(pb, C_MC)}, v5, v{C(pb, C_L8)}, vcc")
        e(f"v_cndmask_b32 v{C(pb, C_MC + 1)}, 0, v{C(pb, C_L8 + 1)}, vcc")
    A.vm_wait("bias")
    for nt in range(7):
        b = VBIAS + 4 * nt
        e(f"v_lshlrev_b32 v{b}, 16, v{BT + 2 * nt}")
        e(f"v_and_b32 v{b + 1}, 0xffff0000, v{BT + 2 * nt}")
        e(f"v_lshlrev_b32 v{b + 2}, 16, v{BT + 2 * nt + 1}")
        e(f"v_and_b32 v{b + 3}, 0xffff0000, v{BT + 2 * nt + 1}")

    def ssm_reads(s):
        c, ksl = s >> 2, s & 3
        buf = [0, 1, 2, 0][c]
        it = []
        for tb in range(2):
            if buf == 2:
                it.append(f"ds_read_b128 {ar(XF(s, tb), 4)}, v{VRX2 + ksl} offset:{tb * 1024}")
            else:
                it.append(f"ds_read_b128 {ar(XF(s, tb), 4)}, v{VRX + ksl} offset:{buf * 32768 + tb * 1024}")
        for ct in range(4):
            it.append(f"ds_read_b128 {ar(128 + (s & 1) * 16 + ct * 4, 4)}, v{VRS + ksl} "
                      f"offset:{LDS_S + c * 16384 + ct * 4096}")
        return it

    def ssm_mfma(s):
        it = []
        for ct in range(4):
            for tb in range(2):
                d = vr(SACC(tb, ct), 4)
                cc = "0" if s == 0 else d
                it.append(f"v_mfma_f32_16x16x32_bf16 {d}, {ar(XF(s, tb), 4)}, "
                          f"{ar(128 + (s & 1) * 16 + ct * 4, 4)}, {cc}")
        return it

    A.vm_wait("x0", "s0")
    e("s_barrier")
    for r in ssm_reads(0):
        e(r)
    for s in range(16):
        e("s_waitcnt lgkmcnt(0)")
        if s in (3, 7, 11):
            c = (s + 1) >> 2
            A.vm_wait(f"x{c}", f"s{c}")
            e("s_barrier")
        rd = ssm_reads(s + 1) if s < 15 else []
        for ins in interleave(ssm_mfma(s), rd, 0, 2):
            e(ins)
        if s == 3:
            dma_x(3, 0)
        if s == 7:
            for it in dma_f_items(0):
                it()
        if s == 11:
            for it in dma_f_items(1):
                it()
        if s == 12:
            for it in dma_f_items(2):
                it()

    A.nop(8)
    EA = 96

    def U(pb, tau, im):
        return SACC(tau >> 2, pb + 2 * im, tau & 3)

    cur = [None, None]
    for tau in range(1, 8):
        for pb in range(2):
            dst = EA + 4 * pb + 2 * (tau & 1)
            lr, li, nli = C(pb, C_LR), C(pb, C_LI), C(pb, C_NLI)
            pr, pi = (U(pb, 0, 0), U(pb, 0, 1)) if tau == 1 else cur[pb]
            e(f"v_fma_f32 v{dst}, v{lr}, v{pr}, v{U(pb, tau, 0)}")
            e(f"v_fma_f32 v{dst + 1}, v{lr}, v{pi}, v{U(pb, tau, 1)}")
            e(f"v_fmac_f32 v{dst}, v{nli}, v{pi}")
            e(f"v_fmac_f32 v{dst + 1}, v{li}, v{pr}")
            cur[pb] = (dst, dst + 1)
    TB = 104
    AA = 108
    CC = 112
    for pb in range(2):
        for k in range(2):
            e(f"v_mov_b32 v{TB + 2 * pb + k}, v{cur[pb][k]}")
            e(f"v_mov_b32 v{AA + 2 * pb + k}, v{cur[pb][k]}")
    A.nop(2)
    for x in range(4):
        e(f"v_permlane16_swap_b32 v{AA + x}, v{TB + x}")
    A.nop(1)
    for pb in range(2):
        cfma(A, TB + 2 * pb, TB + 2 * pb + 1, C(pb, C_L8), C(pb, C_L8 + 1), AA + 2 * pb, AA + 2 * pb + 1)
    for x in range(4):
        e(f"v_mov_b32 v{CC + x}, v{TB + x}")
    A.nop(2)
    for x in range(4):
        e(f"v_permlane32_swap_b32 v{CC + x}, v{TB + x}")
    A.nop(1)
    for pb in range(2):
        cfma(A, TB + 2 * pb, TB + 2 * pb + 1, C(pb, C_L16), C(pb, C_L16 + 1), CC + 2 * pb, CC + 2 * pb + 1)
    for pb in range(2):
        ci = VCIN + 2 * pb
        e(f"v_mul_f32 v{ci}, v{C(0, C_MA)}, v{AA + 2 * pb}")
        e(f"v_mul_f32 v{ci + 1}, v{C(0, C_MA)}, v{AA + 2 * pb + 1}")
        cfma(A, ci, ci + 1, C(pb, C_MC), C(pb, C_MC + 1), CC + 2 * pb, CC + 2 * pb + 1)
    e("v_lshlrev_b32 v4, 4, v2")
    e("s_lshl_b32 s3, s6, 8")
    e(f"s_add_u32 s3, s3, {LDS_SCR}")
    e("v_add_u32 v5, s3, v4")
    e(f"v_add_u32 v4, {LDS_SCR}, v4")
    e(f"ds_write_b128 v5, {vr(TB, 4)}")
    e("s_waitcnt lgkmcnt(0)")
    e("s_barrier")
    W = 96
    for w_ in range(4):
        e(f"ds_read_b128 {vr(W + 4 * w_, 4)}, v4 offset:{w_ * 256}")
    for it in dma_f_items(3):
        it()
    e("s_waitcnt lgkmcnt(0)")
    for w_ in range(1, 4):
        for pb in range(2):
            d = W + 4 * w_ + 2 * pb
            s_ = W + 4 * (w_ - 1) + 2 * pb
            cfma(A, d, d + 1, C(pb, C_L32), C(pb, C_L32 + 1), s_, s_ + 1)
    LW = A.newlab("win")
    for x in range(4):
        e(f"v_mov_b32 v{VWIN + x}, 0")
    for w_ in range(1, 4):
        e(f"s_cmp_lt_u32 s6, {w_}")
        e(f"s_cbranch_scc1 {LW}")
        for x in range(4):
            e(f"v_mov_b32 v{VWIN + x}, v{W + 4 * (w_ - 1) + x}")
    A.lab(LW)
    e("s_lshl_b32 s3, s4, 8")
    e("v_lshlrev_b32 v4, 4, v2")
    e("v_add_u32 v4, s3, v4")
    e("s_cmp_eq_u32 s6, 3")
    e("s_cselect_b32 s3, 16, 0")
    e(f"v_mov_b32 v5, {OOB:#x}")
    e("v_cmp_gt_u32 vcc, s3, v1")
    A.nop(2)
    e("v_cndmask_b32 v4, v5, v4, vcc")
    A.vmi("epub", f"buffer_store_dwordx4 {vr(W + 12, 4)}, v4, s[76:79], 0 offen sc1")
    VFLA, VFLD = 116, 117
    e("s_cmp_eq_u32 s6, 3")
    e("s_cselect_b32 s3, 1, 0")
    e("v_cmp_gt_u32 vcc, s3, v1")
    e("s_lshl_b32 s7, s5, 2")
    e("v_mov_b32 v4, s7")
    e("s_lshl_b32 s3, 1, s4")
    e(f"v_mov_b32 v{VFLD}, s3")
    e(f"v_cndmask_b32 v{VFLA}, v5, v4, vcc")

    GX = 208
    e("s_lshl_b32 s3, s4, 7")
    e("s_lshl_b32 s7, s5, 3")
    e("s_add_u32 s3, s3, s7")
    e("s_lshl_b32 s7, s6, 1")
    e("s_add_u32 s84, s3, s7")
    e("v_lshrrev_b32 v4, 5, v1")
    e("v_add_u32 v4, s84, v4")
    e("v_lshlrev_b32 v4, 10, v4")
    e("v_and_b32 v5, 31, v1")
    e("v_lshlrev_b32 v5, 5, v5")
    e("v_add_u32 v4, v4, v5")
    A.vmi("gate", f"global_load_dwordx4 {vr(GX, 4)}, v4, s[16:17]")
    A.vmi("gate", f"global_load_dwordx4 {vr(GX + 4, 4)}, v4, s[16:17] offset:16")
    A.vmi("gate", f"global_load_dwordx4 {vr(GX + 8, 4)}, v5, s[44:45]")
    A.vmi("gate", f"global_load_dwordx4 {vr(GX + 12, 4)}, v5, s[44:45] offset:16")
    PC = 224
    e("s_lshl_b32 s85, s2, 2")
    e("s_add_u32 s85, s85, s6")
    e("s_lshr_b32 s3, s85, 7")
    e("s_and_b32 s7, s85, 3")
    e("s_lshl_b32 s3, s3, 6")
    e("s_lshl_b32 s7, s7, 4")
    e("s_add_u32 s3, s3, s7")
    e("v_add_u32 v4, s3, v2")
    e("v_lshlrev_b32 v4, 10, v4")
    e("s_lshr_b32 s3, s85, 2")
    e("s_and_b32 s3, s3, 31")
    e("s_lshl_b32 s3, s3, 5")
    e("v_lshl_add_u32 v5, v3, 3, s3")
    e("v_add_u32 v4, v4, v5")
    A.vmi("prepc", f"global_load_dwordx2 {vr(PC, 2)}, v4, s[26:27]")
    A.vmi("prepc", f"global_load_dwordx2 {vr(PC + 2, 2)}, v4, s[28:29]")
    PW = 228
    srd(A, 60, 40, 41, 1792 * 1024)
    e("v_lshlrev_b32 v4, 12, v3")
    e("v_lshl_add_u32 v4, v2, 1, v4")
    e("s_add_u32 s95, s85, 1024")
    e("s_cmp_lt_u32 s95, 1792")
    e("s_cselect_b32 s95, s95, s85")
    for n in range(2):
        e(f"s_mov_b32 s3, s{85 if n == 0 else 95}")
        e("s_lshr_b32 s7, s3, 5")
        e("s_lshl_b32 s7, s7, 15")
        e("s_and_b32 s3, s3, 31")
        e("s_lshl_b32 s3, s3, 5")
        e(f"s_add_u32 s{86 + 2 * n}, s7, s3")
        e(f"s_add_u32 s{87 + 2 * n}, s{86 + 2 * n}, 16384")
        for ee in range(8):
            op = "buffer_load_short_d16_hi" if ee & 1 else "buffer_load_ushort"
            off = f" offset:{(ee & 3) * 1024}" if ee & 3 else ""
            A.vmi("prepw", f"{op} v{PW + 8 * n + ee}, v4, s[60:63], s{86 + 2 * n + (ee >> 2)} offen{off}")

    def ffn_reads(s):
        ksl = s & 3
        it = []
        for nt in range(7):
            for h in range(2):
                it.append(f"ds_read_b64_tr_b16 {ar(128 + (s & 1) * 28 + nt * 4 + 2 * h, 2)}, v{VFR} "
                          f"offset:{ksl * 7168 + h * 3584 + nt * 32}")
        return it

    def ffn_mfma(s):
        it = []
        for nt in range(7):
            for tb in range(2):
                d = vr(FACC(nt, tb), 4)
                cc = vr(VBIAS + 4 * nt, 4) if s == 0 else d
                it.append(f"v_mfma_f32_16x16x32_bf16 {d}, {ar(128 + (s & 1) * 28 + nt * 4, 4)}, "
                          f"{ar(XF(s, tb), 4)}, {cc}")
        return it

    def set_vfr(c_from, c_to):
        delta = LDS_F[c_to] - LDS_F[c_from]
        if delta >= 0:
            e(f"v_add_u32 v{VFR}, {delta}, v{VFR}")
        else:
            e(f"v_subrev_u32 v{VFR}, {-delta}, v{VFR}")

    A.vm_wait("f0")
    e("s_barrier")
    for r in ffn_reads(0):
        e(r)
    VFLG = 118
    for s in range(16):
        e("s_waitcnt lgkmcnt(0)")
        if s in (3, 7, 11):
            c = (s + 1) >> 2
            A.vm_wait(f"f{c}")
            e("s_barrier")
            set_vfr(c - 1, c)
        if s == 7:
            A.vm_wait("epub")
            A.vmi("flag", f"buffer_atomic_or v{VFLD}, v{VFLA}, s[72:75], 0 offen")
        if s == 13:
            e("s_lshl_b32 s3, s5, 2")
            e("v_mov_b32 v4, s3")
            A.vmi("poll", f"buffer_load_dword v{VFLG}, v4, s[72:75], 0 offen sc1")
        rd = ffn_reads(s + 1) if s < 15 else []
        for ins in interleave(ffn_mfma(s), rd, 0, 2):
            e(ins)

    e("s_lshl_b32 s90, 1, s4")
    e("s_sub_u32 s90, s90, 1")
    LP, LOK = A.newlab("poll"), A.newlab("pollok")
    A.vm_wait("poll")
    e("s_mov_b32 s96, 0x40000")
    A.lab(LP)
    e(f"v_readfirstlane_b32 s3, v{VFLG}")
    A.nop(4)
    e("s_and_b32 s3, s3, s90")
    e("s_cmp_eq_u32 s3, s90")
    e(f"s_cbranch_scc1 {LOK}")
    e("s_sub_u32 s96, s96, 1")
    e("s_cmp_eq_u32 s96, 0")
    e(f"s_cbranch_scc1 {LOK}")
    e("s_sleep 2")
    e(f"buffer_load_dword v{VFLG}, v4, s[72:75], 0 offen sc1")
    e("s_waitcnt vmcnt(0)")
    e(f"s_branch {LP}")
    A.lab(LOK)
    EM = 96
    e("s_sub_u32 s3, s4, 1")
    e("v_sub_u32 v4, s3, v3")
    e("v_lshlrev_b32 v4, 8, v4")
    e("v_lshl_add_u32 v4, v2, 4, v4")
    for m in range(4):
        if m:
            e(f"v_subrev_u32 v{4 + (m & 1)}, 1024, v{4 + ((m - 1) & 1)}")
        e(f"v_and_b32 v7, 0x7fffffff, v{4 + (m & 1)}")
        A.vmi("eld", f"buffer_load_dwordx4 {vr(EM + 4 * m, 4)}, v7, s[76:79], 0 offen sc1")

    e("s_lshl_b32 s3, s4, 1")
    e("s_lshr_b32 s7, s6, 1")
    e("s_add_u32 s3, s3, s7")
    e(f"s_mul_i32 s91, s3, {AF_RT}")
    e("s_and_b32 s7, s6, 1")
    e("s_lshl_b32 s7, s7, 11")
    e("s_add_u32 s91, s91, s7")
    e("s_lshr_b32 s3, s5, 1")
    e("s_mul_i32 s3, s3, 7")
    e("s_add_u32 s3, s3, 32")
    e("s_and_b32 s7, s5, 1")
    e("s_lshl_b32 s92, s7, 2")
    e("s_add_u32 s92, s92, s3")
    e("s_lshl_b32 s92, s92, 12")
    e("s_add_u32 s92, s92, s91")
    e("s_add_u32 s93, s3, 3")
    e("s_lshl_b32 s93, s93, 12")
    e("s_add_u32 s93, s93, s91")
    e("s_lshl_b32 s7, s7, 3")
    e("v_lshlrev_b32 v6, 4, v1")
    e("v_add_u32 v7, s7, v6")
    PK = 112
    flip = 0
    for sp in range(4):
        for tb in range(2):
            tiles = [2 * sp, 2 * sp + 1] if sp < 3 else [6]
            pk = PK + 4 * flip
            flip ^= 1
            for ti, nt in enumerate(tiles):
                a = FACC(nt, tb)
                for r in range(4):
                    e(f"v_max_f32 v{a + r}, 0, v{a + r}")
                for r in range(4):
                    e(f"v_mul_f32 v{a + r}, v{a + r}, v{a + r}")
                e(f"v_cvt_pk_bf16_f32 v{pk + 2 * ti}, v{a}, v{a + 1}")
                e(f"v_cvt_pk_bf16_f32 v{pk + 2 * ti + 1}, v{a + 2}, v{a + 3}")
            off = f" offset:{tb * 1024}" if tb else ""
            if sp < 3:
                if sp and tb == 0:
                    e("s_add_u32 s92, s92, 4096")
                A.vmi("hst", f"buffer_store_dwordx4 {vr(pk, 4)}, v6, s[56:59], s92 offen{off}")
            else:
                A.vmi("hst", f"buffer_store_dwordx2 {vr(pk, 2)}, v7, s[56:59], s93 offen{off}")

    A.vm_wait("gate")
    GS = 40
    e(f"v_mov_b32 v{GS}, 0")
    for d in range(8):
        x, g = GX + d, GX + 8 + d
        t = GS + 1
        e(f"v_lshlrev_b32 v{t}, 16, v{x}")
        e(f"v_lshlrev_b32 v{t + 1}, 16, v{g}")
        e(f"v_and_b32 v{t + 2}, 0xffff0000, v{x}")
        e(f"v_and_b32 v{t + 3}, 0xffff0000, v{g}")
        e(f"v_mul_f32 v{t}, v{t}, v{t + 1}")
        e(f"v_mul_f32 v{t + 2}, v{t + 2}, v{t + 3}")
        e(f"v_cvt_pk_bf16_f32 v{t}, v{t}, v{t + 2}")
        e(f"v_lshlrev_b32 v{t + 1}, 16, v{t}")
        e(f"v_and_b32 v{t + 2}, 0xffff0000, v{t}")
        e(f"v_add_f32 v{GS}, v{GS}, v{t + 1}")
        e(f"v_add_f32 v{GS}, v{GS}, v{t + 2}")
    for ctl in ("quad_perm:[1,0,3,2]", "quad_perm:[2,3,0,1]", "row_half_mirror", "row_mirror"):
        A.nop(2)
        e(f"v_add_f32_dpp v{GS}, v{GS}, v{GS} {ctl} row_mask:0xf bank_mask:0xf")
    e(f"v_mov_b32 v{GS + 1}, v{GS}")
    A.nop(2)
    e(f"v_permlane16_swap_b32 v{GS + 1}, v{GS}")
    A.nop(1)
    e(f"v_add_f32 v{GS}, v{GS}, v{GS + 1}")
    e(f"v_cvt_pk_bf16_f32 v{GS}, v{GS}, v{GS}")
    e(f"v_lshlrev_b32 v{GS}, 16, v{GS}")
    e(f"v_mul_f32 v{GS}, s80, v{GS}")
    e(f"v_sub_f32 v{GS}, 0, v{GS}")
    e(f"v_exp_f32 v{GS}, v{GS}")
    A.nop(1)
    e(f"v_add_f32 v{GS}, 1.0, v{GS}")
    e(f"v_rcp_f32 v{GS}, v{GS}")
    A.nop(1)
    e(f"v_cvt_pk_bf16_f32 v{GS}, v{GS}, v{GS}")
    e(f"v_lshlrev_b32 v{GS + 2}, 16, v{GS}")
    e(f"v_sub_f32 v{GS + 3}, 1.0, v{GS + 2}")
    e(f"v_cvt_pk_bf16_f32 v{GS + 3}, v{GS + 3}, v{GS + 3}")
    e(f"v_lshlrev_b32 v{GS + 3}, 16, v{GS + 3}")
    e("v_lshrrev_b32 v4, 5, v1")
    e("v_add_u32 v4, s84, v4")
    e("v_lshlrev_b32 v4, 3, v4")
    e(f"v_add_u32 v4, {G_OFF}, v4")
    e("v_and_b32 v5, 31, v1")
    e("v_cmp_eq_u32 vcc, 0, v5")
    e(f"v_mov_b32 v5, {OOB:#x}")
    A.nop(1)
    e("v_cndmask_b32 v4, v5, v4, vcc")
    A.vmi("gst", f"buffer_store_dwordx2 {vr(GS + 2, 2)}, v4, s[56:59], 0 offen")

    A.vm_wait("prepc", "prepw")
    PO = 48
    e("s_mov_b32 s3, 0x05040100")
    e("s_mov_b32 s7, 0x07060302")
    for d in range(2):
        e(f"v_perm_b32 v{PO + 2 * d}, v{PC + 2 + d}, v{PC + d}, s3")
        e(f"v_perm_b32 v{PO + 2 * d + 1}, v{PC + 2 + d}, v{PC + d}, s7")
    e("s_lshr_b32 s3, s85, 7")
    e(f"s_mul_i32 s3, s3, {AF_RT}")
    e("s_and_b32 s7, s85, 127")
    e("s_lshl_b32 s7, s7, 10")
    e("s_add_u32 s3, s3, s7")
    e(f"s_add_u32 s3, s3, {BF_OFF}")
    A.vmi("bst", f"buffer_store_dwordx4 {vr(PO, 4)}, v6, s[56:59], s3 offen")
    for n in range(2):
        e(f"s_mov_b32 s94, s{85 if n == 0 else 95}")
        e("s_lshr_b32 s3, s94, 5")
        e("s_add_u32 s3, s3, 32")
        e("s_lshl_b32 s3, s3, 12")
        e("s_lshr_b32 s7, s94, 2")
        e("s_and_b32 s7, s7, 7")
        e(f"s_mul_i32 s7, s7, {AF_RT}")
        e("s_add_u32 s3, s3, s7")
        e("s_and_b32 s7, s94, 3")
        e("s_lshl_b32 s7, s7, 10")
        e("s_add_u32 s3, s3, s7")
        e(f"s_add_u32 s3, s3, {BF_OFF}")
        for d in range(4):
            e(f"v_and_b32 v{PW + 8 * n + 2 * d + 1}, 0xffff0000, v{PW + 8 * n + 2 * d + 1}")
            e(f"v_or_b32 v{PO + 4 + 4 * n + d}, v{PW + 8 * n + 2 * d}, v{PW + 8 * n + 2 * d + 1}")
        A.vmi("bst", f"buffer_store_dwordx4 {vr(PO + 4 + 4 * n, 4)}, v6, s[56:59], s3 offen")

    A.vm_wait("eld")
    for m in (2, 1, 0):
        for pb in range(2):
            d = EM + 4 * m + 2 * pb
            s_ = EM + 4 * (m + 1) + 2 * pb
            cfma(A, d, d + 1, C(pb, C_L4), C(pb, C_L4 + 1), s_, s_ + 1)
    R = 88
    for pb in range(2):
        cmul(A, R + 2 * pb, R + 2 * pb + 1, C(pb, C_LQ), C(pb, C_LQ + 1), EM + 2 * pb, EM + 2 * pb + 1)
    for swap in ("v_permlane16_swap_b32", "v_permlane32_swap_b32"):
        for x in range(4):
            e(f"v_mov_b32 v{R + 4 + x}, v{R + x}")
        A.nop(2)
        for x in range(4):
            e(f"{swap} v{R + 4 + x}, v{R + x}")
        A.nop(1)
        for x in range(4):
            e(f"v_add_f32 v{R + x}, v{R + x}, v{R + 4 + x}")
    for pb in range(2):
        cfma(A, VWIN + 2 * pb, VWIN + 2 * pb + 1, C(pb, C_L32W), C(pb, C_L32W + 1), R + 2 * pb, R + 2 * pb + 1)
    for pb in range(2):
        cfma(A, VCIN + 2 * pb, VCIN + 2 * pb + 1, C(pb, C_L8Q), C(pb, C_L8Q + 1), VWIN + 2 * pb, VWIN + 2 * pb + 1)
    for tau in range(8):
        for pb in range(2):
            lr, li, nli = C(pb, C_LR), C(pb, C_LI), C(pb, C_NLI)
            if tau == 0:
                pr, pi = VCIN + 2 * pb, VCIN + 2 * pb + 1
            else:
                pr, pi = U(pb, tau - 1, 0), U(pb, tau - 1, 1)
            e(f"v_fmac_f32 v{U(pb, tau, 0)}, v{lr}, v{pr}")
            e(f"v_fmac_f32 v{U(pb, tau, 1)}, v{lr}, v{pi}")
            e(f"v_fmac_f32 v{U(pb, tau, 0)}, v{nli}, v{pi}")
            e(f"v_fmac_f32 v{U(pb, tau, 1)}, v{li}, v{pr}")
    e("v_lshrrev_b32 v4, 2, v2")
    e("v_mul_u32_u24 v4, 272, v4")
    e("v_lshl_add_u32 v4, v3, 6, v4")
    e("v_and_b32 v5, 3, v2")
    e("v_lshl_add_u32 v4, v5, 2, v4")
    e("s_mul_i32 s3, s6, 4352")
    e(f"s_add_u32 s3, s3, {LDS_T}")
    e("v_add_u32 v4, s3, v4")
    e("v_mul_u32_u24 v5, 272, v3")
    e("v_lshl_add_u32 v5, v2, 4, v5")
    e("v_add_u32 v5, s3, v5")
    TR, TI = 60, 64
    for tb in range(2):
        for pb in range(2):
            c2 = vr(C(pb, C_C2), 2)
            for h in range(2):
                P = vr(SACC(tb, pb, 2 * h), 2)
                Q = vr(SACC(tb, 2 + pb, 2 * h), 2)
                tr_, ti_ = vr(TR + 2 * h, 2), vr(TI + 2 * h, 2)
                e(f"v_pk_mul_f32 {tr_}, {P}, {c2} op_sel_hi:[1,0]")
                e(f"v_pk_mul_f32 {ti_}, {Q}, {c2} op_sel_hi:[1,0]")
                e(f"v_pk_fma_f32 {tr_}, {Q}, {c2}, {tr_} op_sel:[0,1,0] op_sel_hi:[1,1,1] "
                  f"neg_lo:[1,0,0] neg_hi:[1,0,0]")
                e(f"v_pk_fma_f32 {ti_}, {P}, {c2}, {ti_} op_sel:[0,1,0] op_sel_hi:[1,1,1]")
            for r in range(4):
                e(f"v_cvt_pk_bf16_f32 v{68 + r}, v{TR + r}, -v{TI + r}")
            for r in range(4):
                e(f"ds_write_b32 v4, v{68 + r} offset:{(tb * 2 + pb) * 1088 + r * 16}")
    e("s_waitcnt lgkmcnt(0)")
    for x in range(4):
        e(f"ds_read_b128 {vr(72 + 4 * x, 4)}, v5 offset:{x * 1088}")
    e("s_lshl_b32 s3, s5, 13")
    e("s_add_u32 s3, s3, s91")
    e("s_add_u32 s7, s3, 4096")
    e("s_waitcnt lgkmcnt(0)")
    for tb in range(2):
        for pb in range(2):
            off = f" offset:{tb * 1024}" if tb else ""
            A.vmi("sst", f"buffer_store_dwordx4 {vr(72 + 4 * (tb * 2 + pb), 4)}, v6, s[56:59], "
                         f"s{3 if pb == 0 else 7} offen{off}")
    A.lab(END)
    e("s_endpgm")


def gen_k2(A, cfg):
    e = A.e
    D = cfg["k2_depth"]
    END = "L_k2_end"
    RSTR = 17408

    def ACC(db, tb4):
        return 16 + (db * 4 + tb4) * 4

    e("s_cmp_ge_u32 s2, 256")
    e(f"s_cbranch_scc1 {END}")
    e("s_load_dwordx2 s[16:17], s[0:1], 0")
    e("s_load_dwordx2 s[18:19], s[0:1], 64")
    e("s_load_dwordx2 s[20:21], s[0:1], 104")
    e("s_load_dwordx2 s[22:23], s[0:1], 120")
    e("s_load_dwordx2 s[24:25], s[0:1], 136")
    e("v_and_b32 v1, 63, v0")
    e("v_lshrrev_b32 v4, 6, v0")
    e("v_and_b32 v2, 15, v1")
    e("v_readfirstlane_b32 s6, v4")
    e("v_lshrrev_b32 v3, 4, v1")
    e("s_and_b32 s3, s2, 7")
    e("s_lshl_b32 s3, s3, 2")
    e("s_lshr_b32 s7, s2, 6")
    e("s_add_u32 s4, s3, s7")
    e("s_lshr_b32 s5, s2, 3")
    e("s_and_b32 s5, s5, 7")
    e("v_lshlrev_b32 v5, 4, v1")
    e(f"s_mul_i32 s26, s4, {AF_RT}")
    e(f"s_mul_i32 s3, s6, {22 * 4096}")
    e("s_add_u32 s26, s26, s3")
    e(f"s_mul_i32 s27, s5, {AF_RT}")
    e("s_add_u32 s27, s27, s3")
    e(f"s_add_u32 s27, s27, {BF_OFF}")
    e("s_waitcnt lgkmcnt(0)")
    srd(A, 8, 24, 25, WS_USED)

    def loads(s):
        st = s % D
        it = []
        for x in range(4):
            off = f" offset:{x * 1024}" if x else ""
            it.append((f"k{s}", f"buffer_load_dwordx4 {ar(32 * st + 4 * x, 4)}, v5, s[8:11], s26 offen{off}"))
        for x in range(4):
            off = f" offset:{x * 1024}" if x else ""
            it.append((f"k{s}", f"buffer_load_dwordx4 {ar(32 * st + 16 + 4 * x, 4)}, v5, s[8:11], s27 offen{off}"))
        return it

    def adv():
        e("s_add_u32 s26, s26, 4096")
        e("s_add_u32 s27, s27, 4096")

    for s in range(D - 1):
        for tag, ins in loads(s):
            A.vmi(tag, ins)
        adv()
    e("v_lshrrev_b32 v6, 2, v2")
    e("v_lshlrev_b32 v6, 3, v6")
    e("v_and_b32 v7, 3, v2")
    e("v_add_u32 v6, v6, v7")
    e("s_lshl_b32 s28, s4, 6")
    e("v_add_u32 v7, s28, v6")
    e("v_lshlrev_b32 v7, 3, v7")
    e(f"v_add_u32 v7, {G_OFF}, v7")
    VG = 144
    for tb4 in range(4):
        ro = 32 * (tb4 >> 1) + 4 * (tb4 & 1)
        A.vmi("g", f"buffer_load_dwordx2 {vr(VG + 2 * tb4, 2)}, v7, s[8:11], 0 offen offset:{ro * 8}")
    VXE, VGE, VDS, VB2 = 152, 160, 168, 170
    e("s_lshl_b32 s3, s6, 4")
    e("s_add_u32 s29, s28, s3")
    e("v_add_u32 v8, s29, v3")
    e("v_lshlrev_b32 v9, 10, v8")
    e("s_lshl_b32 s30, s5, 7")
    e("v_lshl_add_u32 v10, v2, 3, s30")
    e("v_add_u32 v9, v9, v10")
    e("v_lshlrev_b32 v11, 3, v8")
    e(f"v_add_u32 v11, {G_OFF}, v11")
    srd(A, 32, 16, 17, 2048 * 1024)
    e("s_mov_b32 s31, 0")
    for it in range(4):
        if it:
            e("s_add_u32 s31, s31, 4096")
        A.vmi("ep", f"buffer_load_dwordx2 {vr(VXE + 2 * it, 2)}, v9, s[32:35], s31 offen")
    for it in range(4):
        A.vmi("ep", f"buffer_load_dwordx2 {vr(VGE + 2 * it, 2)}, v11, s[8:11], 0 offen offset:{it * 32}")
    A.vmi("ep", f"global_load_dwordx2 {vr(VDS, 2)}, v10, s[18:19]")
    A.vmi("ep", f"global_load_dwordx2 {vr(VB2, 2)}, v10, s[20:21]")
    srd(A, 12, 22, 23, 2048 * 2048)
    e("v_mul_u32_u24 v12, 272, v6")
    e("v_lshl_add_u32 v12, v3, 4, v12")
    e(f"s_mul_i32 s3, s6, {RSTR}")
    e("v_add_u32 v13, s3, v12")
    e(f"v_add_u32 v12, {4 * RSTR}, v12")

    def mfmas(s, zero):
        st = s % D
        it = []
        for db in range(4):
            for tb4 in range(4):
                d = vr(ACC(db, tb4), 4)
                cc = "0" if zero else d
                it.append(f"v_mfma_f32_16x16x32_bf16 {d}, {ar(32 * st + 16 + 4 * db, 4)}, "
                          f"{ar(32 * st + 4 * tb4, 4)}, {cc}")
        return it

    def scale_write(vaddr, gsel):
        for db in range(4):
            for tb4 in range(4):
                a = ACC(db, tb4)
                for r in range(4):
                    e(f"v_mul_f32 v{a + r}, v{gsel(tb4)}, v{a + r}")
        for db in range(4):
            for tb4 in range(4):
                ro = 32 * (tb4 >> 1) + 4 * (tb4 & 1)
                e(f"ds_write_b128 v{vaddr}, {vr(ACC(db, tb4), 4)} offset:{ro * 272 + db * 64}")

    def step(s, zero):
        ld = loads(s + D - 1) if s + D - 1 < 22 else []
        seq = mfmas(s, zero)
        li = 0
        for k, m in enumerate(seq):
            e(m)
            if (k & 1) and li < len(ld):
                A.vmi(*ld[li])
                li += 1
        if ld:
            adv()

    for s in range(22):
        A.vm_wait(f"k{s}")
        if s == 10:
            LN, LJ = A.newlab("nrm"), A.newlab("join")
            e("s_cmp_eq_u32 s6, 1")
            e(f"s_cbranch_scc0 {LN}")
            saved = list(A.vm)
            A.vm_wait("g")
            A.nop(8)
            scale_write(12, lambda tb4: VG + 2 * tb4)
            e("s_waitcnt lgkmcnt(0)")
            A.vm = list(saved)
            save26 = None
            step(s, True)
            after = list(A.vm)
            e(f"s_branch {LJ}")
            A.lab(LN)
            A.vm = list(saved)
            step(s, False)
            assert A.vm == after
            A.lab(LJ)
        else:
            step(s, s == 0)
    A.vm_wait("g")
    e("s_cmp_eq_u32 s6, 0")
    e("s_cselect_b64 vcc, -1, 0")
    for tb4 in range(4):
        e(f"v_cndmask_b32 v{VG + 2 * tb4}, v{VG + 2 * tb4 + 1}, v{VG + 2 * tb4}, vcc")
    A.nop(8)
    scale_write(13, lambda tb4: VG + 2 * tb4)
    e("s_waitcnt lgkmcnt(0)")
    e("s_barrier")
    e("s_lshl_b32 s3, s6, 4")
    e("v_add_u32 v6, s3, v3")
    e("v_mul_u32_u24 v6, 272, v6")
    e("v_lshl_add_u32 v6, v2, 4, v6")
    e(f"v_add_u32 v7, {3 * RSTR}, v6")
    P0 = 16
    for it in range(4):
        for b in range(5):
            base, o = (6, b * RSTR) if b < 3 else (7, (b - 3) * RSTR)
            e(f"ds_read_b128 {vr(P0 + (it * 5 + b) * 4, 4)}, v{base} offset:{o + it * 4 * 272}")
    A.vm_wait("ep")
    DS, B2 = 96, 100
    for k, src in ((DS, VDS), (B2, VB2)):
        e(f"v_lshlrev_b32 v{k}, 16, v{src}")
        e(f"v_and_b32 v{k + 1}, 0xffff0000, v{src}")
        e(f"v_lshlrev_b32 v{k + 2}, 16, v{src + 1}")
        e(f"v_and_b32 v{k + 3}, 0xffff0000, v{src + 1}")
    e("v_lshlrev_b32 v9, 11, v8")
    e("s_lshl_b32 s3, s5, 8")
    e("v_lshl_add_u32 v10, v2, 4, s3")
    e("v_add_u32 v9, v9, v10")
    e("s_mov_b32 s31, 0")
    for it in range(4):
        X = 104 + 8 * it
        xs = VXE + 2 * it
        e(f"v_lshlrev_b32 v{X}, 16, v{xs}")
        e(f"v_and_b32 v{X + 1}, 0xffff0000, v{xs}")
        e(f"v_lshlrev_b32 v{X + 2}, 16, v{xs + 1}")
        e(f"v_and_b32 v{X + 3}, 0xffff0000, v{xs + 1}")
        for r in range(4):
            e(f"v_mul_f32 v{X + r}, v{X + r}, v{DS + r}")
        e(f"v_cvt_pk_bf16_f32 v{X + 4}, v{X}, v{X + 1}")
        e(f"v_cvt_pk_bf16_f32 v{X + 5}, v{X + 2}, v{X + 3}")
        e(f"v_lshlrev_b32 v{X}, 16, v{X + 4}")
        e(f"v_and_b32 v{X + 1}, 0xffff0000, v{X + 4}")
        e(f"v_lshlrev_b32 v{X + 2}, 16, v{X + 5}")
        e(f"v_and_b32 v{X + 3}, 0xffff0000, v{X + 5}")
        g, omg = VGE + 2 * it, VGE + 2 * it + 1
        for r in range(4):
            e(f"v_mul_f32 v{X + r}, v{g}, v{X + r}")
        for r in range(4):
            e(f"v_fmac_f32 v{X + r}, v{omg}, v{B2 + r}")
    e("s_waitcnt lgkmcnt(0)")
    for it in range(4):
        X = 104 + 8 * it
        for b in range(5):
            for r in range(4):
                e(f"v_add_f32 v{X + r}, v{X + r}, v{P0 + (it * 5 + b) * 4 + r}")
        if it:
            e("s_add_u32 s31, s31, 8192")
        A.vmi("ost", f"buffer_store_dwordx4 {vr(X, 4)}, v9, s[12:15], s31 offen")
    A.lab(END)
    e("s_endpgm")


def kd(name, vgpr, accum, sgpr=102):
    return f""".amdhsa_kernel {name}
  .amdhsa_next_free_vgpr {vgpr}
  .amdhsa_next_free_sgpr {sgpr}
  .amdhsa_accum_offset {accum}
  .amdhsa_group_segment_fixed_size 0
  .amdhsa_kernarg_size 144
  .amdhsa_user_sgpr_count 2
  .amdhsa_user_sgpr_kernarg_segment_ptr 1
  .amdhsa_system_sgpr_workgroup_id_x 1
  .amdhsa_float_denorm_mode_32 3
.end_amdhsa_kernel
"""


HEADER = open("cdna_kernels/" + KN[:-7] + ".s.ref").read().split("; Override launch")[0]


def generate(cfg):
    out = [HEADER.rstrip("\n")]
    out.append(f"; @launch kernel={KN} grid=(256,1,1) block=(256,1,1) lds=163840")
    out.append(f"; @launch kernel={K2N} grid=(256,1,1) block=(256,1,1) lds={5 * 17408}")
    out.append('.amdgcn_target "amdgcn-amd-amdhsa--gfx950"')
    out.append(".text")
    for name, fn in ((KN, gen_k1), (K2N, gen_k2)):
        A = Asm()
        fn(A, cfg)
        out.append(f".globl {name}")
        out.append(".p2align 8")
        out.append(f".type {name},@function")
        out.append(f"{name}:")
        out.extend(A.L)
    out.append('.section .rodata,"a"')
    out.append(".p2align 6")
    out.append(kd(KN, 512, 256))
    out.append(".p2align 6")
    out.append(kd(K2N, 512, 256))
    return "\n".join(out) + "\n"


if __name__ == "__main__":
    cfg = {"map1": "2x16", "k2_depth": 6}
    path = "cdna_kernels/" + KN[:-7] + ".s"
    for a in sys.argv[1:]:
        if a.startswith("-o"):
            path = a[2:]
        elif "=" in a:
            k, v = a.split("=")
            cfg[k] = int(v) if v.isdigit() else v
    open(path, "w").write(generate(cfg))
    print("wrote", path)
```

```python
import sys

KN = "gated_mix__ssm_conv_s5__dense_activation_squared_relu__prompt_kernel"
K2N = "gated_mix_stage2_kernel"

AF_RT = 88 * 4096
AF_OFF = 0
BF_OFF = 32 * AF_RT
E_OFF = BF_OFF + 8 * AF_RT
G_OFF = E_OFF + 65536
WS_USED = G_OFF + 2048 * 8
STAMP_OFF = 0x1000000
OOB = 0x7FFFFF00

LOG2E = 0x3FB8AA3B
INV2PI = 0x3E22F983


class Asm:
    def __init__(self):
        self.L = []
        self.vm = []
        self.nlab = 0
        self.stamps = False

    def e(self, s):
        self.L.append("    " + s)

    def lab(self, s):
        self.L.append(s + ":")

    def c(self, s):
        self.L.append("    ; " + s)

    def newlab(self, p):
        self.nlab += 1
        return f"L_{p}_{self.nlab}"

    def vmi(self, tag, s):
        self.e(s)
        self.vm.append(tag)
        assert len(self.vm) <= 63, "vmcnt overflow"

    def vm_wait(self, *tags):
        idx = [i for i, t in enumerate(self.vm) if t in tags]
        if not idx:
            return
        i = max(idx)
        n = len(self.vm) - 1 - i
        self.e(f"s_waitcnt vmcnt({n})")
        self.vm = self.vm[i + 1:]

    def vm_all(self):
        self.e("s_waitcnt vmcnt(0)")
        self.vm = []

    def stamp(self, idx):
        if not self.stamps:
            return
        self.e("s_memtime s[98:99]")
        self.e("s_waitcnt lgkmcnt(0)")
        self.e(f"v_writelane_b32 v255, s98, {idx}")

    def stamp_flush(self, slot, srd_):
        if not self.stamps:
            return
        self.e("s_lshl_b32 s98, s2, 2")
        self.e("s_add_u32 s98, s98, s6")
        self.e("s_lshl_b32 s98, s98, 8")
        self.e(f"s_add_u32 s98, s98, {STAMP_OFF + slot * 0x40000}")
        self.e("v_lshlrev_b32 v254, 2, v1")
        self.e(f"s_mov_b32 s{srd_ + 2}, {STAMP_OFF + 0x100000:#x}")
        self.e(f"buffer_store_dword v255, v254, s[{srd_}:{srd_ + 3}], s98 offen")

    def nop(self, n):
        while n > 0:
            k = min(n, 16)
            self.e(f"s_nop {k - 1}")
            n -= k


def vr(a, n=1):
    return f"v{a}" if n == 1 else f"v[{a}:{a + n - 1}]"


def ar(a, n=1):
    return f"a{a}" if n == 1 else f"a[{a}:{a + n - 1}]"


def sr(a, n=1):
    return f"s{a}" if n == 1 else f"s[{a}:{a + n - 1}]"


def srd(A, s, lo, hi, nrec):
    A.e(f"s_mov_b32 s{s}, s{lo}")
    A.e(f"s_and_b32 s{s + 1}, s{hi}, 0xffff")
    A.e(f"s_mov_b32 s{s + 2}, {nrec:#x}")
    A.e(f"s_mov_b32 s{s + 3}, 0x20000")


def cfma(A, dr, di, ar_, ai, br, bi):
    A.e(f"v_fmac_f32 v{dr}, v{ar_}, v{br}")
    A.e(f"v_fmac_f32 v{di}, v{ar_}, v{bi}")
    A.e(f"v_fma_f32 v{dr}, -v{ai}, v{bi}, v{dr}")
    A.e(f"v_fmac_f32 v{di}, v{ai}, v{br}")


def cmul(A, dr, di, ar_, ai, br, bi):
    A.e(f"v_mul_f32 v{dr}, v{ar_}, v{br}")
    A.e(f"v_mul_f32 v{di}, v{ar_}, v{bi}")
    A.e(f"v_fma_f32 v{dr}, -v{ai}, v{bi}, v{dr}")
    A.e(f"v_fmac_f32 v{di}, v{ai}, v{br}")


def interleave(main, fill, first=0, per=1):
    out = []
    fi = 0
    for i, m in enumerate(main):
        out.append(m)
        if i >= first:
            for _ in range(per):
                if fi < len(fill):
                    out.append(fill[fi])
                    fi += 1
    out.extend(fill[fi:])
    return out


LDS_S = 0
LDS_X = [65536, 98304, 131072]
LDS_F = [98304, 131072, 0, 65536]
LDS_SCR = 32768
LDS_T = 36864


def SACC(tb, ct, r=0):
    return 8 + (tb * 4 + ct) * 4 + r


def FACC(nt, tb, r=0):
    return 40 + (nt * 2 + tb) * 4 + r


V_L, V_PL, V_Q = 1, 2, 3
VX = 96
VS = 104
VRX = 108
VRX2 = 112
VRS = 116
VF = 120
VFR = 127
VBIAS = 128
CB = 156
VCIN = 200
VWIN = 204
VT = 208


def C(pb, k):
    return CB + 22 * pb + k


C_LR, C_LI, C_NLI = 0, 1, 2
C_L8, C_L16, C_L32, C_L8Q, C_MC, C_L32W, C_LQ, C_L4, C_MA, C_C2 = 3, 5, 7, 9, 11, 13, 15, 17, 19, 20


def XF(ks, tb):
    return (ks * 2 + tb) * 4


def gen_k1(A, cfg):
    e = A.e
    END = "L_k1_end"
    e("s_cmp_ge_u32 s2, 256")
    e(f"s_cbranch_scc1 {END}")
    e("s_load_dwordx16 s[16:31], s[0:1], 0")
    e("s_load_dwordx16 s[32:47], s[0:1], 64")
    e("s_load_dwordx4 s[48:51], s[0:1], 128")
    A.stamp(0)
    e("v_and_b32 v1, 63, v0")
    e("v_lshrrev_b32 v4, 6, v0")
    e("v_and_b32 v2, 15, v1")
    e("v_readfirstlane_b32 s6, v4")
    e("v_lshrrev_b32 v3, 4, v1")
    if cfg["map1"] == "2x16":
        e("s_and_b32 s3, s2, 7")
        e("s_lshl_b32 s3, s3, 1")
        e("s_lshr_b32 s7, s2, 7")
        e("s_add_u32 s4, s3, s7")
        e("s_lshr_b32 s5, s2, 3")
        e("s_and_b32 s5, s5, 15")
    else:
        e("s_lshr_b32 s3, s2, 1")
        e("s_and_b32 s3, s3, 3")
        e("s_lshl_b32 s3, s3, 2")
        e("s_lshr_b32 s7, s2, 6")
        e("s_add_u32 s4, s3, s7")
        e("s_lshr_b32 s5, s2, 3")
        e("s_and_b32 s5, s5, 7")
        e("s_and_b32 s7, s2, 1")
        e("s_lshl_b32 s7, s7, 3")
        e("s_add_u32 s5, s5, s7")
    e("v_xor_b32 v4, v2, v3")
    e("v_lshlrev_b32 v4, 4, v4")
    e("v_lshl_or_b32 v5, v3, 10, v4")
    for m in range(8):
        x = (m >> 1) << 6
        a = (m & 3) * 3072
        if x:
            e(f"v_xor_b32 v{VX + m}, {x}, v5")
            if a:
                e(f"v_add_u32 v{VX + m}, {a}, v{VX + m}")
        elif a:
            e(f"v_add_u32 v{VX + m}, {a}, v5")
        else:
            e(f"v_mov_b32 v{VX + m}, v5")
    for m in range(4):
        x = m << 6
        a = m * 3072
        if m:
            e(f"v_xor_b32 v{VS + m}, {x}, v5")
            e(f"v_add_u32 v{VS + m}, {a}, v{VS + m}")
        else:
            e(f"v_mov_b32 v{VS}, v5")
    e("s_lshl_b32 s64, s4, 7")
    e("s_lshl_b32 s3, s6, 5")
    e("s_add_u32 s64, s64, s3")
    e("s_lshl_b32 s64, s64, 10")
    e("s_lshl_b32 s65, s5, 5")
    e("s_and_b32 s3, s6, 1")
    e("s_lshl_b32 s3, s3, 4")
    e("s_add_u32 s65, s65, s3")
    e("s_lshl_b32 s65, s65, 10")
    e(f"s_mul_i32 s66, s6, {32 * 3584}")
    e("s_mul_i32 s3, s5, 224")
    e("s_add_u32 s66, s66, s3")
    e("s_lshl_b32 s67, s6, 13")
    e("s_lshl_b32 s68, s6, 12")
    e("s_mul_i32 s69, s6, 7168")
    e("s_lshl_b32 s3, s5, 5")
    e("v_add_u32 v6, s3, v2")
    e("v_lshlrev_b32 v6, 1, v6")
    e("s_waitcnt lgkmcnt(0)")
    T = VT
    for pb in range(2):
        A.vmi("cst", f"global_load_ushort v{T + 3 * pb + 0}, v6, s[18:19] offset:{32 * pb}")
        A.vmi("cst", f"global_load_ushort v{T + 3 * pb + 1}, v6, s[20:21] offset:{32 * pb}")
        A.vmi("cst", f"global_load_ushort v{T + 3 * pb + 2}, v6, s[30:31] offset:{32 * pb}")
    srd(A, 8, 16, 17, 2048 * 1024)
    e("s_cmp_lt_u32 s6, 2")
    e("s_cselect_b32 s12, s22, s24")
    e("s_cselect_b32 s13, s23, s25")
    e("s_and_b32 s13, s13, 0xffff")
    e(f"s_mov_b32 s14, {512 * 1024:#x}")
    e("s_mov_b32 s15, 0x20000")

    def dma_x(c, buf):
        for h in range(2):
            e(f"s_add_u32 m0, s67, {LDS_X[buf] + h * 4096}")
            e(f"s_add_u32 s70, s64, {h * 16384 + c * 256}")
            for mm in range(4):
                off = f" offset:{mm * 1024}" if mm else ""
                A.vmi(f"x{c}", f"buffer_load_dwordx4 v{VX + h * 4 + mm}, s[8:11], s70 offen{off} lds")

    def dma_s(c):
        e(f"s_add_u32 m0, s68, {LDS_S + c * 16384}")
        e(f"s_add_u32 s70, s65, {c * 256}")
        for mm in range(4):
            off = f" offset:{mm * 1024}" if mm else ""
            A.vmi(f"s{c}", f"buffer_load_dwordx4 v{VS + mm}, s[12:15], s70 offen{off} lds")

    def dma_f_items(c):
        items = []
        for h in range(2):
            for mm in range(4 if h == 0 else 3):
                def it(h=h, mm=mm):
                    if mm == 0:
                        e(f"s_add_u32 m0, s69, {LDS_F[c] + h * 4096}")
                        e(f"s_add_u32 s71, s66, {c * 128 * 3584}")
                    off = f" offset:{mm * 1024}" if mm else ""
                    A.vmi(f"f{c}", f"buffer_load_dwordx4 v{VF + h * 4 + mm}, s[52:55], s71 offen{off} lds")
                items.append(it)
        return items

    dma_x(0, 0)
    dma_s(0)
    dma_x(1, 1)
    dma_s(1)
    dma_x(2, 2)
    dma_s(2)
    dma_s(3)
    A.stamp(1)

    srd(A, 52, 36, 37, 512 * 3584)
    srd(A, 56, 50, 51, WS_USED)
    srd(A, 72, 48, 49, 256)
    e("s_lshl_b32 s3, s5, 12")
    e(f"s_add_u32 s3, s3, {E_OFF}")
    e("s_add_u32 s76, s50, s3")
    e("s_addc_u32 s77, s51, 0")
    e("s_and_b32 s77, s77, 0xffff")
    e("s_mov_b32 s78, 4096")
    e("s_mov_b32 s79, 0x20000")

    e("v_xor_b32 v4, v2, v3")
    e("v_lshrrev_b32 v5, 2, v2")
    e("v_lshlrev_b32 v5, 3, v5")
    e("v_and_b32 v6, 3, v2")
    e("v_add_u32 v5, v5, v6")
    e("v_lshlrev_b32 v5, 8, v5")
    e(f"s_add_u32 s3, s67, {LDS_X[0]}")
    e("v_add_u32 v5, s3, v5")
    e("v_lshlrev_b32 v6, 8, v2")
    for k in range(4):
        e(f"v_xor_b32 v7, {4 * k}, v4")
        e("v_lshlrev_b32 v7, 4, v7")
        e(f"v_add_u32 v{VRX + k}, v5, v7")
        e(f"v_add_u32 v{VRS + k}, v6, v7")
        e(f"v_add_u32 v{VRX2 + k}, 0x10000, v{VRX + k}")
    e("s_and_b32 s3, s5, 1")
    e("s_lshl_b32 s7, s3, 1")
    for m in range(7):
        d = VF + m
        e(f"v_add_u32 v4, {64 * m}, v1")
        e("v_mul_u32_u24 v5, 4682, v4")
        e("v_lshrrev_b32 v5, 16, v5")
        e("v_mul_u32_u24 v6, 14, v5")
        e("v_sub_u32 v4, v4, v6")
        e("v_add_u32 v4, s7, v4")
        e("v_subrev_u32 v6, 14, v4")
        e("v_min_u32 v4, v4, v6")
        e("v_and_b32 v6, 12, v5")
        e("v_lshlrev_b32 v6, 1, v6")
        e("v_and_b32 v7, 3, v5")
        e("v_add_u32 v6, v6, v7")
        e("v_lshrrev_b32 v7, 4, v5")
        e("v_lshl_add_u32 v6, v7, 2, v6")
        e("v_mul_u32_u24 v6, 3584, v6")
        e("v_lshl_add_u32 v6, v4, 4, v6")
        if m & 3:
            e(f"v_subrev_u32 v{d}, {(m & 3) * 1024}, v6")
        else:
            e(f"v_mov_b32 v{d}, v6")
    e("v_lshrrev_b32 v4, 2, v2")
    e("v_lshl_add_u32 v4, v3, 2, v4")
    e("v_mul_u32_u24 v4, 224, v4")
    e("v_and_b32 v5, 3, v2")
    e("v_lshl_add_u32 v4, v5, 3, v4")
    e(f"v_add_u32 v{VFR}, {LDS_F[0]}, v4")

    e("s_mul_i32 s3, s5, 224")
    e("v_lshlrev_b32 v4, 3, v3")
    e("v_add_u32 v4, s3, v4")
    e("s_and_b32 s3, s5, 1")
    e("s_lshl_b32 s7, s3, 5")
    e("v_add_u32 v5, s7, v4")
    e(f"s_mul_i32 s7, s3, {6 * 32}")
    e("s_sub_u32 s7, 192, s7")
    e("v_add_u32 v6, s7, v4")
    BT = VT + 8
    for nt in range(6):
        A.vmi("bias", f"global_load_dwordx2 {vr(BT + 2 * nt, 2)}, v5, s[38:39] offset:{32 * nt}")
    A.vmi("bias", f"global_load_dwordx2 {vr(BT + 12, 2)}, v6, s[38:39]")

    A.vm_wait("cst")
    Z = VT + 24
    e(f"s_mov_b32 s80, {LOG2E:#x}")
    e(f"s_mov_b32 s81, {INV2PI:#x}")
    for pb in range(2):
        for k in range(3):
            e(f"v_lshlrev_b32 v{T + 3 * pb + k}, 16, v{T + 3 * pb + k}")
    for pb in range(2):
        e(f"v_mul_f32 v{T + 3 * pb + 2}, s80, v{T + 3 * pb + 2}")
    for pb in range(2):
        e(f"v_exp_f32 v{T + 3 * pb + 2}, v{T + 3 * pb + 2}")
    A.nop(1)
    for pb in range(2):
        e(f"v_cvt_pk_bf16_f32 v{T + 3 * pb + 2}, v{T + 3 * pb + 2}, v{T + 3 * pb + 2}")
    for pb in range(2):
        e(f"v_lshlrev_b32 v{T + 3 * pb + 2}, 16, v{T + 3 * pb + 2}")
    for pb in range(2):
        z = Z + 4 * pb
        e(f"v_mov_b32 v{z}, v{T + 3 * pb}")
        e(f"v_mov_b32 v{z + 1}, v{T + 3 * pb + 1}")
        e(f"v_mul_f32 v{z + 2}, v{T + 3 * pb + 2}, v{z}")
        e(f"v_mul_f32 v{z + 3}, v{T + 3 * pb + 2}, v{z + 1}")
        e(f"v_mul_f32 v{z + 2}, s80, v{z + 2}")
        e(f"v_mul_f32 v{z + 3}, s81, v{z + 3}")

    TP = VT + 32

    def cpow(dst, kreg=None, kconst=None):
        for pb in range(2):
            z = Z + 4 * pb
            t = TP + 4 * pb
            if kreg is not None:
                e(f"v_mul_f32 v{t}, v{kreg}, v{z + 2}")
                e(f"v_mul_f32 v{t + 1}, v{kreg}, v{z + 3}")
            elif kconst == 1.0:
                e(f"v_mov_b32 v{t}, v{z + 2}")
                e(f"v_mov_b32 v{t + 1}, v{z + 3}")
            else:
                import struct
                lit = struct.unpack("<I", struct.pack("<f", kconst))[0]
                e(f"v_mul_f32 v{t}, {lit:#x}, v{z + 2}")
                e(f"v_mul_f32 v{t + 1}, {lit:#x}, v{z + 3}")
        for pb in range(2):
            t = TP + 4 * pb
            e(f"v_exp_f32 v{t}, v{t}")
            e(f"v_fract_f32 v{t + 1}, v{t + 1}")
        for pb in range(2):
            t = TP + 4 * pb
            e(f"v_cos_f32 v{t + 2}, v{t + 1}")
            e(f"v_sin_f32 v{t + 3}, v{t + 1}")
        A.nop(1)
        for pb in range(2):
            t = TP + 4 * pb
            e(f"v_mul_f32 v{C(pb, dst)}, v{t}, v{t + 2}")
            e(f"v_mul_f32 v{C(pb, dst + 1)}, v{t}, v{t + 3}")

    cpow(C_LR, kconst=1.0)
    for pb in range(2):
        e(f"v_sub_f32 v{C(pb, C_NLI)}, 0, v{C(pb, C_LI)}")
    for pb in range(2):
        z = Z + 4 * pb
        t = TP + 4 * pb
        e(f"v_subrev_f32 v{t}, 1.0, v{C(pb, C_LR)}")
        e(f"v_mul_f32 v{t + 1}, v{z}, v{z}")
        e(f"v_fmac_f32 v{t + 1}, v{z + 1}, v{z + 1}")
        e(f"v_rcp_f32 v{t + 1}, v{t + 1}")
        e(f"v_mul_f32 v{t + 2}, v{t}, v{z}")
        e(f"v_fmac_f32 v{t + 2}, v{C(pb, C_LI)}, v{z + 1}")
        e(f"v_mul_f32 v{t + 3}, v{C(pb, C_LI)}, v{z}")
        e(f"v_fma_f32 v{t + 3}, -v{t}, v{z + 1}, v{t + 3}")
        e(f"v_add_f32 v{t + 1}, v{t + 1}, v{t + 1}")
        e(f"v_mul_f32 v{C(pb, C_C2)}, v{t + 2}, v{t + 1}")
        e(f"v_mul_f32 v{C(pb, C_C2 + 1)}, v{t + 3}, v{t + 1}")
    cpow(C_L8, kconst=8.0)
    cpow(C_L16, kconst=16.0)
    cpow(C_L32, kconst=32.0)
    cpow(C_L4, kconst=512.0)
    KR = VT + 6
    e(f"v_cvt_f32_u32 v{KR}, v3")
    e(f"v_mul_f32 v{KR + 1}, 0x41000000, v{KR}")
    cpow(C_L8Q, kreg=KR + 1)
    e(f"v_mul_f32 v{KR + 1}, 0x43000000, v{KR}")
    cpow(C_LQ, kreg=KR + 1)
    e("s_lshl_b32 s3, s6, 5")
    e(f"v_cvt_f32_u32 v{KR + 1}, s3")
    cpow(C_L32W, kreg=KR + 1)
    e("v_cmp_eq_u32 vcc, 3, v3")
    e("v_cmp_eq_u32 s[82:83], 2, v3")
    e("v_and_b32 v4, 1, v3")
    e(f"v_cvt_f32_u32 v{C(0, C_MA)}, v4")
    e("v_cndmask_b32 v5, 0, 1.0, s[82:83]")
    for pb in range(2):
        e(f"v_cndmask_b32 v{C(pb, C_MC)}, v5, v{C(pb, C_L8)}, vcc")
        e(f"v_cndmask_b32 v{C(pb, C_MC + 1)}, 0, v{C(pb, C_L8 + 1)}, vcc")
    A.vm_wait("bias")
    for nt in range(7):
        b = VBIAS + 4 * nt
        e(f"v_lshlrev_b32 v{b}, 16, v{BT + 2 * nt}")
        e(f"v_and_b32 v{b + 1}, 0xffff0000, v{BT + 2 * nt}")
        e(f"v_lshlrev_b32 v{b + 2}, 16, v{BT + 2 * nt + 1}")
        e(f"v_and_b32 v{b + 3}, 0xffff0000, v{BT + 2 * nt + 1}")

    def ssm_reads(s):
        c, ksl = s >> 2, s & 3
        buf = [0, 1, 2, 0][c]
        it = []
        for tb in range(2):
            if buf == 2:
                it.append(f"ds_read_b128 {ar(XF(s, tb), 4)}, v{VRX2 + ksl} offset:{tb * 1024}")
            else:
                it.append(f"ds_read_b128 {ar(XF(s, tb), 4)}, v{VRX + ksl} offset:{buf * 32768 + tb * 1024}")
        for ct in range(4):
            it.append(f"ds_read_b128 {ar(128 + (s & 1) * 16 + ct * 4, 4)}, v{VRS + ksl} "
                      f"offset:{LDS_S + c * 16384 + ct * 4096}")
        return it

    def ssm_mfma(s):
        it = []
        for ct in range(4):
            for tb in range(2):
                d = vr(SACC(tb, ct), 4)
                cc = "0" if s == 0 else d
                it.append(f"v_mfma_f32_16x16x32_bf16 {d}, {ar(XF(s, tb), 4)}, "
                          f"{ar(128 + (s & 1) * 16 + ct * 4, 4)}, {cc}")
        return it

    A.stamp(2)
    A.vm_wait("x0", "s0")
    e("s_barrier")
    A.stamp(3)
    for r in ssm_reads(0):
        e(r)
    for s in range(16):
        e("s_waitcnt lgkmcnt(0)")
        if s in (3, 7, 11):
            c = (s + 1) >> 2
            A.vm_wait(f"x{c}", f"s{c}")
            e("s_barrier")
            A.stamp(3 + c)
        rd = ssm_reads(s + 1) if s < 15 else []
        for ins in interleave(ssm_mfma(s), rd, 0, 2):
            e(ins)
        if s == 3:
            dma_x(3, 0)
        if s == 7:
            for it in dma_f_items(0):
                it()
        if s == 11:
            for it in dma_f_items(1):
                it()
        if s == 12:
            for it in dma_f_items(2):
                it()

    A.stamp(7)
    A.nop(8)
    EA = 96

    def U(pb, tau, im):
        return SACC(tau >> 2, pb + 2 * im, tau & 3)

    cur = [None, None]
    for tau in range(1, 8):
        for pb in range(2):
            dst = EA + 4 * pb + 2 * (tau & 1)
            lr, li, nli = C(pb, C_LR), C(pb, C_LI), C(pb, C_NLI)
            pr, pi = (U(pb, 0, 0), U(pb, 0, 1)) if tau == 1 else cur[pb]
            e(f"v_fma_f32 v{dst}, v{lr}, v{pr}, v{U(pb, tau, 0)}")
            e(f"v_fma_f32 v{dst + 1}, v{lr}, v{pi}, v{U(pb, tau, 1)}")
            e(f"v_fmac_f32 v{dst}, v{nli}, v{pi}")
            e(f"v_fmac_f32 v{dst + 1}, v{li}, v{pr}")
            cur[pb] = (dst, dst + 1)
    TB = 104
    AA = 108
    CC = 112
    for pb in range(2):
        for k in range(2):
            e(f"v_mov_b32 v{TB + 2 * pb + k}, v{cur[pb][k]}")
            e(f"v_mov_b32 v{AA + 2 * pb + k}, v{cur[pb][k]}")
    A.nop(2)
    for x in range(4):
        e(f"v_permlane16_swap_b32 v{AA + x}, v{TB + x}")
    A.nop(1)
    for pb in range(2):
        cfma(A, TB + 2 * pb, TB + 2 * pb + 1, C(pb, C_L8), C(pb, C_L8 + 1), AA + 2 * pb, AA + 2 * pb + 1)
    for x in range(4):
        e(f"v_mov_b32 v{CC + x}, v{TB + x}")
    A.nop(2)
    for x in range(4):
        e(f"v_permlane32_swap_b32 v{CC + x}, v{TB + x}")
    A.nop(1)
    for pb in range(2):
        cfma(A, TB + 2 * pb, TB + 2 * pb + 1, C(pb, C_L16), C(pb, C_L16 + 1), CC + 2 * pb, CC + 2 * pb + 1)
    for pb in range(2):
        ci = VCIN + 2 * pb
        e(f"v_mul_f32 v{ci}, v{C(0, C_MA)}, v{AA + 2 * pb}")
        e(f"v_mul_f32 v{ci + 1}, v{C(0, C_MA)}, v{AA + 2 * pb + 1}")
        cfma(A, ci, ci + 1, C(pb, C_MC), C(pb, C_MC + 1), CC + 2 * pb, CC + 2 * pb + 1)
    e("v_lshlrev_b32 v4, 4, v2")
    e("s_lshl_b32 s3, s6, 8")
    e(f"s_add_u32 s3, s3, {LDS_SCR}")
    e("v_add_u32 v5, s3, v4")
    e(f"v_add_u32 v4, {LDS_SCR}, v4")
    e(f"ds_write_b128 v5, {vr(TB, 4)}")
    e("s_waitcnt lgkmcnt(0)")
    e("s_barrier")
    A.stamp(8)
    W = 96
    for w_ in range(4):
        e(f"ds_read_b128 {vr(W + 4 * w_, 4)}, v4 offset:{w_ * 256}")
    for it in dma_f_items(3):
        it()
    e("s_waitcnt lgkmcnt(0)")
    for w_ in range(1, 4):
        for pb in range(2):
            d = W + 4 * w_ + 2 * pb
            s_ = W + 4 * (w_ - 1) + 2 * pb
            cfma(A, d, d + 1, C(pb, C_L32), C(pb, C_L32 + 1), s_, s_ + 1)
    LW = A.newlab("win")
    for x in range(4):
        e(f"v_mov_b32 v{VWIN + x}, 0")
    for w_ in range(1, 4):
        e(f"s_cmp_lt_u32 s6, {w_}")
        e(f"s_cbranch_scc1 {LW}")
        for x in range(4):
            e(f"v_mov_b32 v{VWIN + x}, v{W + 4 * (w_ - 1) + x}")
    A.lab(LW)
    e("s_lshl_b32 s3, s4, 8")
    e("v_lshlrev_b32 v4, 4, v2")
    e("v_add_u32 v4, s3, v4")
    e("s_cmp_eq_u32 s6, 3")
    e("s_cselect_b32 s3, 16, 0")
    e(f"v_mov_b32 v5, {OOB:#x}")
    e("v_cmp_gt_u32 vcc, s3, v1")
    A.nop(2)
    e("v_cndmask_b32 v4, v5, v4, vcc")
    A.vmi("epub", f"buffer_store_dwordx4 {vr(W + 12, 4)}, v4, s[76:79], 0 offen sc1")
    VFLA, VFLD = 116, 117
    e("s_cmp_eq_u32 s6, 3")
    e("s_cselect_b32 s3, 1, 0")
    e("v_cmp_gt_u32 vcc, s3, v1")
    e("s_lshl_b32 s7, s5, 2")
    e("v_mov_b32 v4, s7")
    e("s_lshl_b32 s3, 1, s4")
    e(f"v_mov_b32 v{VFLD}, s3")
    e(f"v_cndmask_b32 v{VFLA}, v5, v4, vcc")

    GX = 208
    e("s_lshl_b32 s3, s4, 7")
    e("s_lshl_b32 s7, s5, 3")
    e("s_add_u32 s3, s3, s7")
    e("s_lshl_b32 s7, s6, 1")
    e("s_add_u32 s84, s3, s7")
    e("v_lshrrev_b32 v4, 5, v1")
    e("v_add_u32 v4, s84, v4")
    e("v_lshlrev_b32 v4, 10, v4")
    e("v_and_b32 v5, 31, v1")
    e("v_lshlrev_b32 v5, 5, v5")
    e("v_add_u32 v4, v4, v5")
    A.vmi("gate", f"global_load_dwordx4 {vr(GX, 4)}, v4, s[16:17]")
    A.vmi("gate", f"global_load_dwordx4 {vr(GX + 4, 4)}, v4, s[16:17] offset:16")
    A.vmi("gate", f"global_load_dwordx4 {vr(GX + 8, 4)}, v5, s[44:45]")
    A.vmi("gate", f"global_load_dwordx4 {vr(GX + 12, 4)}, v5, s[44:45] offset:16")
    PC = 224
    e("s_lshl_b32 s85, s2, 2")
    e("s_add_u32 s85, s85, s6")
    e("s_lshr_b32 s3, s85, 7")
    e("s_and_b32 s7, s85, 3")
    e("s_lshl_b32 s3, s3, 6")
    e("s_lshl_b32 s7, s7, 4")
    e("s_add_u32 s3, s3, s7")
    e("v_add_u32 v4, s3, v2")
    e("v_lshlrev_b32 v4, 10, v4")
    e("s_lshr_b32 s3, s85, 2")
    e("s_and_b32 s3, s3, 31")
    e("s_lshl_b32 s3, s3, 5")
    e("v_lshl_add_u32 v5, v3, 3, s3")
    e("v_add_u32 v4, v4, v5")
    A.vmi("prepc", f"global_load_dwordx2 {vr(PC, 2)}, v4, s[26:27]")
    A.vmi("prepc", f"global_load_dwordx2 {vr(PC + 2, 2)}, v4, s[28:29]")
    PW = 228
    srd(A, 60, 40, 41, 1792 * 1024)
    e("v_lshlrev_b32 v4, 12, v3")
    e("v_lshl_add_u32 v4, v2, 1, v4")
    e("s_add_u32 s95, s85, 1024")
    e("s_cmp_lt_u32 s95, 1792")
    e("s_cselect_b32 s95, s95, s85")
    for n in range(2):
        e(f"s_mov_b32 s3, s{85 if n == 0 else 95}")
        e("s_lshr_b32 s7, s3, 5")
        e("s_lshl_b32 s7, s7, 15")
        e("s_and_b32 s3, s3, 31")
        e("s_lshl_b32 s3, s3, 5")
        e(f"s_add_u32 s{86 + 2 * n}, s7, s3")
        e(f"s_add_u32 s{87 + 2 * n}, s{86 + 2 * n}, 16384")
        for ee in range(8):
            op = "buffer_load_short_d16_hi" if ee & 1 else "buffer_load_ushort"
            off = f" offset:{(ee & 3) * 1024}" if ee & 3 else ""
            A.vmi("prepw", f"{op} v{PW + 8 * n + ee}, v4, s[60:63], s{86 + 2 * n + (ee >> 2)} offen{off}")

    def ffn_reads(s):
        ksl = s & 3
        it = []
        for nt in range(7):
            for h in range(2):
                it.append(f"ds_read_b64_tr_b16 {ar(128 + (s & 1) * 28 + nt * 4 + 2 * h, 2)}, v{VFR} "
                          f"offset:{ksl * 7168 + h * 3584 + nt * 32}")
        return it

    def ffn_mfma(s):
        it = []
        for nt in range(7):
            for tb in range(2):
                d = vr(FACC(nt, tb), 4)
                cc = vr(VBIAS + 4 * nt, 4) if s == 0 else d
                it.append(f"v_mfma_f32_16x16x32_bf16 {d}, {ar(128 + (s & 1) * 28 + nt * 4, 4)}, "
                          f"{ar(XF(s, tb), 4)}, {cc}")
        return it

    def set_vfr(c_from, c_to):
        delta = LDS_F[c_to] - LDS_F[c_from]
        if delta >= 0:
            e(f"v_add_u32 v{VFR}, {delta}, v{VFR}")
        else:
            e(f"v_subrev_u32 v{VFR}, {-delta}, v{VFR}")

    A.stamp(9)
    A.vm_wait("f0")
    e("s_barrier")
    A.stamp(10)
    for r in ffn_reads(0):
        e(r)
    VFLG = 118
    for s in range(16):
        e("s_waitcnt lgkmcnt(0)")
        if s in (3, 7, 11):
            c = (s + 1) >> 2
            A.vm_wait(f"f{c}")
            e("s_barrier")
            set_vfr(c - 1, c)
            A.stamp(10 + c)
        if s == 7:
            A.vm_wait("epub")
            A.vmi("flag", f"buffer_atomic_or v{VFLD}, v{VFLA}, s[72:75], 0 offen")
        if s == 13:
            e("s_lshl_b32 s3, s5, 2")
            e("v_mov_b32 v4, s3")
            A.vmi("poll", f"buffer_load_dword v{VFLG}, v4, s[72:75], 0 offen sc1")
        rd = ffn_reads(s + 1) if s < 15 else []
        for ins in interleave(ffn_mfma(s), rd, 0, 2):
            e(ins)

    A.stamp(14)
    e("s_lshl_b32 s90, 1, s4")
    e("s_sub_u32 s90, s90, 1")
    LP, LOK = A.newlab("poll"), A.newlab("pollok")
    A.vm_wait("poll")
    e("s_mov_b32 s96, 0x40000")
    A.lab(LP)
    e(f"v_readfirstlane_b32 s3, v{VFLG}")
    A.nop(4)
    e("s_and_b32 s3, s3, s90")
    e("s_cmp_eq_u32 s3, s90")
    e(f"s_cbranch_scc1 {LOK}")
    e("s_sub_u32 s96, s96, 1")
    e("s_cmp_eq_u32 s96, 0")
    e(f"s_cbranch_scc1 {LOK}")
    e("s_sleep 2")
    e(f"buffer_load_dword v{VFLG}, v4, s[72:75], 0 offen sc1")
    e("s_waitcnt vmcnt(0)")
    e(f"s_branch {LP}")
    A.lab(LOK)
    A.stamp(15)
    EM = 96
    e("s_sub_u32 s3, s4, 1")
    e("v_sub_u32 v4, s3, v3")
    e("v_lshlrev_b32 v4, 8, v4")
    e("v_lshl_add_u32 v4, v2, 4, v4")
    for m in range(4):
        if m:
            e(f"v_subrev_u32 v{4 + (m & 1)}, 1024, v{4 + ((m - 1) & 1)}")
        e(f"v_and_b32 v7, 0x7fffffff, v{4 + (m & 1)}")
        A.vmi("eld", f"buffer_load_dwordx4 {vr(EM + 4 * m, 4)}, v7, s[76:79], 0 offen sc1")

    e("s_lshl_b32 s3, s4, 1")
    e("s_lshr_b32 s7, s6, 1")
    e("s_add_u32 s3, s3, s7")
    e(f"s_mul_i32 s91, s3, {AF_RT}")
    e("s_and_b32 s7, s6, 1")
    e("s_lshl_b32 s7, s7, 11")
    e("s_add_u32 s91, s91, s7")
    e("s_lshr_b32 s3, s5, 1")
    e("s_mul_i32 s3, s3, 7")
    e("s_add_u32 s3, s3, 32")
    e("s_and_b32 s7, s5, 1")
    e("s_lshl_b32 s92, s7, 2")
    e("s_add_u32 s92, s92, s3")
    e("s_lshl_b32 s92, s92, 12")
    e("s_add_u32 s92, s92, s91")
    e("s_add_u32 s93, s3, 3")
    e("s_lshl_b32 s93, s93, 12")
    e("s_add_u32 s93, s93, s91")
    e("s_lshl_b32 s7, s7, 3")
    e("v_lshlrev_b32 v6, 4, v1")
    e("v_add_u32 v7, s7, v6")
    PK = 112
    flip = 0
    for sp in range(4):
        for tb in range(2):
            tiles = [2 * sp, 2 * sp + 1] if sp < 3 else [6]
            pk = PK + 4 * flip
            flip ^= 1
            for ti, nt in enumerate(tiles):
                a = FACC(nt, tb)
                for r in range(4):
                    e(f"v_max_f32 v{a + r}, 0, v{a + r}")
                for r in range(4):
                    e(f"v_mul_f32 v{a + r}, v{a + r}, v{a + r}")
                e(f"v_cvt_pk_bf16_f32 v{pk + 2 * ti}, v{a}, v{a + 1}")
                e(f"v_cvt_pk_bf16_f32 v{pk + 2 * ti + 1}, v{a + 2}, v{a + 3}")
            off = f" offset:{tb * 1024}" if tb else ""
            if sp < 3:
                if sp and tb == 0:
                    e("s_add_u32 s92, s92, 4096")
                A.vmi("hst", f"buffer_store_dwordx4 {vr(pk, 4)}, v6, s[56:59], s92 offen{off}")
            else:
                A.vmi("hst", f"buffer_store_dwordx2 {vr(pk, 2)}, v7, s[56:59], s93 offen{off}")

    A.stamp(16)
    A.vm_wait("gate")
    GS = 40
    e(f"v_mov_b32 v{GS}, 0")
    for d in range(8):
        x, g = GX + d, GX + 8 + d
        t = GS + 1
        e(f"v_lshlrev_b32 v{t}, 16, v{x}")
        e(f"v_lshlrev_b32 v{t + 1}, 16, v{g}")
        e(f"v_and_b32 v{t + 2}, 0xffff0000, v{x}")
        e(f"v_and_b32 v{t + 3}, 0xffff0000, v{g}")
        e(f"v_mul_f32 v{t}, v{t}, v{t + 1}")
        e(f"v_mul_f32 v{t + 2}, v{t + 2}, v{t + 3}")
        e(f"v_cvt_pk_bf16_f32 v{t}, v{t}, v{t + 2}")
        e(f"v_lshlrev_b32 v{t + 1}, 16, v{t}")
        e(f"v_and_b32 v{t + 2}, 0xffff0000, v{t}")
        e(f"v_add_f32 v{GS}, v{GS}, v{t + 1}")
        e(f"v_add_f32 v{GS}, v{GS}, v{t + 2}")
    for ctl in ("quad_perm:[1,0,3,2]", "quad_perm:[2,3,0,1]", "row_half_mirror", "row_mirror"):
        A.nop(2)
        e(f"v_add_f32_dpp v{GS}, v{GS}, v{GS} {ctl} row_mask:0xf bank_mask:0xf")
    e(f"v_mov_b32 v{GS + 1}, v{GS}")
    A.nop(2)
    e(f"v_permlane16_swap_b32 v{GS + 1}, v{GS}")
    A.nop(1)
    e(f"v_add_f32 v{GS}, v{GS}, v{GS + 1}")
    e(f"v_cvt_pk_bf16_f32 v{GS}, v{GS}, v{GS}")
    e(f"v_lshlrev_b32 v{GS}, 16, v{GS}")
    e(f"v_mul_f32 v{GS}, s80, v{GS}")
    e(f"v_sub_f32 v{GS}, 0, v{GS}")
    e(f"v_exp_f32 v{GS}, v{GS}")
    A.nop(1)
    e(f"v_add_f32 v{GS}, 1.0, v{GS}")
    e(f"v_rcp_f32 v{GS}, v{GS}")
    A.nop(1)
    e(f"v_cvt_pk_bf16_f32 v{GS}, v{GS}, v{GS}")
    e(f"v_lshlrev_b32 v{GS + 2}, 16, v{GS}")
    e(f"v_sub_f32 v{GS + 3}, 1.0, v{GS + 2}")
    e(f"v_cvt_pk_bf16_f32 v{GS + 3}, v{GS + 3}, v{GS + 3}")
    e(f"v_lshlrev_b32 v{GS + 3}, 16, v{GS + 3}")
    e("v_lshrrev_b32 v4, 5, v1")
    e("v_add_u32 v4, s84, v4")
    e("v_lshlrev_b32 v4, 3, v4")
    e(f"v_add_u32 v4, {G_OFF}, v4")
    e("v_and_b32 v5, 31, v1")
    e("v_cmp_eq_u32 vcc, 0, v5")
    e(f"v_mov_b32 v5, {OOB:#x}")
    A.nop(1)
    e("v_cndmask_b32 v4, v5, v4, vcc")
    A.vmi("gst", f"buffer_store_dwordx2 {vr(GS + 2, 2)}, v4, s[56:59], 0 offen")

    A.vm_wait("prepc", "prepw")
    PO = 48
    e("s_mov_b32 s3, 0x05040100")
    e("s_mov_b32 s7, 0x07060302")
    for d in range(2):
        e(f"v_perm_b32 v{PO + 2 * d}, v{PC + 2 + d}, v{PC + d}, s3")
        e(f"v_perm_b32 v{PO + 2 * d + 1}, v{PC + 2 + d}, v{PC + d}, s7")
    e("s_lshr_b32 s3, s85, 7")
    e(f"s_mul_i32 s3, s3, {AF_RT}")
    e("s_and_b32 s7, s85, 127")
    e("s_lshl_b32 s7, s7, 10")
    e("s_add_u32 s3, s3, s7")
    e(f"s_add_u32 s3, s3, {BF_OFF}")
    A.vmi("bst", f"buffer_store_dwordx4 {vr(PO, 4)}, v6, s[56:59], s3 offen")
    for n in range(2):
        e(f"s_mov_b32 s94, s{85 if n == 0 else 95}")
        e("s_lshr_b32 s3, s94, 5")
        e("s_add_u32 s3, s3, 32")
        e("s_lshl_b32 s3, s3, 12")
        e("s_lshr_b32 s7, s94, 2")
        e("s_and_b32 s7, s7, 7")
        e(f"s_mul_i32 s7, s7, {AF_RT}")
        e("s_add_u32 s3, s3, s7")
        e("s_and_b32 s7, s94, 3")
        e("s_lshl_b32 s7, s7, 10")
        e("s_add_u32 s3, s3, s7")
        e(f"s_add_u32 s3, s3, {BF_OFF}")
        for d in range(4):
            e(f"v_and_b32 v{PW + 8 * n + 2 * d + 1}, 0xffff0000, v{PW + 8 * n + 2 * d + 1}")
            e(f"v_or_b32 v{PO + 4 + 4 * n + d}, v{PW + 8 * n + 2 * d}, v{PW + 8 * n + 2 * d + 1}")
        A.vmi("bst", f"buffer_store_dwordx4 {vr(PO + 4 + 4 * n, 4)}, v6, s[56:59], s3 offen")

    A.stamp(17)
    A.vm_wait("eld")
    A.stamp(18)
    for m in (2, 1, 0):
        for pb in range(2):
            d = EM + 4 * m + 2 * pb
            s_ = EM + 4 * (m + 1) + 2 * pb
            cfma(A, d, d + 1, C(pb, C_L4), C(pb, C_L4 + 1), s_, s_ + 1)
    R = 88
    for pb in range(2):
        cmul(A, R + 2 * pb, R + 2 * pb + 1, C(pb, C_LQ), C(pb, C_LQ + 1), EM + 2 * pb, EM + 2 * pb + 1)
    for swap in ("v_permlane16_swap_b32", "v_permlane32_swap_b32"):
        for x in range(4):
            e(f"v_mov_b32 v{R + 4 + x}, v{R + x}")
        A.nop(2)
        for x in range(4):
            e(f"{swap} v{R + 4 + x}, v{R + x}")
        A.nop(1)
        for x in range(4):
            e(f"v_add_f32 v{R + x}, v{R + x}, v{R + 4 + x}")
    for pb in range(2):
        cfma(A, VWIN + 2 * pb, VWIN + 2 * pb + 1, C(pb, C_L32W), C(pb, C_L32W + 1), R + 2 * pb, R + 2 * pb + 1)
    for pb in range(2):
        cfma(A, VCIN + 2 * pb, VCIN + 2 * pb + 1, C(pb, C_L8Q), C(pb, C_L8Q + 1), VWIN + 2 * pb, VWIN + 2 * pb + 1)
    for tau in range(8):
        for pb in range(2):
            lr, li, nli = C(pb, C_LR), C(pb, C_LI), C(pb, C_NLI)
            if tau == 0:
                pr, pi = VCIN + 2 * pb, VCIN + 2 * pb + 1
            else:
                pr, pi = U(pb, tau - 1, 0), U(pb, tau - 1, 1)
            e(f"v_fmac_f32 v{U(pb, tau, 0)}, v{lr}, v{pr}")
            e(f"v_fmac_f32 v{U(pb, tau, 1)}, v{lr}, v{pi}")
            e(f"v_fmac_f32 v{U(pb, tau, 0)}, v{nli}, v{pi}")
            e(f"v_fmac_f32 v{U(pb, tau, 1)}, v{li}, v{pr}")
    e("v_lshrrev_b32 v4, 2, v2")
    e("v_mul_u32_u24 v4, 272, v4")
    e("v_lshl_add_u32 v4, v3, 6, v4")
    e("v_and_b32 v5, 3, v2")
    e("v_lshl_add_u32 v4, v5, 2, v4")
    e("s_mul_i32 s3, s6, 4352")
    e(f"s_add_u32 s3, s3, {LDS_T}")
    e("v_add_u32 v4, s3, v4")
    e("v_mul_u32_u24 v5, 272, v3")
    e("v_lshl_add_u32 v5, v2, 4, v5")
    e("v_add_u32 v5, s3, v5")
    TR, TI = 60, 64
    for tb in range(2):
        for pb in range(2):
            c2 = vr(C(pb, C_C2), 2)
            for h in range(2):
                P = vr(SACC(tb, pb, 2 * h), 2)
                Q = vr(SACC(tb, 2 + pb, 2 * h), 2)
                tr_, ti_ = vr(TR + 2 * h, 2), vr(TI + 2 * h, 2)
                e(f"v_pk_mul_f32 {tr_}, {P}, {c2} op_sel_hi:[1,0]")
                e(f"v_pk_mul_f32 {ti_}, {Q}, {c2} op_sel_hi:[1,0]")
                e(f"v_pk_fma_f32 {tr_}, {Q}, {c2}, {tr_} op_sel:[0,1,0] op_sel_hi:[1,1,1] "
                  f"neg_lo:[1,0,0] neg_hi:[1,0,0]")
                e(f"v_pk_fma_f32 {ti_}, {P}, {c2}, {ti_} op_sel:[0,1,0] op_sel_hi:[1,1,1]")
            for r in range(4):
                e(f"v_cvt_pk_bf16_f32 v{68 + r}, v{TR + r}, -v{TI + r}")
            for r in range(4):
                e(f"ds_write_b32 v4, v{68 + r} offset:{(tb * 2 + pb) * 1088 + r * 16}")
    e("s_waitcnt lgkmcnt(0)")
    for x in range(4):
        e(f"ds_read_b128 {vr(72 + 4 * x, 4)}, v5 offset:{x * 1088}")
    e("s_lshl_b32 s3, s5, 13")
    e("s_add_u32 s3, s3, s91")
    e("s_add_u32 s7, s3, 4096")
    e("s_waitcnt lgkmcnt(0)")
    for tb in range(2):
        for pb in range(2):
            off = f" offset:{tb * 1024}" if tb else ""
            A.vmi("sst", f"buffer_store_dwordx4 {vr(72 + 4 * (tb * 2 + pb), 4)}, v6, s[56:59], "
                         f"s{3 if pb == 0 else 7} offen{off}")
    A.stamp(19)
    if A.stamps:
        A.vm_all()
    A.stamp(20)
    A.stamp_flush(0, 56)
    A.lab(END)
    e("s_endpgm")


def gen_k2(A, cfg):
    e = A.e
    D = cfg["k2_depth"]
    END = "L_k2_end"
    RSTR = 17408

    def ACC(db, tb4):
        return 16 + (db * 4 + tb4) * 4

    e("s_cmp_ge_u32 s2, 256")
    e(f"s_cbranch_scc1 {END}")
    e("s_load_dwordx2 s[16:17], s[0:1], 0")
    e("s_load_dwordx2 s[18:19], s[0:1], 64")
    e("s_load_dwordx2 s[20:21], s[0:1], 104")
    e("s_load_dwordx2 s[22:23], s[0:1], 120")
    e("s_load_dwordx2 s[24:25], s[0:1], 136")
    A.stamp(0)
    e("v_and_b32 v1, 63, v0")
    e("v_lshrrev_b32 v4, 6, v0")
    e("v_and_b32 v2, 15, v1")
    e("v_readfirstlane_b32 s6, v4")
    e("v_lshrrev_b32 v3, 4, v1")
    e("s_and_b32 s3, s2, 7")
    e("s_lshl_b32 s3, s3, 2")
    e("s_lshr_b32 s7, s2, 6")
    e("s_add_u32 s4, s3, s7")
    e("s_lshr_b32 s5, s2, 3")
    e("s_and_b32 s5, s5, 7")
    e("v_lshlrev_b32 v5, 4, v1")
    e(f"s_mul_i32 s26, s4, {AF_RT}")
    e(f"s_mul_i32 s3, s6, {22 * 4096}")
    e("s_add_u32 s26, s26, s3")
    e(f"s_mul_i32 s27, s5, {AF_RT}")
    e("s_add_u32 s27, s27, s3")
    e(f"s_add_u32 s27, s27, {BF_OFF}")
    e("s_waitcnt lgkmcnt(0)")
    srd(A, 8, 24, 25, WS_USED)

    def loads(s):
        st = s % D
        it = []
        for x in range(4):
            off = f" offset:{x * 1024}" if x else ""
            it.append((f"k{s}", f"buffer_load_dwordx4 {ar(32 * st + 4 * x, 4)}, v5, s[8:11], s26 offen{off}"))
        for x in range(4):
            off = f" offset:{x * 1024}" if x else ""
            it.append((f"k{s}", f"buffer_load_dwordx4 {ar(32 * st + 16 + 4 * x, 4)}, v5, s[8:11], s27 offen{off}"))
        return it

    def adv():
        e("s_add_u32 s26, s26, 4096")
        e("s_add_u32 s27, s27, 4096")

    for s in range(D - 1):
        for tag, ins in loads(s):
            A.vmi(tag, ins)
        adv()
    e("v_lshrrev_b32 v6, 2, v2")
    e("v_lshlrev_b32 v6, 3, v6")
    e("v_and_b32 v7, 3, v2")
    e("v_add_u32 v6, v6, v7")
    e("s_lshl_b32 s28, s4, 6")
    e("v_add_u32 v7, s28, v6")
    e("v_lshlrev_b32 v7, 3, v7")
    e(f"v_add_u32 v7, {G_OFF}, v7")
    VG = 144
    for tb4 in range(4):
        ro = 32 * (tb4 >> 1) + 4 * (tb4 & 1)
        A.vmi("g", f"buffer_load_dwordx2 {vr(VG + 2 * tb4, 2)}, v7, s[8:11], 0 offen offset:{ro * 8}")
    VXE, VGE, VDS, VB2 = 152, 160, 168, 170
    e("s_lshl_b32 s3, s6, 4")
    e("s_add_u32 s29, s28, s3")
    e("v_add_u32 v8, s29, v3")
    e("v_lshlrev_b32 v9, 10, v8")
    e("s_lshl_b32 s30, s5, 7")
    e("v_lshl_add_u32 v10, v2, 3, s30")
    e("v_add_u32 v9, v9, v10")
    e("v_lshlrev_b32 v11, 3, v8")
    e(f"v_add_u32 v11, {G_OFF}, v11")
    srd(A, 32, 16, 17, 2048 * 1024)
    e("s_mov_b32 s31, 0")
    for it in range(4):
        if it:
            e("s_add_u32 s31, s31, 4096")
        A.vmi("ep", f"buffer_load_dwordx2 {vr(VXE + 2 * it, 2)}, v9, s[32:35], s31 offen")
    for it in range(4):
        A.vmi("ep", f"buffer_load_dwordx2 {vr(VGE + 2 * it, 2)}, v11, s[8:11], 0 offen offset:{it * 32}")
    A.vmi("ep", f"global_load_dwordx2 {vr(VDS, 2)}, v10, s[18:19]")
    A.vmi("ep", f"global_load_dwordx2 {vr(VB2, 2)}, v10, s[20:21]")
    srd(A, 12, 22, 23, 2048 * 2048)
    e("v_mul_u32_u24 v12, 272, v6")
    e("v_lshl_add_u32 v12, v3, 4, v12")
    e(f"s_mul_i32 s3, s6, {RSTR}")
    e("v_add_u32 v13, s3, v12")
    e(f"v_add_u32 v12, {4 * RSTR}, v12")

    def mfmas(s, zero):
        st = s % D
        it = []
        for db in range(4):
            for tb4 in range(4):
                d = vr(ACC(db, tb4), 4)
                cc = "0" if zero else d
                it.append(f"v_mfma_f32_16x16x32_bf16 {d}, {ar(32 * st + 16 + 4 * db, 4)}, "
                          f"{ar(32 * st + 4 * tb4, 4)}, {cc}")
        return it

    def scale_write(vaddr, gsel):
        for db in range(4):
            for tb4 in range(4):
                a = ACC(db, tb4)
                for r in range(4):
                    e(f"v_mul_f32 v{a + r}, v{gsel(tb4)}, v{a + r}")
        for db in range(4):
            for tb4 in range(4):
                ro = 32 * (tb4 >> 1) + 4 * (tb4 & 1)
                e(f"ds_write_b128 v{vaddr}, {vr(ACC(db, tb4), 4)} offset:{ro * 272 + db * 64}")

    def step(s, zero):
        ld = loads(s + D - 1) if s + D - 1 < 22 else []
        seq = mfmas(s, zero)
        li = 0
        for k, m in enumerate(seq):
            e(m)
            if (k & 1) and li < len(ld):
                A.vmi(*ld[li])
                li += 1
        if ld:
            adv()

    A.stamp(1)
    for s in range(22):
        A.vm_wait(f"k{s}")
        A.stamp(2 + s)
        if s == 10:
            LN, LJ = A.newlab("nrm"), A.newlab("join")
            e("s_cmp_eq_u32 s6, 1")
            e(f"s_cbranch_scc0 {LN}")
            saved = list(A.vm)
            A.vm_wait("g")
            A.nop(8)
            scale_write(12, lambda tb4: VG + 2 * tb4)
            e("s_waitcnt lgkmcnt(0)")
            A.vm = list(saved)
            save26 = None
            step(s, True)
            after = list(A.vm)
            e(f"s_branch {LJ}")
            A.lab(LN)
            A.vm = list(saved)
            step(s, False)
            assert A.vm == after
            A.lab(LJ)
        else:
            step(s, s == 0)
    A.stamp(24)
    A.vm_wait("g")
    e("s_cmp_eq_u32 s6, 0")
    e("s_cselect_b64 vcc, -1, 0")
    for tb4 in range(4):
        e(f"v_cndmask_b32 v{VG + 2 * tb4}, v{VG + 2 * tb4 + 1}, v{VG + 2 * tb4}, vcc")
    A.nop(8)
    scale_write(13, lambda tb4: VG + 2 * tb4)
    e("s_waitcnt lgkmcnt(0)")
    e("s_barrier")
    A.stamp(25)
    e("s_lshl_b32 s3, s6, 4")
    e("v_add_u32 v6, s3, v3")
    e("v_mul_u32_u24 v6, 272, v6")
    e("v_lshl_add_u32 v6, v2, 4, v6")
    e(f"v_add_u32 v7, {3 * RSTR}, v6")
    P0 = 16
    for it in range(4):
        for b in range(5):
            base, o = (6, b * RSTR) if b < 3 else (7, (b - 3) * RSTR)
            e(f"ds_read_b128 {vr(P0 + (it * 5 + b) * 4, 4)}, v{base} offset:{o + it * 4 * 272}")
    A.vm_wait("ep")
    DS, B2 = 96, 100
    for k, src in ((DS, VDS), (B2, VB2)):
        e(f"v_lshlrev_b32 v{k}, 16, v{src}")
        e(f"v_and_b32 v{k + 1}, 0xffff0000, v{src}")
        e(f"v_lshlrev_b32 v{k + 2}, 16, v{src + 1}")
        e(f"v_and_b32 v{k + 3}, 0xffff0000, v{src + 1}")
    e("v_lshlrev_b32 v9, 11, v8")
    e("s_lshl_b32 s3, s5, 8")
    e("v_lshl_add_u32 v10, v2, 4, s3")
    e("v_add_u32 v9, v9, v10")
    e("s_mov_b32 s31, 0")
    for it in range(4):
        X = 104 + 8 * it
        xs = VXE + 2 * it
        e(f"v_lshlrev_b32 v{X}, 16, v{xs}")
        e(f"v_and_b32 v{X + 1}, 0xffff0000, v{xs}")
        e(f"v_lshlrev_b32 v{X + 2}, 16, v{xs + 1}")
        e(f"v_and_b32 v{X + 3}, 0xffff0000, v{xs + 1}")
        for r in range(4):
            e(f"v_mul_f32 v{X + r}, v{X + r}, v{DS + r}")
        e(f"v_cvt_pk_bf16_f32 v{X + 4}, v{X}, v{X + 1}")
        e(f"v_cvt_pk_bf16_f32 v{X + 5}, v{X + 2}, v{X + 3}")
        e(f"v_lshlrev_b32 v{X}, 16, v{X + 4}")
        e(f"v_and_b32 v{X + 1}, 0xffff0000, v{X + 4}")
        e(f"v_lshlrev_b32 v{X + 2}, 16, v{X + 5}")
        e(f"v_and_b32 v{X + 3}, 0xffff0000, v{X + 5}")
        g, omg = VGE + 2 * it, VGE + 2 * it + 1
        for r in range(4):
            e(f"v_mul_f32 v{X + r}, v{g}, v{X + r}")
        for r in range(4):
            e(f"v_fmac_f32 v{X + r}, v{omg}, v{B2 + r}")
    e("s_waitcnt lgkmcnt(0)")
    for it in range(4):
        X = 104 + 8 * it
        for b in range(5):
            for r in range(4):
                e(f"v_add_f32 v{X + r}, v{X + r}, v{P0 + (it * 5 + b) * 4 + r}")
        if it:
            e("s_add_u32 s31, s31, 8192")
        A.vmi("ost", f"buffer_store_dwordx4 {vr(X, 4)}, v9, s[12:15], s31 offen")
    A.stamp(26)
    if A.stamps:
        A.vm_all()
    A.stamp(27)
    A.stamp_flush(1, 8)
    A.lab(END)
    e("s_endpgm")


def kd(name, vgpr, accum, sgpr=102):
    return f""".amdhsa_kernel {name}
  .amdhsa_next_free_vgpr {vgpr}
  .amdhsa_next_free_sgpr {sgpr}
  .amdhsa_accum_offset {accum}
  .amdhsa_group_segment_fixed_size 0
  .amdhsa_kernarg_size 144
  .amdhsa_user_sgpr_count 2
  .amdhsa_user_sgpr_kernarg_segment_ptr 1
  .amdhsa_system_sgpr_workgroup_id_x 1
  .amdhsa_float_denorm_mode_32 3
.end_amdhsa_kernel
"""


HEADER = open("cdna_kernels/" + KN[:-7] + ".s.ref").read().split("; Override launch")[0]


def generate(cfg):
    out = [HEADER.rstrip("\n")]
    out.append(f"; @launch kernel={KN} grid=(256,1,1) block=(256,1,1) lds=163840")
    out.append(f"; @launch kernel={K2N} grid=(256,1,1) block=(256,1,1) lds={5 * 17408}")
    out.append('.amdgcn_target "amdgcn-amd-amdhsa--gfx950"')
    out.append(".text")
    for name, fn in ((KN, gen_k1), (K2N, gen_k2)):
        A = Asm()
        A.stamps = bool(cfg.get("stamps"))
        fn(A, cfg)
        out.append(f".globl {name}")
        out.append(".p2align 8")
        out.append(f".type {name},@function")
        out.append(f"{name}:")
        out.extend(A.L)
    out.append('.section .rodata,"a"')
    out.append(".p2align 6")
    out.append(kd(KN, 512, 256))
    out.append(".p2align 6")
    out.append(kd(K2N, 512, 256))
    return "\n".join(out) + "\n"


if __name__ == "__main__":
    cfg = {"map1": "2x16", "k2_depth": 6}
    path = "cdna_kernels/" + KN[:-7] + ".s"
    for a in sys.argv[1:]:
        if a.startswith("-o"):
            path = a[2:]
        elif "=" in a:
            k, v = a.split("=")
            cfg[k] = int(v) if v.isdigit() else v
    open(path, "w").write(generate(cfg))
    print("wrote", path)
```

```python
import sys

KN = "gated_mix__ssm_conv_s5__dense_activation_squared_relu__prompt_kernel"
K2N = "gated_mix_stage2_kernel"

AF_RT = 88 * 4096
AF_OFF = 0
BF_OFF = 32 * AF_RT
E_OFF = BF_OFF + 8 * AF_RT
G_OFF = E_OFF + 16 * 8192
N_OFF = G_OFF + 2048 * 8
WS_USED = N_OFF + 16 * 256
STAMP_OFF = 0x1000000
OOB = 0x7FFFFF00

LOG2E = 0x3FB8AA3B
INV2PI = 0x3E22F983


class Asm:
    def __init__(self):
        self.L = []
        self.vm = []
        self.nlab = 0
        self.stamps = False
        self.rec = None
        self.q = {}

    def e(self, s):
        if self.rec is not None:
            self.rec.append([("e", s)])
        else:
            self.L.append("    " + s)

    def record(self, fn):
        assert self.rec is None
        self.rec = []
        fn()
        out, self.rec = self.rec, None
        return out

    def group(self, fn):
        outer = self.rec
        self.rec = []
        fn()
        merged = [op for it in self.rec for op in it]
        self.rec = outer
        self.rec.append(merged)

    def push(self, q, items):
        self.q.setdefault(q, []).extend(items)

    def pop(self, q, n=1):
        lst = self.q.get(q, [])
        while n > 0 and lst:
            it = lst.pop(0)
            for op in it:
                if op[0] == "e":
                    self.e(op[1])
                elif op[0] == "vmi":
                    self.vmi(op[1], op[2])
                elif op[0] == "vmw":
                    self.vm_wait(*op[1])
            n -= 1

    def drain(self, q):
        self.pop(q, 1 << 30)

    def qlen(self, q):
        return len(self.q.get(q, []))

    def lab(self, s):
        self.L.append(s + ":")

    def c(self, s):
        self.L.append("    ; " + s)

    def newlab(self, p):
        self.nlab += 1
        return f"L_{p}_{self.nlab}"

    def vmi(self, tag, s):
        if self.rec is not None:
            self.rec.append([("vmi", tag, s)])
            return
        self.e(s)
        self.vm.append(tag)
        assert len(self.vm) <= 63, "vmcnt overflow"

    def vm_wait(self, *tags):
        if self.rec is not None:
            self.rec.append([("vmw", tags)])
            return
        idx = [i for i, t in enumerate(self.vm) if t in tags]
        if not idx:
            return
        i = max(idx)
        n = len(self.vm) - 1 - i
        self.e(f"s_waitcnt vmcnt({n})")
        self.vm = self.vm[i + 1:]

    def vm_all(self):
        self.e("s_waitcnt vmcnt(0)")
        self.vm = []

    def stamp(self, idx, last=False):
        if not self.stamps:
            return
        self.e("s_memtime s[98:99]")
        self.e("s_waitcnt lgkmcnt(0)")
        self.e(f"v_writelane_b32 v255, s98, {idx}")
        if idx == 0 or last:
            self.e("s_memrealtime s[98:99]")
            self.e("s_waitcnt lgkmcnt(0)")
            self.e(f"v_writelane_b32 v255, s98, {63 if last else 62}")

    def stamp_flush(self, slot, srd_):
        if not self.stamps:
            return
        self.e("s_lshl_b32 s98, s2, 2")
        self.e("s_add_u32 s98, s98, s6")
        self.e("s_lshl_b32 s98, s98, 8")
        self.e(f"s_add_u32 s98, s98, {STAMP_OFF + slot * 0x40000}")
        self.e("v_lshlrev_b32 v254, 2, v1")
        self.e(f"s_mov_b32 s{srd_ + 2}, {STAMP_OFF + 0x100000:#x}")
        self.e(f"buffer_store_dword v255, v254, s[{srd_}:{srd_ + 3}], s98 offen")

    def nop(self, n):
        while n > 0:
            k = min(n, 16)
            self.e(f"s_nop {k - 1}")
            n -= k


def vr(a, n=1):
    return f"v{a}" if n == 1 else f"v[{a}:{a + n - 1}]"


def ar(a, n=1):
    return f"a{a}" if n == 1 else f"a[{a}:{a + n - 1}]"


def sr(a, n=1):
    return f"s{a}" if n == 1 else f"s[{a}:{a + n - 1}]"


def srd(A, s, lo, hi, nrec):
    A.e(f"s_mov_b32 s{s}, s{lo}")
    A.e(f"s_and_b32 s{s + 1}, s{hi}, 0xffff")
    A.e(f"s_mov_b32 s{s + 2}, {nrec:#x}")
    A.e(f"s_mov_b32 s{s + 3}, 0x20000")


def cfma(A, dr, di, ar_, ai, br, bi):
    A.e(f"v_fmac_f32 v{dr}, v{ar_}, v{br}")
    A.e(f"v_fmac_f32 v{di}, v{ar_}, v{bi}")
    A.e(f"v_fma_f32 v{dr}, -v{ai}, v{bi}, v{dr}")
    A.e(f"v_fmac_f32 v{di}, v{ai}, v{br}")


def cmul(A, dr, di, ar_, ai, br, bi):
    A.e(f"v_mul_f32 v{dr}, v{ar_}, v{br}")
    A.e(f"v_mul_f32 v{di}, v{ar_}, v{bi}")
    A.e(f"v_fma_f32 v{dr}, -v{ai}, v{bi}, v{dr}")
    A.e(f"v_fmac_f32 v{di}, v{ai}, v{br}")


def interleave(main, fill, first=0, per=1):
    out = []
    fi = 0
    for i, m in enumerate(main):
        out.append(m)
        if i >= first:
            for _ in range(per):
                if fi < len(fill):
                    out.append(fill[fi])
                    fi += 1
    out.extend(fill[fi:])
    return out


LDS_S = 0
LDS_X = [65536, 98304, 131072]
LDS_F = [98304, 131072, 0, 65536]
LDS_SCR = 32768
LDS_T = 36864
LDS_BIAS = 126976
LDS_PREP = [159744, 28672]


def SACC(tb, ct, r=0):
    return 8 + (tb * 4 + ct) * 4 + r


def FACC(nt, tb, r=0):
    return 40 + (nt * 2 + tb) * 4 + r


VX = 96
VS = 104
VRX = 108
VRX2 = 112
VRS = 116
VF = 120
VFR = 127
VBIAS = 128
CB = 156
VCIN = 200
VWIN = 204
VT = 208


def C(pb, k):
    return CB + 22 * pb + k


C_LR, C_LI, C_NLI = 0, 1, 2
C_L8, C_L16, C_L32, C_L8Q, C_MC, C_L32W, C_LQ, C_L4, C_MA, C_C2 = 3, 5, 7, 9, 11, 13, 15, 17, 19, 20


def XF(ks, tb):
    return (ks * 2 + tb) * 4


def flit(x):
    import struct
    return "%#x" % struct.unpack("<I", struct.pack("<f", x))[0]


def gen_k1(A, cfg):
    e = A.e
    STF = cfg.get("stf", " sc1")
    END = "L_k1_end"
    e("s_cmp_ge_u32 s2, 256")
    e(f"s_cbranch_scc1 {END}")
    e("s_load_dwordx16 s[16:31], s[0:1], 0")
    e("s_load_dwordx16 s[32:47], s[0:1], 64")
    e("s_load_dwordx4 s[48:51], s[0:1], 128")
    A.stamp(0)
    e("v_and_b32 v1, 63, v0")
    e("v_lshrrev_b32 v4, 6, v0")
    e("v_and_b32 v2, 15, v1")
    e("v_readfirstlane_b32 s6, v4")
    e("v_lshrrev_b32 v3, 4, v1")
    if cfg["map1"] == "2x16":
        e("s_and_b32 s3, s2, 7")
        e("s_lshl_b32 s3, s3, 1")
        e("s_lshr_b32 s7, s2, 7")
        e("s_add_u32 s4, s3, s7")
        e("s_lshr_b32 s5, s2, 3")
        e("s_and_b32 s5, s5, 15")
    else:
        e("s_lshr_b32 s3, s2, 1")
        e("s_and_b32 s3, s3, 3")
        e("s_lshl_b32 s3, s3, 2")
        e("s_lshr_b32 s7, s2, 6")
        e("s_add_u32 s4, s3, s7")
        e("s_lshr_b32 s5, s2, 3")
        e("s_and_b32 s5, s5, 7")
        e("s_and_b32 s7, s2, 1")
        e("s_lshl_b32 s7, s7, 3")
        e("s_add_u32 s5, s5, s7")
    e("v_xor_b32 v4, v2, v3")
    e("v_lshlrev_b32 v4, 4, v4")
    e("v_lshl_or_b32 v5, v3, 10, v4")
    for m in range(8):
        x = (m >> 1) << 6
        a = (m & 3) * 3072
        if x:
            e(f"v_xor_b32 v{VX + m}, {x}, v5")
            if a:
                e(f"v_add_u32 v{VX + m}, {a}, v{VX + m}")
        elif a:
            e(f"v_add_u32 v{VX + m}, {a}, v5")
        else:
            e(f"v_mov_b32 v{VX + m}, v5")
    for m in range(4):
        if m:
            e(f"v_xor_b32 v{VS + m}, {m << 6}, v5")
            e(f"v_add_u32 v{VS + m}, {m * 3072}, v{VS + m}")
        else:
            e(f"v_mov_b32 v{VS}, v5")
    e("s_lshl_b32 s64, s4, 7")
    e("s_lshl_b32 s3, s6, 5")
    e("s_add_u32 s64, s64, s3")
    e("s_lshl_b32 s64, s64, 10")
    e("s_lshl_b32 s65, s5, 5")
    e("s_and_b32 s3, s6, 1")
    e("s_lshl_b32 s3, s3, 4")
    e("s_add_u32 s65, s65, s3")
    e("s_lshl_b32 s65, s65, 10")
    e(f"s_mul_i32 s66, s6, {32 * 3584}")
    e("s_mul_i32 s3, s5, 224")
    e("s_add_u32 s66, s66, s3")
    e("s_lshl_b32 s67, s6, 13")
    e("s_lshl_b32 s68, s6, 12")
    e("s_mul_i32 s69, s6, 7168")
    e("s_lshl_b32 s3, s5, 5")
    e("v_and_b32 v6, 31, v1")
    e("v_add_u32 v6, s3, v6")
    e("v_lshlrev_b32 v6, 1, v6")
    e("s_lshl_b32 s7, s5, 8")
    e(f"s_add_u32 s7, s7, {N_OFF}")
    e("s_waitcnt lgkmcnt(0)")
    e("s_load_dword s97, s[50:51], s7")
    T = VT
    A.vmi("cst", f"global_load_ushort v{T}, v6, s[18:19]")
    A.vmi("cst", f"global_load_ushort v{T + 1}, v6, s[20:21]")
    A.vmi("cst", f"global_load_ushort v{T + 2}, v6, s[30:31]")
    srd(A, 8, 16, 17, 2048 * 1024)
    e("s_cmp_lt_u32 s6, 2")
    e("s_cselect_b32 s12, s22, s24")
    e("s_cselect_b32 s13, s23, s25")
    e("s_and_b32 s13, s13, 0xffff")
    e(f"s_mov_b32 s14, {512 * 1024:#x}")
    e("s_mov_b32 s15, 0x20000")

    def dma_group(tag, m0base, m0imm, sbase, simm, vaddrs, srd_):
        def fn():
            for k, va in enumerate(vaddrs):
                off = f" offset:{k * 1024}" if k else ""

                def one(k=k, va=va, off=off):
                    if k == 0:
                        e(f"s_add_u32 m0, s{m0base}, {m0imm}")
                        e(f"s_add_u32 s70, s{sbase}, {simm}")
                    A.vmi(tag, f"buffer_load_dwordx4 v{va}, s[{srd_}:{srd_ + 3}], s70 offen{off} lds")
                A.group(one)
        return A.record(fn)

    def dma_x(c, buf):
        it = []
        for h in range(2):
            it += dma_group(f"x{c}", 67, LDS_X[buf] + h * 4096, 64, h * 16384 + c * 256,
                            [VX + 4 * h + k for k in range(4)], 8)
        return it

    def dma_s(c):
        return dma_group(f"s{c}", 68, LDS_S + c * 16384, 65, c * 256, [VS + k for k in range(4)], 12)

    def dma_f(c):
        it = []
        for h in range(2):
            it += dma_group(f"f{c}", 69, LDS_F[c] + h * 4096, 66, c * 128 * 3584,
                            [VF + 4 * h + k for k in range(4 if h == 0 else 3)], 52)
        return it

    def fill_patterns():
        e("v_xor_b32 v4, v2, v3")
        e("v_lshrrev_b32 v5, 2, v2")
        e("v_lshlrev_b32 v5, 3, v5")
        e("v_and_b32 v6, 3, v2")
        e("v_add_u32 v5, v5, v6")
        e("v_lshlrev_b32 v5, 8, v5")
        A.group(lambda: (e(f"s_add_u32 s3, s67, {LDS_X[0]}"), e("v_add_u32 v5, s3, v5")))
        e("v_lshlrev_b32 v6, 8, v2")
        for k in range(4):
            e(f"v_xor_b32 v7, {4 * k}, v4")
            e("v_lshlrev_b32 v7, 4, v7")
            e(f"v_add_u32 v{VRX + k}, v5, v7")
            e(f"v_add_u32 v{VRS + k}, v6, v7")
            e(f"v_add_u32 v{VRX2 + k}, 0x10000, v{VRX + k}")

    def fill_srds():
        srd(A, 52, 36, 37, 512 * 3584)
        srd(A, 56, 50, 51, WS_USED)

        def esrd():
            e("s_lshl_b32 s3, s5, 13")
            e(f"s_add_u32 s3, s3, {E_OFF}")
            e("s_add_u32 s76, s50, s3")
            e("s_addc_u32 s77, s51, 0")
            e("s_and_b32 s77, s77, 0xffff")
            e("s_mov_b32 s78, 8192")
            e("s_mov_b32 s79, 0x20000")
        A.group(esrd)
        srd(A, 60, 38, 39, 3584)
        e(f"s_mov_b32 s80, {LOG2E:#x}")
        e(f"s_mov_b32 s81, {INV2PI:#x}")

    Z = VT + 4
    TP = VT + 12

    def spread(d0, d1):
        e(f"v_mov_b32 v{d1}, v{d0}")
        e(f"v_mov_b32 v{d1 + 1}, v{d0 + 1}")
        A.nop(1)
        e(f"v_permlane16_swap_b32 v{d0}, v{d1}")
        e(f"v_permlane16_swap_b32 v{d0 + 1}, v{d1 + 1}")

    def cpow1(k, zr, a1, dr, di, t, kreg=None):
        if kreg is not None:
            e(f"v_mul_f32 v{t}, v{kreg}, v{zr}")
            e(f"v_mul_f32 v{t + 1}, v{kreg}, v{a1}")
        elif k == 1.0:
            e(f"v_mov_b32 v{t}, v{zr}")
            e(f"v_mov_b32 v{t + 1}, v{a1}")
        else:
            e(f"v_mul_f32 v{t}, {flit(k)}, v{zr}")
            e(f"v_mul_f32 v{t + 1}, {flit(k)}, v{a1}")
        e(f"v_exp_f32 v{t}, v{t}")
        e(f"v_fract_f32 v{t + 1}, v{t + 1}")
        e(f"v_cos_f32 v{t + 2}, v{t + 1}")
        e(f"v_sin_f32 v{t + 3}, v{t + 1}")
        e(f"v_mul_f32 v{dr}, v{t}, v{t + 2}")
        e(f"v_mul_f32 v{di}, v{t}, v{t + 3}")

    def fill_consts():
        A.vm_wait("cst")
        e(f"v_lshlrev_b32 v{Z}, 16, v{T}")
        e(f"v_lshlrev_b32 v{Z + 1}, 16, v{T + 1}")
        e(f"v_lshlrev_b32 v{T + 2}, 16, v{T + 2}")
        e(f"v_mul_f32 v{T + 2}, s80, v{T + 2}")
        e(f"v_exp_f32 v{T + 2}, v{T + 2}")
        A.nop(1)
        e(f"v_cvt_pk_bf16_f32 v{T + 2}, v{T + 2}, v{T + 2}")
        e(f"v_lshlrev_b32 v{T + 2}, 16, v{T + 2}")
        e(f"v_mul_f32 v{Z + 2}, v{T + 2}, v{Z}")
        e(f"v_mul_f32 v{Z + 3}, v{T + 2}, v{Z + 1}")
        e(f"v_mul_f32 v{Z + 2}, s80, v{Z + 2}")
        e(f"v_mul_f32 v{Z + 3}, s81, v{Z + 3}")
        cpow1(1.0, Z + 2, Z + 3, C(0, C_LR), C(0, C_LI), TP)
        t = TP
        e(f"v_subrev_f32 v{t}, 1.0, v{C(0, C_LR)}")
        e(f"v_mul_f32 v{t + 1}, v{Z}, v{Z}")
        e(f"v_fmac_f32 v{t + 1}, v{Z + 1}, v{Z + 1}")
        e(f"v_rcp_f32 v{t + 1}, v{t + 1}")
        e(f"v_mul_f32 v{t + 2}, v{t}, v{Z}")
        e(f"v_fmac_f32 v{t + 2}, v{C(0, C_LI)}, v{Z + 1}")
        e(f"v_mul_f32 v{t + 3}, v{C(0, C_LI)}, v{Z}")
        e(f"v_fma_f32 v{t + 3}, -v{t}, v{Z + 1}, v{t + 3}")
        e(f"v_add_f32 v{t + 1}, v{t + 1}, v{t + 1}")
        e(f"v_mul_f32 v{C(0, C_C2)}, v{t + 2}, v{t + 1}")
        e(f"v_mul_f32 v{C(0, C_C2 + 1)}, v{t + 3}, v{t + 1}")
        spread(C(0, C_C2), C(1, C_C2))
        spread(C(0, C_LR), C(1, C_LR))
        for pb in range(2):
            e(f"v_sub_f32 v{C(pb, C_NLI)}, 0, v{C(pb, C_LI)}")
        for k, dst in ((8.0, C_L8), (16.0, C_L16), (32.0, C_L32), (512.0, C_L4)):
            cpow1(k, Z + 2, Z + 3, C(0, dst), C(0, dst + 1), TP)
            spread(C(0, dst), C(1, dst))
        KR = T
        A.group(lambda: (e("s_lshl_b32 s3, s6, 5"), e(f"v_cvt_f32_u32 v{KR}, s3")))
        cpow1(None, Z + 2, Z + 3, C(0, C_L32W), C(0, C_L32W + 1), TP, kreg=KR)
        spread(C(0, C_L32W), C(1, C_L32W))
        spread(Z + 2, Z + 6)
        e(f"v_cvt_f32_u32 v{KR}, v3")
        e(f"v_mul_f32 v{KR + 1}, 0x41000000, v{KR}")
        e(f"v_mul_f32 v{KR + 2}, 0x43000000, v{KR}")
        for kr, dst in ((KR + 1, C_L8Q), (KR + 2, C_LQ)):
            for pb in range(2):
                cpow1(None, Z + 2 + 4 * pb, Z + 3 + 4 * pb, C(pb, dst), C(pb, dst + 1), TP + 4 * pb, kreg=kr)
        e("v_cmp_eq_u32 vcc, 3, v3")
        e("v_cmp_eq_u32 s[82:83], 2, v3")
        e("v_and_b32 v4, 1, v3")
        e(f"v_cvt_f32_u32 v{C(0, C_MA)}, v4")
        e("v_cndmask_b32 v5, 0, 1.0, s[82:83]")
        for pb in range(2):
            e(f"v_cndmask_b32 v{C(pb, C_MC)}, v5, v{C(pb, C_L8)}, vcc")
            e(f"v_cndmask_b32 v{C(pb, C_MC + 1)}, 0, v{C(pb, C_L8 + 1)}, vcc")

    def fill_vf():
        A.group(lambda: (e("s_and_b32 s3, s5, 1"), e("s_lshl_b32 s7, s3, 1")))
        for m in range(7):
            d = VF + m
            e(f"v_add_u32 v4, {64 * m}, v1")
            e("v_mul_u32_u24 v5, 4682, v4")
            e("v_lshrrev_b32 v5, 16, v5")
            e("v_mul_u32_u24 v6, 14, v5")
            e("v_sub_u32 v4, v4, v6")
            e("v_add_u32 v4, s7, v4")
            e("v_subrev_u32 v6, 14, v4")
            e("v_min_u32 v4, v4, v6")
            e("v_and_b32 v6, 12, v5")
            e("v_lshlrev_b32 v6, 1, v6")
            e("v_and_b32 v7, 3, v5")
            e("v_add_u32 v6, v6, v7")
            e("v_lshrrev_b32 v7, 4, v5")
            e("v_lshl_add_u32 v6, v7, 2, v6")
            e("v_mul_u32_u24 v6, 3584, v6")
            e("v_lshl_add_u32 v6, v4, 4, v6")
            if m & 3:
                e(f"v_subrev_u32 v{d}, {(m & 3) * 1024}, v6")
            else:
                e(f"v_mov_b32 v{d}, v6")
        e("v_lshrrev_b32 v4, 2, v2")
        e("v_lshl_add_u32 v4, v3, 2, v4")
        e("v_mul_u32_u24 v4, 224, v4")
        e("v_and_b32 v5, 3, v2")
        e("v_lshl_add_u32 v4, v5, 3, v4")
        e(f"v_add_u32 v{VFR}, {LDS_F[0]}, v4")
        e(f"v_lshlrev_b32 v{VT + 30}, 2, v1")

    def dma_bias():
        def one():
            e("s_lshl_b32 s70, s6, 8")
            e(f"s_add_u32 m0, s70, {LDS_BIAS}")
            e("s_mul_i32 s70, s5, 224")
            A.vmi("bias", f"buffer_load_dword v{VT + 30}, s[60:63], s70 offen lds")
        return A.record(lambda: A.group(one))

    BT = VT + 8

    def fill_bias():
        def addr():
            e("s_lshl_b32 s3, s6, 8")
            e(f"s_add_u32 s3, s3, {LDS_BIAS}")
            e("v_lshl_add_u32 v4, v3, 3, s3")
            e("s_and_b32 s3, s5, 1")
            e("s_lshl_b32 s7, s3, 5")
            e("v_add_u32 v5, s7, v4")
            e(f"s_mul_i32 s7, s3, {6 * 32}")
            e("s_sub_u32 s7, 192, s7")
            e("v_add_u32 v6, s7, v4")
        A.group(addr)
        A.vm_wait("bias")
        for nt in range(6):
            e(f"ds_read_b64 {vr(BT + 2 * nt, 2)}, v5 offset:{32 * nt}")
        e(f"ds_read_b64 {vr(BT + 12, 2)}, v6")
        e("s_waitcnt lgkmcnt(0)")
        for nt in range(7):
            b = VBIAS + 4 * nt
            e(f"v_lshlrev_b32 v{b}, 16, v{BT + 2 * nt}")
            e(f"v_and_b32 v{b + 1}, 0xffff0000, v{BT + 2 * nt}")
            e(f"v_lshlrev_b32 v{b + 2}, 16, v{BT + 2 * nt + 1}")
            e(f"v_and_b32 v{b + 3}, 0xffff0000, v{BT + 2 * nt + 1}")

    A.push("v0", A.record(fill_patterns))
    A.push("v0", A.record(fill_srds))
    A.push("v", A.record(fill_consts))
    n_const = A.qlen("v")
    A.push("v", A.record(fill_vf))
    A.push("d", dma_x(0, 0) + dma_s(0) + dma_x(1, 1) + dma_s(1))
    per = cfg.get("pre_fill", 9)
    while A.qlen("d"):
        A.pop("d")
        if A.qlen("v0"):
            A.pop("v0", per)
        else:
            A.pop("v", per)
    A.drain("v0")
    A.stamp(1)

    def ssm_reads(s):
        c, ksl = s >> 2, s & 3
        buf = [0, 1, 2, 0][c]
        it = []
        for tb in range(2):
            if buf == 2:
                it.append(f"ds_read_b128 {ar(XF(s, tb), 4)}, v{VRX2 + ksl} offset:{tb * 1024}")
            else:
                it.append(f"ds_read_b128 {ar(XF(s, tb), 4)}, v{VRX + ksl} offset:{buf * 32768 + tb * 1024}")
        for ct in range(4):
            it.append(f"ds_read_b128 {ar(128 + (s & 1) * 16 + ct * 4, 4)}, v{VRS + ksl} "
                      f"offset:{LDS_S + c * 16384 + ct * 4096}")
        return it

    def ssm_mfma(s):
        it = []
        for ct in range(4):
            for tb in range(2):
                d = vr(SACC(tb, ct), 4)
                cc = "0" if s == 0 else d
                it.append(f"v_mfma_f32_16x16x32_bf16 {d}, {ar(XF(s, tb), 4)}, "
                          f"{ar(128 + (s & 1) * 16 + ct * 4, 4)}, {cc}")
        return it

    e("s_waitcnt lgkmcnt(0)")
    e("s_add_u32 s97, s97, 0x9e3779b9")
    A.vm_wait("x0", "s0")
    e("s_barrier")
    A.stamp(2)
    for r in ssm_reads(0):
        e(r)
    vper = cfg.get("ssm_fill", 5)
    for s in range(16):
        c = s >> 2
        if s == 0:
            A.push("d", dma_x(2, 2) + dma_s(2))
        if s == 4:
            A.push("d", dma_x(3, 0) + dma_s(3))
        if s == 8:
            A.drain("v")
            A.push("d", dma_bias() + dma_f(0))
        if s == 12:
            A.push("d", dma_f(1))
            A.push("v", A.record(fill_bias))
        e("s_waitcnt lgkmcnt(0)")
        if s in (3, 7, 11):
            A.drain("d")
            A.vm_wait(f"x{c + 1}", f"s{c + 1}")
            e("s_barrier")
            A.stamp(3 + c)
        rd = ssm_reads(s + 1) if s < 15 else []
        mf = ssm_mfma(s)
        nd = 3 if c < 2 else 2
        for k, m in enumerate(mf):
            e(m)
            if k < 3:
                for r in rd[2 * k:2 * k + 2]:
                    e(r)
            else:
                if k - 3 < nd:
                    A.pop("d")
                A.pop("v", vper)
    A.drain("d")
    A.drain("v")
    A.stamp(7)

    A.push("d", dma_f(2))
    A.nop(4)
    EA = 96

    def U(pb, tau, im):
        return SACC(tau >> 2, pb + 2 * im, tau & 3)

    cur = [None, None]
    for tau in range(1, 8):
        for pb in range(2):
            dst = EA + 4 * pb + 2 * (tau & 1)
            lr, li, nli = C(pb, C_LR), C(pb, C_LI), C(pb, C_NLI)
            pr, pi = (U(pb, 0, 0), U(pb, 0, 1)) if tau == 1 else cur[pb]
            e(f"v_fma_f32 v{dst}, v{lr}, v{pr}, v{U(pb, tau, 0)}")
            e(f"v_fma_f32 v{dst + 1}, v{lr}, v{pi}, v{U(pb, tau, 1)}")
            e(f"v_fmac_f32 v{dst}, v{nli}, v{pi}")
            e(f"v_fmac_f32 v{dst + 1}, v{li}, v{pr}")
            cur[pb] = (dst, dst + 1)
        A.pop("d")
    TB, AA, CC = 104, 108, 112
    for pb in range(2):
        for k in range(2):
            e(f"v_mov_b32 v{TB + 2 * pb + k}, v{cur[pb][k]}")
            e(f"v_mov_b32 v{AA + 2 * pb + k}, v{cur[pb][k]}")
    A.nop(2)
    for x in range(4):
        e(f"v_permlane16_swap_b32 v{AA + x}, v{TB + x}")
    A.nop(1)
    for pb in range(2):
        cfma(A, TB + 2 * pb, TB + 2 * pb + 1, C(pb, C_L8), C(pb, C_L8 + 1), AA + 2 * pb, AA + 2 * pb + 1)
    for x in range(4):
        e(f"v_mov_b32 v{CC + x}, v{TB + x}")
    A.nop(2)
    for x in range(4):
        e(f"v_permlane32_swap_b32 v{CC + x}, v{TB + x}")
    A.nop(1)
    for pb in range(2):
        cfma(A, TB + 2 * pb, TB + 2 * pb + 1, C(pb, C_L16), C(pb, C_L16 + 1), CC + 2 * pb, CC + 2 * pb + 1)
    e("v_lshlrev_b32 v4, 4, v2")
    e("s_lshl_b32 s3, s6, 8")
    e(f"s_add_u32 s3, s3, {LDS_SCR}")
    e("v_add_u32 v5, s3, v4")
    e(f"v_add_u32 v4, {LDS_SCR}, v4")
    e(f"ds_write_b128 v5, {vr(TB, 4)}")
    for pb in range(2):
        ci = VCIN + 2 * pb
        e(f"v_mul_f32 v{ci}, v{C(0, C_MA)}, v{AA + 2 * pb}")
        e(f"v_mul_f32 v{ci + 1}, v{C(0, C_MA)}, v{AA + 2 * pb + 1}")
        cfma(A, ci, ci + 1, C(pb, C_MC), C(pb, C_MC + 1), CC + 2 * pb, CC + 2 * pb + 1)
    A.drain("d")
    e("s_waitcnt lgkmcnt(0)")
    A.vm_wait("f0")
    e("s_barrier")
    A.stamp(8)
    W = 96
    for w_ in range(4):
        e(f"ds_read_b128 {vr(W + 4 * w_, 4)}, v4 offset:{w_ * 256}")

    def ffn_reads(s):
        ksl = s & 3
        it = []
        for nt in range(7):
            for h in range(2):
                it.append(f"ds_read_b64_tr_b16 {ar(128 + (s & 1) * 28 + nt * 4 + 2 * h, 2)}, v{VFR} "
                          f"offset:{ksl * 7168 + h * 3584 + nt * 32}")
        return it

    for r in ffn_reads(0):
        e(r)
    e("s_lshl_b32 s3, s4, 9")
    e("v_lshlrev_b32 v4, 5, v2")
    e("v_lshl_add_u32 v4, v3, 4, v4")
    e("v_add_u32 v4, s3, v4")
    e("s_cmp_eq_u32 s6, 3")
    e("s_cselect_b32 s3, 32, 0")
    e(f"v_mov_b32 v5, {OOB:#x}")
    e("v_cmp_gt_u32 vcc, s3, v1")
    e("v_cmp_eq_u32 s[82:83], 1, v3")
    e(f"v_mov_b32 v{114}, s97")
    e(f"v_mov_b32 v{115}, s97")
    e("v_cndmask_b32 v4, v5, v4, vcc")
    e("s_waitcnt lgkmcnt(14)")
    for w_ in range(1, 4):
        for pb in range(2):
            d = W + 4 * w_ + 2 * pb
            s_ = W + 4 * (w_ - 1) + 2 * pb
            cfma(A, d, d + 1, C(pb, C_L32), C(pb, C_L32 + 1), s_, s_ + 1)
    e(f"v_cndmask_b32 v112, v{W + 12}, v{W + 14}, s[82:83]")
    e(f"v_cndmask_b32 v113, v{W + 13}, v{W + 15}, s[82:83]")
    A.vmi("epub", f"buffer_store_dwordx4 {vr(112, 4)}, v4, s[76:79], 0 offen sc1")
    LW = A.newlab("win")
    for x in range(4):
        e(f"v_mov_b32 v{VWIN + x}, 0")
    for w_ in range(1, 4):
        e(f"s_cmp_lt_u32 s6, {w_}")
        e(f"s_cbranch_scc1 {LW}")
        for x in range(4):
            e(f"v_mov_b32 v{VWIN + x}, v{W + 4 * (w_ - 1) + x}")
    A.lab(LW)
    A.stamp(9)

    GX = 208
    PC = 224
    PO = 228
    PWF = 232
    GS = 240
    VL16 = 246
    VPR = 247

    def gate_loads():
        def a():
            e("s_lshl_b32 s3, s4, 7")
            e("s_lshl_b32 s7, s5, 3")
            e("s_add_u32 s3, s3, s7")
            e("s_lshl_b32 s7, s6, 1")
            e("s_add_u32 s84, s3, s7")
        A.group(a)
        e("v_lshrrev_b32 v4, 5, v1")
        e("v_add_u32 v4, s84, v4")
        e("v_lshlrev_b32 v4, 10, v4")
        e("v_and_b32 v5, 31, v1")
        e("v_lshlrev_b32 v5, 5, v5")
        e("v_add_u32 v4, v4, v5")
        A.vmi("gate", f"global_load_dwordx4 {vr(GX, 4)}, v4, s[16:17]")
        A.vmi("gate", f"global_load_dwordx4 {vr(GX + 4, 4)}, v4, s[16:17] offset:16")
        A.vmi("gate", f"global_load_dwordx4 {vr(GX + 8, 4)}, v5, s[44:45]")
        A.vmi("gate", f"global_load_dwordx4 {vr(GX + 12, 4)}, v5, s[44:45] offset:16")

    def prepc_loads():
        def a():
            e("s_lshl_b32 s85, s2, 2")
            e("s_add_u32 s85, s85, s6")
            e("s_lshr_b32 s3, s85, 7")
            e("s_and_b32 s7, s85, 3")
            e("s_lshl_b32 s3, s3, 6")
            e("s_lshl_b32 s7, s7, 4")
            e("s_add_u32 s3, s3, s7")
            e("v_add_u32 v4, s3, v2")
        A.group(a)
        e("v_lshlrev_b32 v4, 10, v4")

        def b():
            e("s_lshr_b32 s3, s85, 2")
            e("s_and_b32 s3, s3, 31")
            e("s_lshl_b32 s3, s3, 5")
            e("v_lshl_add_u32 v5, v3, 3, s3")
        A.group(b)
        e("v_add_u32 v4, v4, v5")
        A.vmi("prepc", f"global_load_dwordx2 {vr(PC, 2)}, v4, s[26:27]")
        A.vmi("prepc", f"global_load_dwordx2 {vr(PC + 2, 2)}, v4, s[28:29]")

    def prepw_dma():
        def setup():
            e("s_lshl_b32 s86, s2, 2")
            e("s_add_u32 s86, s86, s6")
            e("s_sub_u32 s3, s86, 896")
            e("s_cmp_lt_u32 s86, 896")
            e("s_cselect_b32 s86, s86, s3")
            e("s_lshr_b32 s3, s86, 4")
            e("s_lshl_b32 s3, s3, 15")
            e("s_and_b32 s7, s86, 15")
            e("s_lshl_b32 s7, s7, 6")
            e("s_add_u32 s87, s3, s7")
            e("s_and_b32 s3, s6, 1")
            e("s_lshl_b32 s3, s3, 11")
            e(f"s_mov_b32 s7, {LDS_PREP[1]}")
            e("s_cmp_lt_u32 s6, 2")
            e(f"s_cselect_b32 s7, {LDS_PREP[0]}, s7")
            e("s_add_u32 s88, s3, s7")
            srd(A, 60, 40, 41, 1792 * 1024)
            e("v_lshrrev_b32 v6, 2, v1")
            e("v_lshlrev_b32 v6, 10, v6")
            e("v_and_b32 v7, 3, v1")
            e("v_lshl_add_u32 v6, v7, 4, v6")

        def d0():
            setup()
            e("s_mov_b32 m0, s88")
            e("s_mov_b32 s70, s87")
            A.vmi("prepw", "buffer_load_dwordx4 v6, s[60:63], s70 offen lds")

        def d1():
            e("s_add_u32 m0, s88, 1024")
            e("s_add_u32 s70, s87, 16384")
            A.vmi("prepw", "buffer_load_dwordx4 v6, s[60:63], s70 offen lds")
        return A.record(lambda: (A.group(d0), A.group(d1)))

    def prep_finish():
        e(f"v_lshlrev_b32 v{VL16}, 4, v1")
        e("v_lshrrev_b32 v4, 2, v2")
        e("v_lshl_add_u32 v4, v3, 2, v4")
        e("v_lshlrev_b32 v4, 6, v4")
        e("v_and_b32 v5, 3, v2")
        e("v_lshl_add_u32 v4, v5, 3, v4")
        e(f"v_add_u32 v{VPR}, s88, v4")
        A.vm_wait("prepw", "prepc")
        for dbl in range(2):
            for hh in range(2):
                e(f"ds_read_b64_tr_b16 {vr(PWF + 4 * dbl + 2 * hh, 2)}, v{VPR} offset:{hh * 1024 + dbl * 32}")
        A.group(lambda: (e("s_mov_b32 s3, 0x05040100"), e("s_mov_b32 s7, 0x07060302")))
        for d in range(2):
            e(f"v_perm_b32 v{PO + 2 * d}, v{PC + 2 + d}, v{PC + d}, s3")
            e(f"v_perm_b32 v{PO + 2 * d + 1}, v{PC + 2 + d}, v{PC + d}, s7")

        def ca():
            e("s_lshr_b32 s3, s85, 7")
            e(f"s_mul_i32 s3, s3, {AF_RT}")
            e("s_and_b32 s7, s85, 127")
            e("s_lshl_b32 s7, s7, 10")
            e("s_add_u32 s3, s3, s7")
            e(f"s_add_u32 s3, s3, {BF_OFF}")
            A.vmi("bst", f"buffer_store_dwordx4 {vr(PO, 4)}, v{VL16}, s[56:59], s3 offen{STF}")
        A.group(ca)

        def wa():
            e("s_lshr_b32 s3, s86, 4")
            e("s_add_u32 s3, s3, 32")
            e("s_lshl_b32 s3, s3, 12")
            e("s_and_b32 s7, s86, 15")
            e("s_lshr_b32 s89, s7, 1")
            e(f"s_mul_i32 s89, s89, {AF_RT}")
            e("s_add_u32 s3, s3, s89")
            e("s_and_b32 s7, s7, 1")
            e("s_lshl_b32 s7, s7, 11")
            e("s_add_u32 s3, s3, s7")
            e(f"s_add_u32 s89, s3, {BF_OFF}")
        A.group(wa)
        e("s_waitcnt lgkmcnt(0)")
        A.vmi("bst", f"buffer_store_dwordx4 {vr(PWF, 4)}, v{VL16}, s[56:59], s89 offen{STF}")
        A.vmi("bst", f"buffer_store_dwordx4 {vr(PWF + 4, 4)}, v{VL16}, s[56:59], s89 offen offset:1024{STF}")

    def gate_finish():
        A.vm_wait("gate")
        e(f"v_dot2_f32_bf16 v{GS}, v{GX}, v{GX + 8}, 0")
        e(f"v_dot2_f32_bf16 v{GS + 1}, v{GX + 1}, v{GX + 9}, 0")
        for d in range(2, 8):
            e(f"v_dot2_f32_bf16 v{GS + (d & 1)}, v{GX + d}, v{GX + 8 + d}, v{GS + (d & 1)}")
        A.nop(3)
        e(f"v_add_f32 v{GS}, v{GS}, v{GS + 1}")
        for ctl in ("quad_perm:[1,0,3,2]", "quad_perm:[2,3,0,1]", "row_half_mirror", "row_mirror"):
            A.nop(2)
            e(f"v_add_f32_dpp v{GS}, v{GS}, v{GS} {ctl} row_mask:0xf bank_mask:0xf")
        e(f"v_mov_b32 v{GS + 1}, v{GS}")
        A.nop(2)
        e(f"v_permlane16_swap_b32 v{GS + 1}, v{GS}")
        A.nop(1)
        e(f"v_add_f32 v{GS}, v{GS}, v{GS + 1}")
        e(f"v_cvt_pk_bf16_f32 v{GS}, v{GS}, v{GS}")
        e(f"v_lshlrev_b32 v{GS}, 16, v{GS}")
        e(f"v_mul_f32 v{GS}, s80, v{GS}")
        e(f"v_sub_f32 v{GS}, 0, v{GS}")
        e(f"v_exp_f32 v{GS}, v{GS}")
        A.nop(1)
        e(f"v_add_f32 v{GS}, 1.0, v{GS}")
        e(f"v_rcp_f32 v{GS}, v{GS}")
        A.nop(1)
        e(f"v_cvt_pk_bf16_f32 v{GS}, v{GS}, v{GS}")
        e(f"v_lshlrev_b32 v{GS + 2}, 16, v{GS}")
        e(f"v_sub_f32 v{GS + 3}, 1.0, v{GS + 2}")
        e(f"v_cvt_pk_bf16_f32 v{GS + 3}, v{GS + 3}, v{GS + 3}")
        e(f"v_lshlrev_b32 v{GS + 3}, 16, v{GS + 3}")
        e("v_lshrrev_b32 v4, 5, v1")
        e("v_add_u32 v4, s84, v4")
        e("v_lshlrev_b32 v4, 3, v4")
        e(f"v_add_u32 v4, {G_OFF}, v4")
        e("v_and_b32 v5, 31, v1")
        e("v_cmp_eq_u32 vcc, 0, v5")
        e(f"v_mov_b32 v5, {OOB:#x}")
        A.nop(1)
        e("v_cndmask_b32 v4, v5, v4, vcc")
        A.vmi("gst", f"buffer_store_dwordx2 {vr(GS + 2, 2)}, v4, s[56:59], 0 offen{STF}")

    EM = 96
    EMR = [208, 216, 224, 232]

    def e_loads():
        A.group(lambda: (e("s_sub_u32 s3, s4, 1"), e("v_sub_u32 v4, s3, v3")))
        e("v_lshlrev_b32 v4, 9, v4")
        e("v_lshl_add_u32 v4, v2, 5, v4")
        for m in range(4):
            if m:
                e("v_subrev_u32 v4, 2048, v4")
            e("v_and_b32 v7, 0x7fffffff, v4")
            A.vmi("eld", f"buffer_load_dwordx4 {vr(EMR[m], 4)}, v7, s[76:79], 0 offen sc1")
            A.vmi("eld", f"buffer_load_dwordx4 {vr(EMR[m] + 4, 4)}, v7, s[76:79], 0 offen offset:16 sc1")

    A.push("d", dma_f(3))
    A.push("d", prepw_dma())
    A.push("v", A.record(gate_loads))
    A.push("v", A.record(prepc_loads))
    A.push("v2", A.record(prep_finish))
    A.push("v2", A.record(gate_finish))
    A.push("v3", A.record(e_loads))

    def ffn_mfma(s):
        it = []
        for nt in range(7):
            for tb in range(2):
                d = vr(FACC(nt, tb), 4)
                cc = vr(VBIAS + 4 * nt, 4) if s == 0 else d
                it.append(f"v_mfma_f32_16x16x32_bf16 {d}, {ar(128 + (s & 1) * 28 + nt * 4, 4)}, "
                          f"{ar(XF(s, tb), 4)}, {cc}")
        return it

    def set_vfr(c_from, c_to):
        delta = LDS_F[c_to] - LDS_F[c_from]
        if delta >= 0:
            e(f"v_add_u32 v{VFR}, {delta}, v{VFR}")
        else:
            e(f"v_subrev_u32 v{VFR}, {-delta}, v{VFR}")

    e_step = cfg.get("e_step", 11)
    for s in range(16):
        e("s_waitcnt lgkmcnt(0)")
        if s in (3, 7, 11):
            c = (s + 1) >> 2
            A.vm_wait(f"f{c}")
            e("s_barrier")
            set_vfr(c - 1, c)
            A.stamp(10 + c - 1)
        if s == 4:
            A.drain("d")
            A.drain("v")
        if s == e_step:
            A.drain("v2")
        rd = ffn_reads(s + 1) if s < 15 else []
        mf = ffn_mfma(s)
        for k, m in enumerate(mf):
            e(m)
            if k < 7 and rd:
                e(rd[2 * k])
                e(rd[2 * k + 1])
            if k >= 7 or not rd:
                if s < 4:
                    if A.qlen("d") and (k & 1):
                        A.pop("d")
                    else:
                        A.pop("v", 2)
                elif s < e_step:
                    A.pop("v2", 2)
                else:
                    A.pop("v3", 2)
    A.drain("v2")
    A.drain("v3")
    A.stamp(13)

    e("s_lshl_b32 s3, s4, 1")
    e("s_lshr_b32 s7, s6, 1")
    e("s_add_u32 s3, s3, s7")
    e(f"s_mul_i32 s91, s3, {AF_RT}")
    e("s_and_b32 s7, s6, 1")
    e("s_lshl_b32 s7, s7, 11")
    e("s_add_u32 s91, s91, s7")
    e("s_lshr_b32 s3, s5, 1")
    e("s_mul_i32 s3, s3, 7")
    e("s_add_u32 s3, s3, 32")
    e("s_and_b32 s7, s5, 1")
    e("s_lshl_b32 s92, s7, 2")
    e("s_add_u32 s92, s92, s3")
    e("s_lshl_b32 s92, s92, 12")
    e("s_add_u32 s92, s92, s91")
    e("s_add_u32 s93, s3, 3")
    e("s_lshl_b32 s93, s93, 12")
    e("s_add_u32 s93, s93, s91")
    e("s_lshl_b32 s7, s7, 3")
    e("v_lshlrev_b32 v6, 4, v1")
    e("v_add_u32 v7, s7, v6")
    PK = 112
    flip = 0
    for sp in range(4):
        for tb in range(2):
            tiles = [2 * sp, 2 * sp + 1] if sp < 3 else [6]
            pk = PK + 4 * flip
            flip ^= 1
            for ti, nt in enumerate(tiles):
                a = FACC(nt, tb)
                for r in range(4):
                    e(f"v_max_f32 v{a + r}, 0, v{a + r}")
                for h in range(2):
                    e(f"v_pk_mul_f32 {vr(a + 2 * h, 2)}, {vr(a + 2 * h, 2)}, {vr(a + 2 * h, 2)}")
                e(f"v_cvt_pk_bf16_f32 v{pk + 2 * ti}, v{a}, v{a + 1}")
                e(f"v_cvt_pk_bf16_f32 v{pk + 2 * ti + 1}, v{a + 2}, v{a + 3}")
            off = f" offset:{tb * 1024}" if tb else ""
            if sp < 3:
                if sp and tb == 0:
                    e("s_add_u32 s92, s92, 4096")
                A.vmi("hst", f"buffer_store_dwordx4 {vr(pk, 4)}, v6, s[56:59], s92 offen{off}{STF}")
            else:
                A.vmi("hst", f"buffer_store_dwordx2 {vr(pk, 2)}, v7, s[56:59], s93 offen{off}{STF}")
    A.stamp(14)

    LCK, LOK = A.newlab("echk"), A.newlab("eok")
    MK = 96
    for m in range(4):
        e(f"v_add_u32 v4, {4 * m}, v3")
        e("v_cmp_gt_u32 vcc, s4, v4")
        A.nop(1)
        e(f"v_cndmask_b32 v{MK + m}, 0, -1, vcc")
    e("s_mov_b32 s96, 0x20000")
    A.vm_wait("eld")
    A.lab(LCK)
    e("v_mov_b32 v4, 0")
    for m in range(4):
        e(f"v_xor_b32 v5, s97, v{EMR[m] + 2}")
        e(f"v_xor_b32 v7, s97, v{EMR[m] + 6}")
        e("v_or_b32 v5, v5, v7")
        e(f"v_and_or_b32 v4, v5, v{MK + m}, v4")
    e("v_cmp_ne_u32 vcc, 0, v4")
    A.nop(4)
    e("s_cmp_eq_u64 vcc, 0")
    e(f"s_cbranch_scc1 {LOK}")
    e("s_sub_u32 s96, s96, 1")
    e("s_cmp_eq_u32 s96, 0")
    e(f"s_cbranch_scc1 {LOK}")
    e("s_sleep 4")
    saved = list(A.vm)
    for it in A.record(e_loads):
        for op in it:
            e(op[1] if op[0] == "e" else op[2])
    e("s_waitcnt vmcnt(0)")
    A.vm = saved
    e(f"s_branch {LCK}")
    A.lab(LOK)
    A.stamp(15)
    e("s_cmp_eq_u32 s4, 15")
    e("s_cselect_b32 s3, 1, 0")
    e("s_cmp_eq_u32 s6, 0")
    e("s_cselect_b32 s3, s3, 0")
    e("v_cmp_gt_u32 vcc, s3, v1")
    e("s_lshl_b32 s7, s5, 8")
    e(f"s_add_u32 s7, s7, {N_OFF}")
    e("v_mov_b32 v4, s7")
    e(f"v_mov_b32 v5, {OOB:#x}")
    e("v_cndmask_b32 v4, v5, v4, vcc")
    e("v_mov_b32 v5, s97")
    A.vmi("nst", "buffer_store_dword v5, v4, s[56:59], 0 offen sc1")
    for m in (2, 1, 0):
        for pb in range(2):
            d = EMR[m] + 4 * pb
            s_ = EMR[m + 1] + 4 * pb
            cfma(A, d, d + 1, C(pb, C_L4), C(pb, C_L4 + 1), s_, s_ + 1)
    R = 88
    for pb in range(2):
        cmul(A, R + 2 * pb, R + 2 * pb + 1, C(pb, C_LQ), C(pb, C_LQ + 1), EMR[0] + 4 * pb, EMR[0] + 4 * pb + 1)
    for swap in ("v_permlane16_swap_b32", "v_permlane32_swap_b32"):
        for x in range(4):
            e(f"v_mov_b32 v{R + 4 + x}, v{R + x}")
        A.nop(1)
        for x in range(4):
            e(f"{swap} v{R + 4 + x}, v{R + x}")
        A.nop(1)
        for x in range(4):
            e(f"v_add_f32 v{R + x}, v{R + x}, v{R + 4 + x}")
    for pb in range(2):
        cfma(A, VWIN + 2 * pb, VWIN + 2 * pb + 1, C(pb, C_L32W), C(pb, C_L32W + 1), R + 2 * pb, R + 2 * pb + 1)
    for pb in range(2):
        cfma(A, VCIN + 2 * pb, VCIN + 2 * pb + 1, C(pb, C_L8Q), C(pb, C_L8Q + 1), VWIN + 2 * pb, VWIN + 2 * pb + 1)
    for tau in range(8):
        for pb in range(2):
            lr, li, nli = C(pb, C_LR), C(pb, C_LI), C(pb, C_NLI)
            if tau == 0:
                pr, pi = VCIN + 2 * pb, VCIN + 2 * pb + 1
            else:
                pr, pi = U(pb, tau - 1, 0), U(pb, tau - 1, 1)
            e(f"v_fmac_f32 v{U(pb, tau, 0)}, v{lr}, v{pr}")
            e(f"v_fmac_f32 v{U(pb, tau, 1)}, v{lr}, v{pi}")
            e(f"v_fmac_f32 v{U(pb, tau, 0)}, v{nli}, v{pi}")
            e(f"v_fmac_f32 v{U(pb, tau, 1)}, v{li}, v{pr}")
    e("v_lshrrev_b32 v4, 2, v2")
    e("v_mul_u32_u24 v4, 272, v4")
    e("v_lshl_add_u32 v4, v3, 6, v4")
    e("v_and_b32 v5, 3, v2")
    e("v_lshl_add_u32 v4, v5, 2, v4")
    e("s_mul_i32 s3, s6, 4352")
    e(f"s_add_u32 s3, s3, {LDS_T}")
    e("v_add_u32 v4, s3, v4")
    e("v_mul_u32_u24 v5, 272, v3")
    e("v_lshl_add_u32 v5, v2, 4, v5")
    e("v_add_u32 v5, s3, v5")
    e("s_lshl_b32 s3, s5, 13")
    e("s_add_u32 s3, s3, s91")
    e("s_add_u32 s7, s3, 4096")
    TR, TI = 60, 64
    for tb in range(2):
        for pb in range(2):
            c2 = vr(C(pb, C_C2), 2)
            for h in range(2):
                P = vr(SACC(tb, pb, 2 * h), 2)
                Q = vr(SACC(tb, 2 + pb, 2 * h), 2)
                tr_, ti_ = vr(TR + 2 * h, 2), vr(TI + 2 * h, 2)
                e(f"v_pk_mul_f32 {tr_}, {P}, {c2} op_sel_hi:[1,0]")
                e(f"v_pk_mul_f32 {ti_}, {Q}, {c2} op_sel_hi:[1,0]")
                e(f"v_pk_fma_f32 {tr_}, {Q}, {c2}, {tr_} op_sel:[0,1,0] op_sel_hi:[1,1,1] "
                  f"neg_lo:[1,0,0] neg_hi:[1,0,0]")
                e(f"v_pk_fma_f32 {ti_}, {P}, {c2}, {ti_} op_sel:[0,1,0] op_sel_hi:[1,1,1]")
            cv = 68 + 4 * (pb & 1)
            for r in range(4):
                e(f"v_cvt_pk_bf16_f32 v{cv + r}, v{TR + r}, -v{TI + r}")
            for r in range(4):
                e(f"ds_write_b32 v4, v{cv + r} offset:{(tb * 2 + pb) * 1088 + r * 16}")
        e("s_waitcnt lgkmcnt(0)")
        for pb in range(2):
            e(f"ds_read_b128 {vr(76 + 4 * (tb * 2 + pb) - (0 if tb == 0 else 0), 4)}, v5 offset:{(tb * 2 + pb) * 1088}")
        if tb == 1:
            e("s_waitcnt lgkmcnt(2)")
            for pb in range(2):
                A.vmi("sst", f"buffer_store_dwordx4 {vr(76 + 4 * pb, 4)}, v6, s[56:59], "
                             f"s{3 if pb == 0 else 7} offen{STF}")
    e("s_waitcnt lgkmcnt(0)")
    for pb in range(2):
        A.vmi("sst", f"buffer_store_dwordx4 {vr(84 + 4 * pb, 4)}, v6, s[56:59], "
                     f"s{3 if pb == 0 else 7} offen offset:1024{STF}")
    A.stamp(16)
    if A.stamps:
        A.vm_all()
    A.stamp(17, True)
    A.stamp_flush(0, 56)
    A.lab(END)
    e("s_endpgm")


RSTR = 17408


def gen_k2(A, cfg):
    e = A.e
    D = cfg["k2_depth"]
    OSF = cfg.get("osf", " sc1")
    END = "L_k2_end"

    def ACC(db, tb4):
        return 16 + (db * 4 + tb4) * 4

    e("s_cmp_ge_u32 s2, 256")
    e(f"s_cbranch_scc1 {END}")
    e("s_load_dwordx2 s[24:25], s[0:1], 136")
    e("s_load_dwordx2 s[16:17], s[0:1], 0")
    e("s_load_dwordx2 s[18:19], s[0:1], 64")
    e("s_load_dwordx2 s[20:21], s[0:1], 104")
    e("s_load_dwordx2 s[22:23], s[0:1], 120")
    A.stamp(0)
    e("v_and_b32 v1, 63, v0")
    e("v_lshrrev_b32 v4, 6, v0")
    e("v_and_b32 v2, 15, v1")
    e("v_readfirstlane_b32 s6, v4")
    e("v_lshrrev_b32 v3, 4, v1")
    e("s_and_b32 s3, s2, 7")
    e("s_lshl_b32 s3, s3, 2")
    e("s_lshr_b32 s7, s2, 6")
    e("s_add_u32 s4, s3, s7")
    e("s_lshr_b32 s5, s2, 3")
    e("s_and_b32 s5, s5, 7")
    e("v_lshlrev_b32 v5, 4, v1")
    e(f"s_mul_i32 s26, s4, {AF_RT}")
    e(f"s_mul_i32 s3, s6, {22 * 4096}")
    e("s_add_u32 s26, s26, s3")
    e(f"s_mul_i32 s27, s5, {AF_RT}")
    e("s_add_u32 s27, s27, s3")
    e(f"s_add_u32 s27, s27, {BF_OFF}")
    if cfg.get("k2_same"):
        e(f"s_mul_i32 s26, s6, {22 * 4096}")
        e(f"s_add_u32 s27, s26, {BF_OFF}")
    e("s_waitcnt lgkmcnt(0)")
    srd(A, 8, 24, 25, WS_USED)

    def loads(s):
        st = s % D
        it = []
        for x in range(4):
            off = f" offset:{x * 1024}" if x else ""
            it.append((f"k{s}", f"buffer_load_dwordx4 {ar(32 * st + 16 + 4 * x, 4)}, v5, s[8:11], s27 offen{off}"))
            it.append((f"k{s}", f"buffer_load_dwordx4 {ar(32 * st + 4 * x, 4)}, v5, s[8:11], s26 offen{off}"))
        return it

    def adv():
        e("s_add_u32 s26, s26, 4096")
        e("s_add_u32 s27, s27, 4096")

    for s in range(D - 1):
        for tag, ins in loads(s):
            A.vmi(tag, ins)
        adv()
    e("v_lshrrev_b32 v6, 2, v2")
    e("v_lshlrev_b32 v6, 3, v6")
    e("v_and_b32 v7, 3, v2")
    e("v_add_u32 v6, v6, v7")
    e("v_mul_u32_u24 v12, 272, v6")
    e("v_lshl_add_u32 v12, v3, 4, v12")
    e(f"s_mul_i32 s3, s6, {RSTR}")
    e("v_add_u32 v13, s3, v12")
    e(f"v_add_u32 v12, {4 * RSTR}, v12")

    VXE, VGE, VDS, VB2 = 152, 160, 168, 170

    def ep_loads():
        def a():
            e("s_lshl_b32 s28, s4, 6")
            e("s_lshl_b32 s3, s6, 4")
            e("s_add_u32 s29, s28, s3")
            e("v_add_u32 v8, s29, v3")
            e("s_lshl_b32 s30, s5, 7")
            e("v_lshl_add_u32 v10, v2, 3, s30")
        A.group(a)
        e("v_lshlrev_b32 v9, 10, v8")
        e("v_add_u32 v9, v9, v10")
        e("v_lshlrev_b32 v11, 3, v8")
        e(f"v_add_u32 v11, {G_OFF}, v11")
        srd(A, 32, 16, 17, 2048 * 1024)
        e("s_mov_b32 s31, 0")
        for it in range(4):
            if it:
                e("s_add_u32 s31, s31, 4096")
            A.vmi("ep", f"buffer_load_dwordx2 {vr(VXE + 2 * it, 2)}, v9, s[32:35], s31 offen")
        for it in range(4):
            A.vmi("ep", f"buffer_load_dwordx2 {vr(VGE + 2 * it, 2)}, v11, s[8:11], 0 offen offset:{it * 32}")
        A.vmi("ep", f"global_load_dwordx2 {vr(VDS, 2)}, v10, s[18:19]")
        A.vmi("ep", f"global_load_dwordx2 {vr(VB2, 2)}, v10, s[20:21]")
        srd(A, 12, 22, 23, 2048 * 2048)

    A.push("ep", A.record(ep_loads))

    def mfmas(s, zero):
        st = s % D
        it = []
        for db in range(4):
            for tb4 in range(4):
                d = vr(ACC(db, tb4), 4)
                cc = "0" if zero else d
                it.append(f"v_mfma_f32_16x16x32_bf16 {d}, {ar(32 * st + 16 + 4 * db, 4)}, "
                          f"{ar(32 * st + 4 * tb4, 4)}, {cc}")
        return it

    def dump(vaddr):
        for db in range(4):
            for tb4 in range(4):
                ro = 32 * (tb4 >> 1) + 4 * (tb4 & 1)
                e(f"ds_write_b128 v{vaddr}, {vr(ACC(db, tb4), 4)} offset:{ro * 272 + db * 64}")

    def step(s, zero):
        ld = loads(s + D - 1) if s + D - 1 < 22 else []
        seq = mfmas(s, zero)
        li = 0
        for k, m in enumerate(seq):
            e(m)
            if (k & 1) and li < len(ld):
                A.vmi(*ld[li])
                li += 1
            elif not ld:
                A.pop("ep", 2)
        if ld:
            adv()

    A.stamp(1)
    for s in range(22):
        A.vm_wait(f"k{s}")
        if s in (0, 5, 10, 15, 20):
            A.stamp(2 + s // 5)
        if s == 10:
            LN, LJ = A.newlab("nrm"), A.newlab("join")
            e("s_cmp_eq_u32 s6, 1")
            e(f"s_cbranch_scc0 {LN}")
            saved = list(A.vm)
            A.nop(8)
            dump(12)
            e("s_waitcnt lgkmcnt(0)")
            step(s, True)
            after = list(A.vm)
            e(f"s_branch {LJ}")
            A.lab(LN)
            A.vm = list(saved)
            step(s, False)
            assert A.vm == after
            A.lab(LJ)
        else:
            step(s, s == 0)
    A.drain("ep")
    A.stamp(7)
    A.nop(4)
    dump(13)
    e("s_lshl_b32 s3, s6, 4")
    e("v_add_u32 v6, s3, v3")
    e("v_mul_u32_u24 v6, 272, v6")
    e("v_lshl_add_u32 v6, v2, 4, v6")
    e(f"v_add_u32 v7, {3 * RSTR}, v6")
    A.vm_wait("ep")
    DS, B2 = 96, 100
    for k, src in ((DS, VDS), (B2, VB2)):
        e(f"v_lshlrev_b32 v{k}, 16, v{src}")
        e(f"v_and_b32 v{k + 1}, 0xffff0000, v{src}")
        e(f"v_lshlrev_b32 v{k + 2}, 16, v{src + 1}")
        e(f"v_and_b32 v{k + 3}, 0xffff0000, v{src + 1}")
    e("v_lshlrev_b32 v9, 11, v8")
    e("s_lshl_b32 s3, s5, 8")
    e("v_lshl_add_u32 v10, v2, 4, s3")
    e("v_add_u32 v9, v9, v10")
    for it in range(4):
        X = 104 + 8 * it
        xs = VXE + 2 * it
        e(f"v_lshlrev_b32 v{X}, 16, v{xs}")
        e(f"v_and_b32 v{X + 1}, 0xffff0000, v{xs}")
        e(f"v_lshlrev_b32 v{X + 2}, 16, v{xs + 1}")
        e(f"v_and_b32 v{X + 3}, 0xffff0000, v{xs + 1}")
        for h in range(2):
            e(f"v_pk_mul_f32 {vr(X + 2 * h, 2)}, {vr(X + 2 * h, 2)}, {vr(DS + 2 * h, 2)}")
        e(f"v_cvt_pk_bf16_f32 v{X + 4}, v{X}, v{X + 1}")
        e(f"v_cvt_pk_bf16_f32 v{X + 5}, v{X + 2}, v{X + 3}")
        e(f"v_lshlrev_b32 v{X}, 16, v{X + 4}")
        e(f"v_and_b32 v{X + 1}, 0xffff0000, v{X + 4}")
        e(f"v_lshlrev_b32 v{X + 2}, 16, v{X + 5}")
        e(f"v_and_b32 v{X + 3}, 0xffff0000, v{X + 5}")
    e("s_waitcnt lgkmcnt(0)")
    e("s_barrier")
    A.stamp(8)
    P0 = 16
    for it in range(4):
        for b in range(5):
            base, o = (6, b * RSTR) if b < 3 else (7, (b - 3) * RSTR)
            e(f"ds_read_b128 {vr(P0 + (it * 5 + b) * 4, 4)}, v{base} offset:{o + it * 4 * 272}")
    e("s_mov_b32 s31, 0")
    for it in range(4):
        X = 104 + 8 * it
        P = [P0 + (it * 5 + b) * 4 for b in range(5)]
        g, omg = VGE + 2 * it, VGE + 2 * it + 1
        e(f"s_waitcnt lgkmcnt({15 - 5 * it})")
        for h in range(2):
            o = 2 * h
            e(f"v_pk_add_f32 {vr(X + o, 2)}, {vr(X + o, 2)}, {vr(P[0] + o, 2)}")
            e(f"v_pk_add_f32 {vr(P[1] + o, 2)}, {vr(P[1] + o, 2)}, {vr(B2 + o, 2)}")
            e(f"v_pk_add_f32 {vr(X + o, 2)}, {vr(X + o, 2)}, {vr(P[4] + o, 2)}")
            e(f"v_pk_add_f32 {vr(P[2] + o, 2)}, {vr(P[2] + o, 2)}, {vr(P[3] + o, 2)}")
        for h in range(2):
            o = 2 * h
            e(f"v_pk_add_f32 {vr(P[1] + o, 2)}, {vr(P[1] + o, 2)}, {vr(P[2] + o, 2)}")
        for r in range(4):
            e(f"v_mul_f32 v{X + r}, v{g}, v{X + r}")
        for r in range(4):
            e(f"v_fmac_f32 v{X + r}, v{omg}, v{P[1] + r}")
        if cfg.get("perturb"):
            for r in range(4):
                e(f"v_mul_f32 v{X + r}, {flit(1.0 + cfg['perturb'] / 10000.0)}, v{X + r}")
        if it:
            e("s_add_u32 s31, s31, 8192")
        A.vmi("ost", f"buffer_store_dwordx4 {vr(X, 4)}, v9, s[12:15], s31 offen{OSF}")
    A.stamp(9)
    if A.stamps:
        A.vm_all()
    A.stamp(10, True)
    A.stamp_flush(1, 8)
    A.lab(END)
    e("s_endpgm")


def kd(name, vgpr, accum, sgpr=102):
    return f""".amdhsa_kernel {name}
  .amdhsa_next_free_vgpr {vgpr}
  .amdhsa_next_free_sgpr {sgpr}
  .amdhsa_accum_offset {accum}
  .amdhsa_group_segment_fixed_size 0
  .amdhsa_kernarg_size 144
  .amdhsa_user_sgpr_count 2
  .amdhsa_user_sgpr_kernarg_segment_ptr 1
  .amdhsa_system_sgpr_workgroup_id_x 1
  .amdhsa_float_denorm_mode_32 3
.end_amdhsa_kernel
"""


HEADER = open("cdna_kernels/" + KN[:-7] + ".s.ref").read().split("; Override launch")[0]


def generate(cfg):
    out = [HEADER.rstrip("\n")]
    out.append(f"; @launch kernel={KN} grid=(256,1,1) block=(256,1,1) lds=163840")
    out.append(f"; @launch kernel={K2N} grid=(256,1,1) block=(256,1,1) lds={5 * 17408}")
    out.append('.amdgcn_target "amdgcn-amd-amdhsa--gfx950"')
    out.append(".text")
    for name, fn in ((KN, gen_k1), (K2N, gen_k2)):
        A = Asm()
        A.stamps = bool(cfg.get("stamps"))
        fn(A, cfg)
        out.append(f".globl {name}")
        out.append(".p2align 8")
        out.append(f".type {name},@function")
        out.append(f"{name}:")
        out.extend(A.L)
    out.append('.section .rodata,"a"')
    out.append(".p2align 6")
    out.append(kd(KN, 512, 256))
    out.append(".p2align 6")
    out.append(kd(K2N, 512, 256))
    return "\n".join(out) + "\n"


if __name__ == "__main__":
    cfg = {"map1": "2x16", "k2_depth": 4}
    path = "cdna_kernels/" + KN[:-7] + ".s"
    for a in sys.argv[1:]:
        if a.startswith("-o"):
            path = a[2:]
        elif "=" in a:
            k, v = a.split("=")
            cfg[k] = int(v) if v.isdigit() else v.replace("_", " ")
    open(path, "w").write(generate(cfg))
    print("wrote", path)
```

```python
import sys

KN = "gated_mix__ssm_conv_s5__dense_activation_squared_relu__prompt_kernel"
K2N = "gated_mix_stage2_kernel"

AF_RT = 88 * 4096
AF_OFF = 0
E_OFF = 32 * AF_RT
G_OFF = E_OFF + 16 * 8192
N_OFF = G_OFF + 2048 * 8
Y_OFF = N_OFF + 256
FL_OFF = Y_OFF + 16 * 256
WS_USED = FL_OFF + 16 * 256
STAMP_OFF = 0x1000000
OOB = 0x7FFFFF00

LOG2E = 0x3FB8AA3B
INV2PI = 0x3E22F983


class Asm:
    def __init__(self):
        self.L = []
        self.vm = []
        self.nlab = 0
        self.stamps = False
        self.rec = None
        self.q = {}

    def e(self, s):
        if self.rec is not None:
            self.rec.append([("e", s)])
        else:
            self.L.append("    " + s)

    def record(self, fn):
        assert self.rec is None
        self.rec = []
        fn()
        out, self.rec = self.rec, None
        return out

    def group(self, fn):
        outer = self.rec
        self.rec = []
        fn()
        merged = [op for it in self.rec for op in it]
        self.rec = outer
        self.rec.append(merged)

    def push(self, q, items):
        self.q.setdefault(q, []).extend(items)

    def pop(self, q, n=1):
        lst = self.q.get(q, [])
        while n > 0 and lst:
            it = lst.pop(0)
            for op in it:
                if op[0] == "e":
                    self.e(op[1])
                elif op[0] == "vmi":
                    self.vmi(op[1], op[2])
                elif op[0] == "vmw":
                    self.vm_wait(*op[1])
                elif op[0] == "lab":
                    self.lab(op[1])
            n -= 1

    def head_is_vmem(self, q):
        lst = self.q.get(q, [])
        return bool(lst) and any(op[0] == "vmi" for op in lst[0])

    def drain(self, q):
        self.pop(q, 1 << 30)

    def qlen(self, q):
        return len(self.q.get(q, []))

    def lab(self, s):
        if self.rec is not None:
            self.rec.append([("lab", s)])
        else:
            self.L.append(s + ":")

    def c(self, s):
        self.L.append("    ; " + s)

    def newlab(self, p):
        self.nlab += 1
        return f"L_{p}_{self.nlab}"

    def vmi(self, tag, s):
        if self.rec is not None:
            self.rec.append([("vmi", tag, s)])
            return
        self.e(s)
        self.vm.append(tag)
        assert len(self.vm) <= 63, "vmcnt overflow"

    def vm_wait(self, *tags):
        if self.rec is not None:
            self.rec.append([("vmw", tags)])
            return
        idx = [i for i, t in enumerate(self.vm) if t in tags]
        if not idx:
            return
        i = max(idx)
        n = len(self.vm) - 1 - i
        self.e(f"s_waitcnt vmcnt({n})")
        self.vm = self.vm[i + 1:]

    def vm_all(self):
        self.e("s_waitcnt vmcnt(0)")
        self.vm = []

    def stamp(self, idx, last=False):
        if not self.stamps:
            return
        self.e("s_memtime s[98:99]")
        self.e("s_waitcnt lgkmcnt(0)")
        self.e(f"v_writelane_b32 v255, s98, {idx}")
        if idx == 0 or last:
            self.e("s_memrealtime s[98:99]")
            self.e("s_waitcnt lgkmcnt(0)")
            self.e(f"v_writelane_b32 v255, s98, {63 if last else 62}")

    def stamp_flush(self, slot, srd_):
        if not self.stamps:
            return
        self.e("s_lshl_b32 s98, s2, 2")
        self.e("s_add_u32 s98, s98, s6")
        self.e("s_lshl_b32 s98, s98, 8")
        self.e(f"s_add_u32 s98, s98, {STAMP_OFF + slot * 0x40000}")
        self.e("v_lshlrev_b32 v254, 2, v1")
        self.e(f"s_mov_b32 s{srd_ + 2}, {STAMP_OFF + 0x100000:#x}")
        self.e(f"buffer_store_dword v255, v254, s[{srd_}:{srd_ + 3}], s98 offen")

    def nop(self, n):
        while n > 0:
            k = min(n, 16)
            self.e(f"s_nop {k - 1}")
            n -= k


def vr(a, n=1):
    return f"v{a}" if n == 1 else f"v[{a}:{a + n - 1}]"


def ar(a, n=1):
    return f"a{a}" if n == 1 else f"a[{a}:{a + n - 1}]"


def sr(a, n=1):
    return f"s{a}" if n == 1 else f"s[{a}:{a + n - 1}]"


def srd(A, s, lo, hi, nrec):
    A.e(f"s_mov_b32 s{s}, s{lo}")
    A.e(f"s_and_b32 s{s + 1}, s{hi}, 0xffff")
    A.e(f"s_mov_b32 s{s + 2}, {nrec:#x}")
    A.e(f"s_mov_b32 s{s + 3}, 0x20000")


def cfma(A, dr, di, ar_, ai, br, bi):
    A.e(f"v_fmac_f32 v{dr}, v{ar_}, v{br}")
    A.e(f"v_fmac_f32 v{di}, v{ar_}, v{bi}")
    A.e(f"v_fma_f32 v{dr}, -v{ai}, v{bi}, v{dr}")
    A.e(f"v_fmac_f32 v{di}, v{ai}, v{br}")


def cmul(A, dr, di, ar_, ai, br, bi):
    A.e(f"v_mul_f32 v{dr}, v{ar_}, v{br}")
    A.e(f"v_mul_f32 v{di}, v{ar_}, v{bi}")
    A.e(f"v_fma_f32 v{dr}, -v{ai}, v{bi}, v{dr}")
    A.e(f"v_fmac_f32 v{di}, v{ai}, v{br}")


def interleave(main, fill, first=0, per=1):
    out = []
    fi = 0
    for i, m in enumerate(main):
        out.append(m)
        if i >= first:
            for _ in range(per):
                if fi < len(fill):
                    out.append(fill[fi])
                    fi += 1
    out.extend(fill[fi:])
    return out


LDS_S = 0
LDS_X = [65536, 98304, 131072]
LDS_F = [98304, 131072, 0, 65536]
LDS_BIAS = 126976
LDS_SCR = 128000
LDS_T = 65536
LDS_RING = [32768, 49152, 0, 16384, 98304, 114688, 131072, 147456]
LDS_HI = 98304
LDS_R = 65536
RSTR = 17408


def SACC(tb, ct, r=0):
    return 8 + (tb * 4 + ct) * 4 + r


def FACC(nt, tb, r=0):
    return 40 + (nt * 2 + tb) * 4 + r


VX = 96
VS = 104
VRX = 108
VRX2 = 112
VRS = 116
VF = 120
VFR = 127
VBIAS = 128
CB = 156
VCIN = 200
VWIN = 204
VT = 208


def C(pb, k):
    return CB + 22 * pb + k


C_LR, C_LI, C_NLI = 0, 1, 2
C_L8, C_L16, C_L32, C_L8Q, C_MC, C_L32W, C_LQ, C_L4, C_MA, C_C2 = 3, 5, 7, 9, 11, 13, 15, 17, 19, 20


def XF(ks, tb):
    return (ks * 2 + tb) * 4


def flit(x):
    import struct
    return "%#x" % struct.unpack("<I", struct.pack("<f", x))[0]


def gen_k1(A, cfg):
    e = A.e
    STF = cfg.get("stf", " sc1")
    END = "L_k1_end"
    e("s_cmp_ge_u32 s2, 256")
    e(f"s_cbranch_scc1 {END}")
    e("s_load_dwordx16 s[16:31], s[0:1], 0")
    e("s_load_dwordx16 s[32:47], s[0:1], 64")
    e("s_load_dwordx4 s[48:51], s[0:1], 128")
    A.stamp(0)
    e("v_and_b32 v1, 63, v0")
    e("v_lshrrev_b32 v4, 6, v0")
    e("v_and_b32 v2, 15, v1")
    e("v_readfirstlane_b32 s6, v4")
    e("v_lshrrev_b32 v3, 4, v1")
    if cfg["map1"] == "2x16":
        e("s_and_b32 s3, s2, 7")
        e("s_lshl_b32 s3, s3, 1")
        e("s_lshr_b32 s7, s2, 7")
        e("s_add_u32 s4, s3, s7")
        e("s_lshr_b32 s5, s2, 3")
        e("s_and_b32 s5, s5, 15")
    elif cfg["map1"] == "8x4":
        e("s_and_b32 s3, s2, 1")
        e("s_lshl_b32 s3, s3, 3")
        e("s_lshr_b32 s7, s2, 3")
        e("s_and_b32 s7, s7, 7")
        e("s_add_u32 s4, s3, s7")
        e("s_lshr_b32 s5, s2, 1")
        e("s_and_b32 s5, s5, 3")
        e("s_lshl_b32 s5, s5, 2")
        e("s_lshr_b32 s7, s2, 6")
        e("s_add_u32 s5, s5, s7")
    else:
        e("s_lshr_b32 s3, s2, 1")
        e("s_and_b32 s3, s3, 3")
        e("s_lshl_b32 s3, s3, 2")
        e("s_lshr_b32 s7, s2, 6")
        e("s_add_u32 s4, s3, s7")
        e("s_lshr_b32 s5, s2, 3")
        e("s_and_b32 s5, s5, 7")
        e("s_and_b32 s7, s2, 1")
        e("s_lshl_b32 s7, s7, 3")
        e("s_add_u32 s5, s5, s7")
    e("v_xor_b32 v4, v2, v3")
    e("v_lshlrev_b32 v4, 4, v4")
    e("v_lshl_or_b32 v5, v3, 10, v4")
    for m in range(8):
        x = (m >> 1) << 6
        a = (m & 3) * 3072
        if x:
            e(f"v_xor_b32 v{VX + m}, {x}, v5")
            if a:
                e(f"v_add_u32 v{VX + m}, {a}, v{VX + m}")
        elif a:
            e(f"v_add_u32 v{VX + m}, {a}, v5")
        else:
            e(f"v_mov_b32 v{VX + m}, v5")
    for m in range(4):
        if m:
            e(f"v_xor_b32 v{VS + m}, {m << 6}, v5")
            e(f"v_add_u32 v{VS + m}, {m * 3072}, v{VS + m}")
        else:
            e(f"v_mov_b32 v{VS}, v5")
    e("s_lshl_b32 s64, s4, 7")
    e("s_lshl_b32 s3, s6, 5")
    e("s_add_u32 s64, s64, s3")
    e("s_lshl_b32 s64, s64, 10")
    e("s_lshl_b32 s65, s5, 5")
    e("s_and_b32 s3, s6, 1")
    e("s_lshl_b32 s3, s3, 4")
    e("s_add_u32 s65, s65, s3")
    e("s_lshl_b32 s65, s65, 10")
    e(f"s_mul_i32 s66, s6, {32 * 3584}")
    e("s_mul_i32 s3, s5, 224")
    e("s_add_u32 s66, s66, s3")
    SXC, SSC, SFC = [72, 73, 74, 75], [34, 35, 48, 49], [85, 86, 87, 88]
    e("s_lshl_b32 s67, s6, 13")
    e("s_lshl_b32 s68, s6, 12")
    e("s_mul_i32 s69, s6, 7168")
    e("s_lshl_b32 s3, s5, 5")
    e("v_and_b32 v6, 31, v1")
    e("v_add_u32 v6, s3, v6")
    e("v_lshlrev_b32 v6, 1, v6")
    e(f"s_mov_b32 s7, {N_OFF}")
    e("s_add_u32 s82, s4, s5")
    if not cfg.get("rot", 1):
        e("s_mov_b32 s82, 0")
    e("s_waitcnt lgkmcnt(0)")
    A.stamp(18)
    e("s_load_dword s97, s[50:51], s7")
    for t in range(4):
        e(f"s_add_u32 s3, s82, {t}")
        e("s_and_b32 s3, s3, 3")
        e("s_lshl_b32 s7, s3, 8")
        e(f"s_add_u32 s{SXC[t]}, s64, s7")
        e(f"s_add_u32 s{SSC[t]}, s65, s7")
        e(f"s_mul_i32 s7, s3, {128 * 3584}")
        e(f"s_add_u32 s{SFC[t]}, s66, s7")
    T = VT
    A.vmi("cst", f"global_load_ushort v{T}, v6, s[18:19]")
    A.vmi("cst", f"global_load_ushort v{T + 1}, v6, s[20:21]")
    A.vmi("cst", f"global_load_ushort v{T + 2}, v6, s[30:31]")
    srd(A, 8, 16, 17, 2048 * 1024)
    e("s_cmp_lt_u32 s6, 2")
    e("s_cselect_b32 s12, s22, s24")
    e("s_cselect_b32 s13, s23, s25")
    e("s_and_b32 s13, s13, 0xffff")
    e(f"s_mov_b32 s14, {512 * 1024:#x}")
    e("s_mov_b32 s15, 0x20000")

    def dma_group(tag, m0base, m0imm, sbase, simm, vaddrs, srd_):
        def fn():
            for k, va in enumerate(vaddrs):
                off = f" offset:{k * 1024}" if k else ""

                def one(k=k, va=va, off=off):
                    if k == 0:
                        e(f"s_add_u32 m0, s{m0base}, {m0imm}")
                        if simm:
                            e(f"s_add_u32 s70, s{sbase}, {simm}")
                        else:
                            e(f"s_mov_b32 s70, s{sbase}")
                    A.vmi(tag, f"buffer_load_dwordx4 v{va}, s[{srd_}:{srd_ + 3}], s70 offen{off}{cfg.get('ldf_' + tag[0], '')} lds")
                A.group(one)
        return A.record(fn)

    def dma_x(c, buf):
        it = []
        for h in range(2):
            it += dma_group(f"x{c}", 67, LDS_X[buf] + h * 4096, SXC[c], h * 16384,
                            [VX + 4 * h + k for k in range(4)], 8)
        return it

    def dma_s(c):
        return dma_group(f"s{c}", 68, LDS_S + c * 16384, SSC[c], 0, [VS + k for k in range(4)], 12)

    def dma_f(c):
        it = []
        for h in range(2):
            it += dma_group(f"f{c}", 69, LDS_F[c] + h * 4096, SFC[c], 0,
                            [VF + 4 * h + k for k in range(4 if h == 0 else 3)], 52)
        return it

    def fill_patterns():
        e("v_xor_b32 v4, v2, v3")
        e("v_lshrrev_b32 v5, 2, v2")
        e("v_lshlrev_b32 v5, 3, v5")
        e("v_and_b32 v6, 3, v2")
        e("v_add_u32 v5, v5, v6")
        e("v_lshlrev_b32 v5, 8, v5")
        A.group(lambda: (e(f"s_add_u32 s3, s67, {LDS_X[0]}"), e("v_add_u32 v5, s3, v5")))
        e("v_lshlrev_b32 v6, 8, v2")
        for k in range(4):
            e(f"v_xor_b32 v7, {4 * k}, v4")
            e("v_lshlrev_b32 v7, 4, v7")
            e(f"v_add_u32 v{VRX + k}, v5, v7")
            e(f"v_add_u32 v{VRS + k}, v6, v7")
            e(f"v_add_u32 v{VRX2 + k}, 0x10000, v{VRX + k}")

    def fill_srds():
        srd(A, 52, 36, 37, 512 * 3584)
        srd(A, 56, 50, 51, WS_USED)

        def esrd():
            e("s_lshl_b32 s3, s5, 13")
            e(f"s_add_u32 s3, s3, {E_OFF}")
            e("s_add_u32 s76, s50, s3")
            e("s_addc_u32 s77, s51, 0")
            e("s_and_b32 s77, s77, 0xffff")
            e("s_mov_b32 s78, 8192")
            e("s_mov_b32 s79, 0x20000")
        A.group(esrd)
        srd(A, 60, 38, 39, 3584)
        e(f"s_mov_b32 s80, {LOG2E:#x}")
        e(f"s_mov_b32 s81, {INV2PI:#x}")

    Z = VT + 4
    TP = VT + 12

    def spread(d0, d1):
        e(f"v_mov_b32 v{d1}, v{d0}")
        e(f"v_mov_b32 v{d1 + 1}, v{d0 + 1}")
        A.nop(1)
        e(f"v_permlane16_swap_b32 v{d0}, v{d1}")
        e(f"v_permlane16_swap_b32 v{d0 + 1}, v{d1 + 1}")

    def cpow1(k, zr, a1, dr, di, t, kreg=None):
        if kreg is not None:
            e(f"v_mul_f32 v{t}, v{kreg}, v{zr}")
            e(f"v_mul_f32 v{t + 1}, v{kreg}, v{a1}")
        elif k == 1.0:
            e(f"v_mov_b32 v{t}, v{zr}")
            e(f"v_mov_b32 v{t + 1}, v{a1}")
        else:
            e(f"v_mul_f32 v{t}, {flit(k)}, v{zr}")
            e(f"v_mul_f32 v{t + 1}, {flit(k)}, v{a1}")
        e(f"v_exp_f32 v{t}, v{t}")
        e(f"v_fract_f32 v{t + 1}, v{t + 1}")
        e(f"v_cos_f32 v{t + 2}, v{t + 1}")
        e(f"v_sin_f32 v{t + 3}, v{t + 1}")
        e(f"v_mul_f32 v{dr}, v{t}, v{t + 2}")
        e(f"v_mul_f32 v{di}, v{t}, v{t + 3}")

    def fill_consts():
        A.vm_wait("cst")
        e(f"v_lshlrev_b32 v{Z}, 16, v{T}")
        e(f"v_lshlrev_b32 v{Z + 1}, 16, v{T + 1}")
        e(f"v_lshlrev_b32 v{T + 2}, 16, v{T + 2}")
        e(f"v_mul_f32 v{T + 2}, s80, v{T + 2}")
        e(f"v_exp_f32 v{T + 2}, v{T + 2}")
        A.nop(1)
        e(f"v_cvt_pk_bf16_f32 v{T + 2}, v{T + 2}, v{T + 2}")
        e(f"v_lshlrev_b32 v{T + 2}, 16, v{T + 2}")
        e(f"v_mul_f32 v{Z + 2}, v{T + 2}, v{Z}")
        e(f"v_mul_f32 v{Z + 3}, v{T + 2}, v{Z + 1}")
        e(f"v_mul_f32 v{Z + 2}, s80, v{Z + 2}")
        e(f"v_mul_f32 v{Z + 3}, s81, v{Z + 3}")
        cpow1(1.0, Z + 2, Z + 3, C(0, C_LR), C(0, C_LI), TP)
        t = TP
        e(f"v_subrev_f32 v{t}, 1.0, v{C(0, C_LR)}")
        e(f"v_mul_f32 v{t + 1}, v{Z}, v{Z}")
        e(f"v_fmac_f32 v{t + 1}, v{Z + 1}, v{Z + 1}")
        e(f"v_rcp_f32 v{t + 1}, v{t + 1}")
        e(f"v_mul_f32 v{t + 2}, v{t}, v{Z}")
        e(f"v_fmac_f32 v{t + 2}, v{C(0, C_LI)}, v{Z + 1}")
        e(f"v_mul_f32 v{t + 3}, v{C(0, C_LI)}, v{Z}")
        e(f"v_fma_f32 v{t + 3}, -v{t}, v{Z + 1}, v{t + 3}")
        e(f"v_add_f32 v{t + 1}, v{t + 1}, v{t + 1}")
        e(f"v_mul_f32 v{C(0, C_C2)}, v{t + 2}, v{t + 1}")
        e(f"v_mul_f32 v{C(0, C_C2 + 1)}, v{t + 3}, v{t + 1}")
        spread(C(0, C_C2), C(1, C_C2))
        spread(C(0, C_LR), C(1, C_LR))
        for pb in range(2):
            e(f"v_sub_f32 v{C(pb, C_NLI)}, 0, v{C(pb, C_LI)}")
        for k, dst in ((8.0, C_L8), (16.0, C_L16), (32.0, C_L32), (512.0, C_L4)):
            cpow1(k, Z + 2, Z + 3, C(0, dst), C(0, dst + 1), TP)
            spread(C(0, dst), C(1, dst))
        KR = T
        A.group(lambda: (e("s_lshl_b32 s3, s6, 5"), e(f"v_cvt_f32_u32 v{KR}, s3")))
        cpow1(None, Z + 2, Z + 3, C(0, C_L32W), C(0, C_L32W + 1), TP, kreg=KR)
        spread(C(0, C_L32W), C(1, C_L32W))
        spread(Z + 2, Z + 6)
        e(f"v_cvt_f32_u32 v{KR}, v3")
        e(f"v_mul_f32 v{KR + 1}, 0x41000000, v{KR}")
        e(f"v_mul_f32 v{KR + 2}, 0x43000000, v{KR}")
        for kr, dst in ((KR + 1, C_L8Q), (KR + 2, C_LQ)):
            for pb in range(2):
                cpow1(None, Z + 2 + 4 * pb, Z + 3 + 4 * pb, C(pb, dst), C(pb, dst + 1), TP + 4 * pb, kreg=kr)
        e("v_cmp_eq_u32 vcc, 3, v3")
        e("v_cmp_eq_u32 s[82:83], 2, v3")
        e("v_and_b32 v4, 1, v3")
        e(f"v_cvt_f32_u32 v{C(0, C_MA)}, v4")
        e("v_cndmask_b32 v5, 0, 1.0, s[82:83]")
        for pb in range(2):
            e(f"v_cndmask_b32 v{C(pb, C_MC)}, v5, v{C(pb, C_L8)}, vcc")
            e(f"v_cndmask_b32 v{C(pb, C_MC + 1)}, 0, v{C(pb, C_L8 + 1)}, vcc")

    def fill_vf():
        A.group(lambda: (e("s_and_b32 s3, s5, 1"), e("s_lshl_b32 s7, s3, 1")))
        for m in range(7):
            d = VF + m
            e(f"v_add_u32 v4, {64 * m}, v1")
            e("v_mul_u32_u24 v5, 4682, v4")
            e("v_lshrrev_b32 v5, 16, v5")
            e("v_mul_u32_u24 v6, 14, v5")
            e("v_sub_u32 v4, v4, v6")
            e("v_add_u32 v4, s7, v4")
            e("v_subrev_u32 v6, 14, v4")
            e("v_min_u32 v4, v4, v6")
            e("v_and_b32 v6, 12, v5")
            e("v_lshlrev_b32 v6, 1, v6")
            e("v_and_b32 v7, 3, v5")
            e("v_add_u32 v6, v6, v7")
            e("v_lshrrev_b32 v7, 4, v5")
            e("v_lshl_add_u32 v6, v7, 2, v6")
            e("v_mul_u32_u24 v6, 3584, v6")
            e("v_lshl_add_u32 v6, v4, 4, v6")
            if m & 3:
                e(f"v_subrev_u32 v{d}, {(m & 3) * 1024}, v6")
            else:
                e(f"v_mov_b32 v{d}, v6")
        e("v_lshrrev_b32 v4, 2, v2")
        e("v_lshl_add_u32 v4, v3, 2, v4")
        e("v_mul_u32_u24 v4, 224, v4")
        e("v_and_b32 v5, 3, v2")
        e("v_lshl_add_u32 v4, v5, 3, v4")
        e(f"v_add_u32 v{VFR}, {LDS_F[0]}, v4")
        e(f"v_lshlrev_b32 v{VT + 30}, 2, v1")

    def dma_bias():
        def one():
            e("s_lshl_b32 s70, s6, 8")
            e(f"s_add_u32 m0, s70, {LDS_BIAS}")
            e("s_mul_i32 s70, s5, 224")
            A.vmi("bias", f"buffer_load_dword v{VT + 30}, s[60:63], s70 offen lds")
        return A.record(lambda: A.group(one))

    BT = VT + 8

    def fill_bias():
        def addr():
            e("s_lshl_b32 s3, s6, 8")
            e(f"s_add_u32 s3, s3, {LDS_BIAS}")
            e("v_lshl_add_u32 v4, v3, 3, s3")
            e("s_and_b32 s3, s5, 1")
            e("s_lshl_b32 s7, s3, 5")
            e("v_add_u32 v5, s7, v4")
            e(f"s_mul_i32 s7, s3, {6 * 32}")
            e("s_sub_u32 s7, 192, s7")
            e("v_add_u32 v6, s7, v4")
        A.group(addr)
        A.vm_wait("bias")
        for nt in range(6):
            e(f"ds_read_b64 {vr(BT + 2 * nt, 2)}, v5 offset:{32 * nt}")
        e(f"ds_read_b64 {vr(BT + 12, 2)}, v6")
        e("s_waitcnt lgkmcnt(0)")
        for nt in range(7):
            b = VBIAS + 4 * nt
            e(f"v_lshlrev_b32 v{b}, 16, v{BT + 2 * nt}")
            e(f"v_and_b32 v{b + 1}, 0xffff0000, v{BT + 2 * nt}")
            e(f"v_lshlrev_b32 v{b + 2}, 16, v{BT + 2 * nt + 1}")
            e(f"v_and_b32 v{b + 3}, 0xffff0000, v{BT + 2 * nt + 1}")

    A.push("v0", A.record(fill_patterns))
    A.push("v0", A.record(fill_srds))
    A.push("v", A.record(fill_consts))
    n_const = A.qlen("v")
    A.push("v", A.record(fill_vf))
    A.push("d", dma_x(0, 0) + dma_s(0) + dma_x(1, 1) + dma_s(1))
    per = cfg.get("pre_fill", 9)
    npop = 0
    while A.qlen("d"):
        A.pop("d")
        npop += 1
        if npop in (1, 6, 12, 18):
            A.stamp(19 + (1, 6, 12, 18).index(npop))
        if A.qlen("v0"):
            A.pop("v0", per)
        else:
            A.pop("v", per)
    A.drain("v0")
    A.stamp(1)

    def ssm_reads(s):
        c, ksl = s >> 2, s & 3
        buf = [0, 1, 2, 0][c]
        it = []
        for tb in range(2):
            if buf == 2:
                it.append(f"ds_read_b128 {ar(XF(s, tb), 4)}, v{VRX2 + ksl} offset:{tb * 1024}")
            else:
                it.append(f"ds_read_b128 {ar(XF(s, tb), 4)}, v{VRX + ksl} offset:{buf * 32768 + tb * 1024}")
        for ct in range(4):
            it.append(f"ds_read_b128 {ar(128 + (s & 1) * 16 + ct * 4, 4)}, v{VRS + ksl} "
                      f"offset:{LDS_S + c * 16384 + ct * 4096}")
        return it

    def ssm_mfma(s):
        it = []
        for ct in range(4):
            for tb in range(2):
                d = vr(SACC(tb, ct), 4)
                cc = "0" if s == 0 else d
                it.append(f"v_mfma_f32_16x16x32_bf16 {d}, {ar(XF(s, tb), 4)}, "
                          f"{ar(128 + (s & 1) * 16 + ct * 4, 4)}, {cc}")
        return it

    e("s_waitcnt lgkmcnt(0)")
    e("s_add_u32 s94, s97, 0x3c6ef372")
    e("s_add_u32 s95, s97, 0x7f4a7c15")
    e("s_add_u32 s97, s97, 0x9e3779b9")
    A.vm_wait("x0", "s0")
    e("s_barrier")
    A.stamp(2)
    for r in ssm_reads(0):
        e(r)
    vper = cfg.get("ssm_fill", 5)
    for s in range(16):
        c = s >> 2
        if s == 0:
            A.push("d", dma_x(2, 2) + dma_s(2))
        if s == 4:
            A.push("d", dma_x(3, 0) + dma_s(3))
        if s == 8:
            A.drain("v")
            A.push("d", dma_bias() + dma_f(0))
        if s == 12:
            A.push("d", dma_f(1))
            A.push("v", A.record(fill_bias))
        e("s_waitcnt lgkmcnt(0)")
        if s in (3, 7, 11):
            A.drain("d")
            A.vm_wait(f"x{c + 1}", f"s{c + 1}")
            e("s_barrier")
            A.stamp(3 + c)
        rd = ssm_reads(s + 1) if s < 15 else []
        mf = ssm_mfma(s)
        nd = [3, 3, 2, 2][c]
        for k, m in enumerate(mf):
            e(m)
            if k < 3:
                for r in rd[2 * k:2 * k + 2]:
                    e(r)
            else:
                if k - 3 < nd:
                    A.pop("d")
                A.pop("v", vper)
    A.drain("d")
    A.drain("v")
    A.stamp(7)

    def touch_weights():
        e("s_lshl_b32 s3, s2, 2")
        e("s_add_u32 s3, s3, s6")
        e("s_sub_u32 s7, s3, 640")
        e("s_sub_u32 s71, s3, 832")
        e("s_cmp_lt_u32 s3, 832")
        e("s_cselect_b32 s60, s26, s28")
        e("s_cselect_b32 s61, s27, s29")
        e("s_cselect_b32 s7, s7, s71")
        e(f"s_mov_b32 s62, {512 * 1024:#x}")
        e("s_cmp_lt_u32 s3, 640")
        e("s_cselect_b32 s60, s40, s60")
        e("s_cselect_b32 s61, s41, s61")
        e("s_cselect_b32 s7, s3, s7")
        e(f"s_cselect_b32 s62, {1792 * 1024:#x}, s62")
        e("s_and_b32 s61, s61, 0xffff")
        e("s_mov_b32 s63, 0x20000")
        e(f"s_mul_i32 s7, s7, {23 * 128}")
        e("v_lshlrev_b32 v4, 7, v1")
        e("v_add_u32 v4, s7, v4")
        e("v_cmp_gt_u32 vcc, 23, v1")
        e(f"v_mov_b32 v5, {OOB:#x}")
        e("s_nop 0")
        e("v_cndmask_b32 v4, v5, v4, vcc")
        A.vmi("pf", "buffer_load_dword v253, v4, s[60:63], 0 offen")

    if cfg.get("touch", 1):
        touch_weights()
    A.push("d", dma_f(2))
    A.nop(4)
    EA = 96

    def U(pb, tau, im):
        return SACC(tau >> 2, pb + 2 * im, tau & 3)

    cur = [None, None]
    for tau in range(1, 8):
        for pb in range(2):
            dst = EA + 4 * pb + 2 * (tau & 1)
            lr, li, nli = C(pb, C_LR), C(pb, C_LI), C(pb, C_NLI)
            pr, pi = (U(pb, 0, 0), U(pb, 0, 1)) if tau == 1 else cur[pb]
            e(f"v_fma_f32 v{dst}, v{lr}, v{pr}, v{U(pb, tau, 0)}")
            e(f"v_fma_f32 v{dst + 1}, v{lr}, v{pi}, v{U(pb, tau, 1)}")
            e(f"v_fmac_f32 v{dst}, v{nli}, v{pi}")
            e(f"v_fmac_f32 v{dst + 1}, v{li}, v{pr}")
            cur[pb] = (dst, dst + 1)
        if tau in (2, 4, 6):
            A.pop("d")
    TB, AA, CC = 104, 108, 112
    for pb in range(2):
        for k in range(2):
            e(f"v_mov_b32 v{TB + 2 * pb + k}, v{cur[pb][k]}")
            e(f"v_mov_b32 v{AA + 2 * pb + k}, v{cur[pb][k]}")
    A.nop(2)
    for x in range(4):
        e(f"v_permlane16_swap_b32 v{AA + x}, v{TB + x}")
    A.nop(1)
    for pb in range(2):
        cfma(A, TB + 2 * pb, TB + 2 * pb + 1, C(pb, C_L8), C(pb, C_L8 + 1), AA + 2 * pb, AA + 2 * pb + 1)
    A.pop("d")
    for x in range(4):
        e(f"v_mov_b32 v{CC + x}, v{TB + x}")
    A.nop(2)
    for x in range(4):
        e(f"v_permlane32_swap_b32 v{CC + x}, v{TB + x}")
    A.nop(1)
    for pb in range(2):
        cfma(A, TB + 2 * pb, TB + 2 * pb + 1, C(pb, C_L16), C(pb, C_L16 + 1), CC + 2 * pb, CC + 2 * pb + 1)
    A.pop("d")
    e("v_lshlrev_b32 v4, 4, v2")
    e("s_lshl_b32 s3, s6, 8")
    e(f"s_add_u32 s3, s3, {LDS_SCR}")
    e("v_add_u32 v5, s3, v4")
    e(f"v_add_u32 v4, {LDS_SCR}, v4")
    e(f"ds_write_b128 v5, {vr(TB, 4)}")
    for pb in range(2):
        ci = VCIN + 2 * pb
        e(f"v_mul_f32 v{ci}, v{C(0, C_MA)}, v{AA + 2 * pb}")
        e(f"v_mul_f32 v{ci + 1}, v{C(0, C_MA)}, v{AA + 2 * pb + 1}")
        cfma(A, ci, ci + 1, C(pb, C_MC), C(pb, C_MC + 1), CC + 2 * pb, CC + 2 * pb + 1)
    e("s_waitcnt lgkmcnt(0)")
    A.vm_wait("f0")
    e("s_barrier")
    A.stamp(8)
    W = 96
    for w_ in range(4):
        e(f"ds_read_b128 {vr(W + 4 * w_, 4)}, v4 offset:{w_ * 256}")

    def ffn_reads(s):
        ksl = s & 3
        it = []
        for nt in range(7):
            for h in range(2):
                it.append(f"ds_read_b64_tr_b16 {ar(128 + (s & 1) * 28 + nt * 4 + 2 * h, 2)}, v{VFR} "
                          f"offset:{ksl * 7168 + h * 3584 + nt * 32}")
        return it

    for r in ffn_reads(0):
        e(r)
    e("s_lshl_b32 s3, s4, 9")
    e("v_lshlrev_b32 v4, 5, v2")
    e("v_lshl_add_u32 v4, v3, 4, v4")
    e("v_add_u32 v4, s3, v4")
    e("s_cmp_eq_u32 s6, 3")
    e("s_cselect_b32 s3, 32, 0")
    e(f"v_mov_b32 v5, {OOB:#x}")
    e("v_cmp_gt_u32 vcc, s3, v1")
    e("v_cmp_eq_u32 s[82:83], 1, v3")
    e(f"v_mov_b32 v{114}, s97")
    e(f"v_mov_b32 v{115}, s97")
    e("v_cndmask_b32 v4, v5, v4, vcc")
    e("s_waitcnt lgkmcnt(14)")
    for w_ in range(1, 4):
        for pb in range(2):
            d = W + 4 * w_ + 2 * pb
            s_ = W + 4 * (w_ - 1) + 2 * pb
            cfma(A, d, d + 1, C(pb, C_L32), C(pb, C_L32 + 1), s_, s_ + 1)
    A.drain("d")
    e(f"v_cndmask_b32 v112, v{W + 12}, v{W + 14}, s[82:83]")
    e(f"v_cndmask_b32 v113, v{W + 13}, v{W + 15}, s[82:83]")
    A.vmi("epub", f"buffer_store_dwordx4 {vr(112, 4)}, v4, s[76:79], 0 offen sc1")
    LW = A.newlab("win")
    for x in range(4):
        e(f"v_mov_b32 v{VWIN + x}, 0")
    for w_ in range(1, 4):
        e(f"s_cmp_lt_u32 s6, {w_}")
        e(f"s_cbranch_scc1 {LW}")
        for x in range(4):
            e(f"v_mov_b32 v{VWIN + x}, v{W + 4 * (w_ - 1) + x}")
    A.lab(LW)
    A.stamp(9)

    GX = 208
    GS = 240

    def gate_loads():
        def a():
            e("s_lshl_b32 s3, s4, 7")
            e("s_lshl_b32 s7, s5, 3")
            e("s_add_u32 s3, s3, s7")
            e("s_lshl_b32 s7, s6, 1")
            e("s_add_u32 s84, s3, s7")
        A.group(a)
        e("v_lshrrev_b32 v4, 5, v1")
        e("v_add_u32 v4, s84, v4")
        e("v_lshlrev_b32 v4, 10, v4")
        e("v_and_b32 v5, 31, v1")
        e("v_lshlrev_b32 v5, 4, v5")
        e("v_add_u32 v4, v4, v5")
        A.vmi("gate", f"global_load_dwordx4 {vr(GX, 4)}, v4, s[16:17]")
        A.vmi("gate", f"global_load_dwordx4 {vr(GX + 4, 4)}, v4, s[16:17] offset:512")
        A.vmi("gate", f"global_load_dwordx4 {vr(GX + 8, 4)}, v5, s[44:45]")
        A.vmi("gate", f"global_load_dwordx4 {vr(GX + 12, 4)}, v5, s[44:45] offset:512")

    VC, VW, VRC, VRW, VB = 232, 233, 234, 235, 239
    VRC2, VRW2 = 224, 225

    def BREG(t):
        if t < 4:
            return ("a", 192 + 16 * t)
        if t < 12:
            return ("a", 16 * (t - 4))
        if t < 16:
            return ("a", 128 + 16 * (t - 12))
        return ("v", 128 + 16 * (t - 16))

    def breg(t, off, n):
        f, b = BREG(t)
        return (ar if f == "a" else vr)(b + off, n)

    def tile_patterns():
        e("v_lshrrev_b32 v4, 2, v1")
        e("v_lshlrev_b32 v4, 10, v4")
        e("v_sub_u32 v5, 0, v3")
        e("v_xor_b32 v5, v5, v1")
        e("v_and_b32 v5, 3, v5")
        e(f"v_lshl_add_u32 v{VC}, v5, 4, v4")
        e("v_lshrrev_b32 v4, 3, v1")
        e("v_lshlrev_b32 v4, 10, v4")
        e("v_lshrrev_b32 v5, 1, v1")
        e("v_xor_b32 v5, v5, v3")
        e("v_and_b32 v5, 3, v5")
        e("v_lshlrev_b32 v5, 1, v5")
        e("v_and_b32 v6, 1, v1")
        e("v_add_u32 v5, v5, v6")
        e(f"v_lshl_add_u32 v{VW}, v5, 4, v4")
        e("v_lshrrev_b32 v4, 2, v2")
        e("v_sub_u32 v5, 0, v4")
        e("v_xor_b32 v5, v5, v3")
        e("v_and_b32 v5, 3, v5")
        e("v_lshlrev_b32 v5, 4, v5")
        e("v_lshl_add_u32 v5, v2, 6, v5")
        e(f"v_add_u32 v{VRC}, s68, v5")
        e("v_lshl_add_u32 v4, v3, 2, v4")
        e("v_lshlrev_b32 v4, 7, v4")
        e("v_and_b32 v5, 3, v2")
        e("v_lshl_add_u32 v4, v5, 3, v4")
        e("v_add_u32 v4, s68, v4")
        e("v_lshrrev_b32 v5, 3, v2")
        e("v_lshl_add_u32 v5, v3, 1, v5")
        for db in range(4):
            e(f"v_xor_b32 v6, {db}, v5")
            e("v_and_b32 v6, 3, v6")
            e(f"v_lshl_add_u32 v{VRW + db}, v6, 5, v4")

        e(f"v_add_u32 v{VRC2}, {LDS_HI}, v{VRC}")
        for db in range(4):
            e(f"v_add_u32 v{VRW2 + db}, {LDS_HI}, v{VRW + db}")

        def sc():
            e("s_mul_i32 s90, s6, 22")
            if cfg.get("map2", "8x4") == "8x4":
                e("s_and_b32 s3, s2, 1")
                e("s_lshl_b32 s3, s3, 2")
                e("s_lshr_b32 s7, s2, 3")
                e("s_and_b32 s7, s7, 3")
                e("s_add_u32 s89, s3, s7")
                e("s_lshr_b32 s3, s2, 1")
                e("s_and_b32 s3, s3, 3")
                e("s_lshl_b32 s3, s3, 3")
                e("s_lshr_b32 s7, s2, 5")
                e("s_add_u32 s92, s3, s7")
            else:
                e("s_and_b32 s3, s2, 7")
                e("s_lshl_b32 s3, s3, 2")
                e("s_lshr_b32 s7, s2, 6")
                e("s_add_u32 s92, s3, s7")
                e("s_lshr_b32 s89, s2, 3")
                e("s_and_b32 s89, s89, 7")
            e("s_mov_b32 s64, s92")
            e("s_lshl_b32 s3, s90, 5")
            e("s_lshl_b32 s7, s89, 16")
            e("s_add_u32 s66, s3, s7")
            e("s_sub_u32 s3, s90, 32")
            e("s_lshl_b32 s3, s3, 15")
            e("s_lshl_b32 s7, s89, 7")
            e("s_add_u32 s65, s3, s7")
            e("s_sub_u32 s90, 32, s90")
            e("s_mov_b32 s101, 0x2000")
            e("s_mov_b32 s62, 0x1c0000")
            e("s_mov_b32 s63, 0x20000")
            e("s_and_b32 s27, s27, 0xffff")
            e("s_and_b32 s29, s29, 0xffff")
            e("s_and_b32 s41, s41, 0xffff")
        A.group(sc)

    def tile_dma(t, slot):
        cp = 26 + 2 * (t & 1)

        def first():
            e(f"s_add_u32 s7, s66, {64 * (t >> 1)}")
            e(f"s_add_u32 s71, s65, {t * 32768}")
            e(f"s_add_u32 m0, s68, {LDS_RING[slot]}")
            e(f"s_cmp_gt_i32 s90, {t}")
            e(f"s_cselect_b32 s60, s{cp}, s40")
            e(f"s_cselect_b32 s61, s{cp + 1}, s41")
            e("s_cselect_b32 s70, s7, s71")
            e("s_cselect_b64 vcc, -1, 0")
            e("s_cselect_b32 s100, 0x4000, s101")
            e(f"v_cndmask_b32 v{VB}, v{VW}, v{VC}, vcc")
            A.vmi(f"b{t}", f"buffer_load_dwordx4 v{VB}, s[60:63], s70 offen lds")

        def nxt():
            e("s_add_u32 m0, m0, 1024")
            e("s_add_u32 s70, s70, s100")
            A.vmi(f"b{t}", f"buffer_load_dwordx4 v{VB}, s[60:63], s70 offen lds")

        def fn():
            A.group(first)
            for _ in range(3):
                A.group(nxt)
        return A.record(fn)

    def tile_read(t, slot):
        hi = slot >= 4
        base = LDS_RING[slot] - (LDS_HI if hi else 0)
        vc, vw = (VRC2, VRW2) if hi else (VRC, VRW)

        def body():
            L1, L2 = A.newlab("tr"), A.newlab("tj")
            A.vm_wait(f"b{t}")
            e(f"s_cmp_gt_i32 s90, {t}")
            e(f"s_cbranch_scc0 {L1}")
            for db in range(4):
                e(f"ds_read_b128 {breg(t, 4 * db, 4)}, v{vc} offset:{base + db * 1024}")
            e(f"s_branch {L2}")
            A.lab(L1)
            for db in range(4):
                for hh in range(2):
                    e(f"ds_read_b64_tr_b16 {breg(t, 4 * db + 2 * hh, 2)}, v{vw + db} "
                      f"offset:{base + hh * 2048}")
            A.lab(L2)
        return A.record(lambda: A.group(body))

    def lgkm0():
        return A.record(lambda: e("s_waitcnt lgkmcnt(0)"))

    def gate_finish():
        A.vm_wait("gate")
        e(f"v_dot2_f32_bf16 v{GS}, v{GX}, v{GX + 8}, 0")
        e(f"v_dot2_f32_bf16 v{GS + 1}, v{GX + 1}, v{GX + 9}, 0")
        for d in range(2, 8):
            e(f"v_dot2_f32_bf16 v{GS + (d & 1)}, v{GX + d}, v{GX + 8 + d}, v{GS + (d & 1)}")
        A.nop(3)
        e(f"v_add_f32 v{GS}, v{GS}, v{GS + 1}")
        for ctl in ("quad_perm:[1,0,3,2]", "quad_perm:[2,3,0,1]", "row_half_mirror", "row_mirror"):
            A.nop(2)
            e(f"v_add_f32_dpp v{GS}, v{GS}, v{GS} {ctl} row_mask:0xf bank_mask:0xf")
        e(f"v_mov_b32 v{GS + 1}, v{GS}")
        A.nop(2)
        e(f"v_permlane16_swap_b32 v{GS + 1}, v{GS}")
        A.nop(1)
        e(f"v_add_f32 v{GS}, v{GS}, v{GS + 1}")
        e(f"v_cvt_pk_bf16_f32 v{GS}, v{GS}, v{GS}")
        e(f"v_lshlrev_b32 v{GS}, 16, v{GS}")
        e(f"v_mul_f32 v{GS}, s80, v{GS}")
        e(f"v_sub_f32 v{GS}, 0, v{GS}")
        e(f"v_exp_f32 v{GS}, v{GS}")
        A.nop(1)
        e(f"v_add_f32 v{GS}, 1.0, v{GS}")
        e(f"v_rcp_f32 v{GS}, v{GS}")
        A.nop(1)
        e(f"v_cvt_pk_bf16_f32 v{GS}, v{GS}, v{GS}")
        e(f"v_lshlrev_b32 v{GS + 2}, 16, v{GS}")
        e(f"v_sub_f32 v{GS + 3}, 1.0, v{GS + 2}")
        e(f"v_cvt_pk_bf16_f32 v{GS + 3}, v{GS + 3}, v{GS + 3}")
        e(f"v_lshlrev_b32 v{GS + 3}, 16, v{GS + 3}")
        e("v_lshrrev_b32 v4, 5, v1")
        e("v_add_u32 v4, s84, v4")
        e("v_lshlrev_b32 v4, 3, v4")
        e(f"v_add_u32 v4, {G_OFF}, v4")
        e("v_and_b32 v5, 31, v1")
        e("v_cmp_eq_u32 vcc, 0, v5")
        e(f"v_mov_b32 v5, {OOB:#x}")
        A.nop(1)
        e("v_cndmask_b32 v4, v5, v4, vcc")
        A.vmi("gst", f"buffer_store_dwordx2 {vr(GS + 2, 2)}, v4, s[56:59], 0 offen{STF}")

    EM = 96
    EMR = [128, 136, 144, 96]

    def e_loads():
        A.group(lambda: (e("s_sub_u32 s3, s4, 1"), e("v_sub_u32 v4, s3, v3")))
        e("v_lshlrev_b32 v4, 9, v4")
        e("v_lshl_add_u32 v4, v2, 5, v4")
        for m in range(4):
            if m:
                e("v_subrev_u32 v4, 2048, v4")
            e("v_and_b32 v7, 0x7fffffff, v4")
            A.vmi("eld", f"buffer_load_dwordx4 {vr(EMR[m], 4)}, v7, s[76:79], 0 offen sc1")
            A.vmi("eld", f"buffer_load_dwordx4 {vr(EMR[m] + 4, 4)}, v7, s[76:79], 0 offen offset:16 sc1")

    nf = cfg.get("ffn_tiles", 6)
    fslots = [0, 1, 4, 5, 6, 7, 2, 3][:nf]
    SLOT = {t: fslots[t] for t in range(nf)}
    early = [t for t in range(nf) if fslots[t] < 2]
    mid = [t for t in range(nf) if fslots[t] >= 4]
    late = [t for t in range(nf) if fslots[t] in (2, 3)]
    q0 = dma_f(3) + A.record(tile_patterns)
    for t in early:
        q0 += tile_dma(t, SLOT[t])
    q0 += A.record(gate_loads)
    sched = {0: q0}
    nmid0 = cfg.get("mid_before_e", 2)
    for t in mid[:nmid0]:
        sched.setdefault(8, []).extend(tile_dma(t, SLOT[t]))
    sched.setdefault(cfg.get("e_step", 11), []).extend(A.record(e_loads))
    for t in mid[nmid0:] + late:
        sched.setdefault(max(12, cfg.get("e_step", 11)), []).extend(tile_dma(t, SLOT[t]))

    def ffn_mfma(s):
        it = []
        for nt in range(7):
            for tb in range(2):
                d = vr(FACC(nt, tb), 4)
                cc = vr(VBIAS + 4 * nt, 4) if s == 0 else d
                it.append(f"v_mfma_f32_16x16x32_bf16 {d}, {ar(128 + (s & 1) * 28 + nt * 4, 4)}, "
                          f"{ar(XF(s, tb), 4)}, {cc}")
        return it

    def set_vfr(c_from, c_to):
        delta = LDS_F[c_to] - LDS_F[c_from]
        if delta >= 0:
            e(f"v_add_u32 v{VFR}, {delta}, v{VFR}")
        else:
            e(f"v_subrev_u32 v{VFR}, {-delta}, v{VFR}")

    since_vm = 99
    gap = cfg.get("vm_gap", 4)
    for s in range(16):
        if s in sched:
            A.push("f", sched[s])
        e("s_waitcnt lgkmcnt(0)")
        if s in (3, 7, 11):
            c = (s + 1) >> 2
            A.vm_wait(f"f{c}")
            e("s_barrier")
            set_vfr(c - 1, c)
            A.stamp(10 + c - 1)
        if s == 15:
            e("s_barrier")
        rd = ffn_reads(s + 1) if s < 15 else []
        mf = ffn_mfma(s)
        for k, m in enumerate(mf):
            e(m)
            since_vm += 1
            slots = 2
            if k < 7 and rd:
                e(rd[2 * k])
                e(rd[2 * k + 1])
                slots = 0
            if A.head_is_vmem("f"):
                if since_vm >= gap:
                    A.pop("f")
                    since_vm = 0
            else:
                while slots > 0 and A.qlen("f") and not A.head_is_vmem("f"):
                    A.pop("f")
                    slots -= 1
    A.drain("f")
    A.stamp(13)

    VA16, VA8 = 248, 249
    e("s_lshl_b32 s3, s4, 1")
    e("s_lshr_b32 s7, s6, 1")
    e("s_add_u32 s3, s3, s7")
    e(f"s_mul_i32 s91, s3, {AF_RT}")
    e("s_and_b32 s7, s6, 1")
    e("s_lshl_b32 s7, s7, 11")
    e("s_add_u32 s91, s91, s7")
    e("s_lshr_b32 s3, s5, 1")
    e("s_mul_i32 s3, s3, 7")
    e("s_add_u32 s3, s3, 32")
    e("s_and_b32 s7, s5, 1")
    e("s_lshl_b32 s92, s7, 2")
    e("s_add_u32 s92, s92, s3")
    e("s_lshl_b32 s92, s92, 12")
    e("s_add_u32 s92, s92, s91")
    e("s_add_u32 s93, s3, 3")
    e("s_lshl_b32 s93, s93, 12")
    e("s_add_u32 s93, s93, s91")
    e("s_lshl_b32 s7, s7, 3")
    e(f"v_lshlrev_b32 v{VA16}, 4, v1")
    e(f"v_add_u32 v{VA8}, s7, v{VA16}")
    PK = 112
    groups = [(sp, tb) for sp in range(4) for tb in range(2)]

    def ffn_group(gi):
        sp, tb = groups[gi]
        tiles = [2 * sp, 2 * sp + 1] if sp < 3 else [6]
        pk = PK + 4 * (gi & 1)
        for ti, nt in enumerate(tiles):
            a = FACC(nt, tb)
            for r in range(4):
                e(f"v_max_f32 v{a + r}, 0, v{a + r}")
            for h in range(2):
                e(f"v_pk_mul_f32 {vr(a + 2 * h, 2)}, {vr(a + 2 * h, 2)}, {vr(a + 2 * h, 2)}")
            e(f"v_cvt_pk_bf16_f32 v{pk + 2 * ti}, v{a}, v{a + 1}")
            e(f"v_cvt_pk_bf16_f32 v{pk + 2 * ti + 1}, v{a + 2}, v{a + 3}")
        off = f" offset:{tb * 1024}" if tb else ""
        if sp < 3:
            if sp and tb == 0:
                e("s_add_u32 s92, s92, 4096")
            A.vmi("hst", f"buffer_store_dwordx4 {vr(pk, 4)}, v{VA16}, s[56:59], s92 offen{off}{STF}")
        else:
            A.vmi("hst", f"buffer_store_dwordx2 {vr(pk, 2)}, v{VA8}, s[56:59], s93 offen{off}{STF}")

    MK = 104
    R = 120

    def masks():
        for m in range(4):
            e(f"v_add_u32 v4, {4 * m}, v3")
            e("v_cmp_gt_u32 vcc, s4, v4")
            A.nop(1)
            e(f"v_cndmask_b32 v{MK + m}, 0, -1, vcc")

    def e_check():
        LCK, LOK = A.newlab("echk"), A.newlab("eok")
        e("s_mov_b32 s96, 0x20000")
        A.vm_wait("eld")
        A.lab(LCK)
        e("v_mov_b32 v4, 0")
        for m in range(4):
            e(f"v_xor_b32 v5, s97, v{EMR[m] + 2}")
            e(f"v_xor_b32 v7, s97, v{EMR[m] + 6}")
            e("v_or_b32 v5, v5, v7")
            e(f"v_and_or_b32 v4, v5, v{MK + m}, v4")
        e("v_cmp_ne_u32 vcc, 0, v4")
        A.nop(4)
        e("s_cmp_eq_u64 vcc, 0")
        e(f"s_cbranch_scc1 {LOK}")
        e("s_sub_u32 s96, s96, 1")
        e("s_cmp_eq_u32 s96, 0")
        e(f"s_cbranch_scc1 {LOK}")
        e("s_sleep 4")
        for it in A.record(e_loads):
            for op in it:
                e(op[1] if op[0] == "e" else op[2])
        e("s_waitcnt vmcnt(0)")
        e(f"s_branch {LCK}")
        A.lab(LOK)

    def carry():
        for m in (2, 1, 0):
            for pb in range(2):
                d = EMR[m] + 4 * pb
                s_ = EMR[m + 1] + 4 * pb
                cfma(A, d, d + 1, C(pb, C_L4), C(pb, C_L4 + 1), s_, s_ + 1)
        for pb in range(2):
            cmul(A, R + 2 * pb, R + 2 * pb + 1, C(pb, C_LQ), C(pb, C_LQ + 1), EMR[0] + 4 * pb, EMR[0] + 4 * pb + 1)
        for swap in ("v_permlane16_swap_b32", "v_permlane32_swap_b32"):
            for x in range(4):
                e(f"v_mov_b32 v{R + 4 + x}, v{R + x}")
            A.nop(1)
            for x in range(4):
                e(f"{swap} v{R + 4 + x}, v{R + x}")
            A.nop(1)
            for x in range(4):
                e(f"v_add_f32 v{R + x}, v{R + x}, v{R + 4 + x}")
        for pb in range(2):
            cfma(A, VWIN + 2 * pb, VWIN + 2 * pb + 1, C(pb, C_L32W), C(pb, C_L32W + 1), R + 2 * pb, R + 2 * pb + 1)
        for pb in range(2):
            cfma(A, VCIN + 2 * pb, VCIN + 2 * pb + 1, C(pb, C_L8Q), C(pb, C_L8Q + 1),
                 VWIN + 2 * pb, VWIN + 2 * pb + 1)

    def recurrence():
        for tau in range(8):
            for pb in range(2):
                lr, li, nli = C(pb, C_LR), C(pb, C_LI), C(pb, C_NLI)
                if tau == 0:
                    pr, pi = VCIN + 2 * pb, VCIN + 2 * pb + 1
                else:
                    pr, pi = U(pb, tau - 1, 0), U(pb, tau - 1, 1)
                e(f"v_fmac_f32 v{U(pb, tau, 0)}, v{lr}, v{pr}")
                e(f"v_fmac_f32 v{U(pb, tau, 1)}, v{lr}, v{pi}")
                e(f"v_fmac_f32 v{U(pb, tau, 0)}, v{nli}, v{pi}")
                e(f"v_fmac_f32 v{U(pb, tau, 1)}, v{li}, v{pr}")

    TR, TI, CV = [128, 136], [132, 140], 144
    RD = [148, 96, 100, 104]

    def pack_store():
        e("v_lshrrev_b32 v4, 3, v2")
        e("v_mul_u32_u24 v4, 272, v4")
        e("v_lshl_add_u32 v4, v3, 6, v4")
        e("v_and_b32 v5, 7, v2")
        e("v_lshl_add_u32 v4, v5, 1, v4")

        def a():
            e("s_mul_i32 s3, s6, 4352")
            e(f"s_add_u32 s3, s3, {LDS_T}")
            e("v_add_u32 v4, s3, v4")
            e("v_mul_u32_u24 v5, 272, v3")
            e("v_lshl_add_u32 v5, v2, 4, v5")
            e("v_add_u32 v5, s3, v5")
            e("s_lshl_b32 s3, s5, 13")
            e("s_add_u32 s82, s3, s91")
            e("s_add_u32 s83, s82, 4096")
        A.group(a)
        for tb in range(2):
            for pb in range(2):
                c2 = vr(C(pb, C_C2), 2)
                for h in range(2):
                    P = vr(SACC(tb, pb, 2 * h), 2)
                    Q = vr(SACC(tb, 2 + pb, 2 * h), 2)
                    tr_, ti_ = vr(TR[pb] + 2 * h, 2), vr(TI[pb] + 2 * h, 2)
                    e(f"v_pk_mul_f32 {tr_}, {P}, {c2} op_sel_hi:[1,0]")
                    e(f"v_pk_mul_f32 {ti_}, {Q}, {c2} op_sel_hi:[1,0]")
                    e(f"v_pk_fma_f32 {tr_}, {Q}, {c2}, {tr_} op_sel:[0,1,0] op_sel_hi:[1,1,1] "
                      f"neg_lo:[1,0,0] neg_hi:[1,0,0]")
                    e(f"v_pk_fma_f32 {ti_}, {P}, {c2}, {ti_} op_sel:[0,1,0] op_sel_hi:[1,1,1]")
            for part in range(2):
                fo = (tb * 2 + part) * 1088
                for r in range(4):
                    cv = CV + (r & 1) + 2 * (part & 1)
                    if part == 0:
                        e(f"v_cvt_pk_bf16_f32 v{cv}, v{TR[0] + r}, v{TR[1] + r}")
                    else:
                        e(f"v_cvt_pk_bf16_f32 v{cv}, -v{TI[0] + r}, -v{TI[1] + r}")
                    e(f"ds_write_b16 v4, v{cv} offset:{fo + r * 16}")
                    e(f"ds_write_b16_d16_hi v4, v{cv} offset:{fo + r * 16 + 544}")
            e("s_waitcnt lgkmcnt(0)")
            for part in range(2):
                e(f"ds_read_b128 {vr(RD[tb * 2 + part], 4)}, v5 offset:{(tb * 2 + part) * 1088}")
            if tb == 1:
                for part in range(2):
                    A.vmi("sst", f"buffer_store_dwordx4 {vr(RD[part], 4)}, v{VA16}, s[56:59], "
                                 f"s{82 + part} offen{STF}")
        e("s_waitcnt lgkmcnt(0)")
        for part in range(2):
            A.vmi("sst", f"buffer_store_dwordx4 {vr(RD[2 + part], 4)}, v{VA16}, s[56:59], "
                         f"s{82 + part} offen offset:1024{STF}")

    per = cfg.get("tail_per", 40)
    A.push("b", A.record(gate_finish) + A.record(masks))
    for t in range(nf):
        A.push("b", tile_read(t, SLOT[t]))
    ffn_group(0)
    A.pop("b", per)
    ffn_group(1)
    A.pop("b", per)
    ffn_group(2)
    A.drain("b")
    A.stamp(14)
    e_check()
    A.stamp(15)
    A.push("b", A.record(carry) + A.record(recurrence) + A.record(pack_store))
    for gi in range(3, 8):
        ffn_group(gi)
        A.pop("b", per)
    A.drain("b")
    A.stamp(16)

    OSF = cfg.get("osf", " sc1")
    nd = cfg.get("drain_tiles", 16)
    e("s_waitcnt lgkmcnt(0)")
    free = [0, 1, 2, 3, 4, 5, 6, 7]
    nxt_dma = nf
    pend = []

    def issue_tiles(limit):
        nonlocal nxt_dma
        while free and nxt_dma < limit:
            sl = free.pop(0)
            SLOT[nxt_dma] = sl
            A.push("t", tile_dma(nxt_dma, sl))
            A.drain("t")
            pend.append(nxt_dma)
            nxt_dma += 1

    def land_tile(refill=True):
        t = pend.pop(0)
        A.push("t", tile_read(t, SLOT[t]) + lgkm0())
        A.drain("t")
        free.append(SLOT[t])
        return t

    issue_tiles(min(nd, nf + cfg.get("pre_flag_tiles", 8)))
    e("s_lshl_b32 s3, s4, 8")
    e("s_lshl_b32 s7, s5, 2")
    e("s_add_u32 s3, s3, s7")
    e(f"s_add_u32 s3, s3, {FL_OFF}")
    e("s_cmp_eq_u32 s6, 0")
    e("s_cselect_b32 s7, 1, 0")
    e("v_cmp_gt_u32 vcc, s7, v1")
    e("v_mov_b32 v4, s3")
    e(f"v_mov_b32 v5, {OOB:#x}")
    e("v_mov_b32 v6, s95")
    e("v_cndmask_b32 v4, v5, v4, vcc")
    A.vm_wait("hst", "sst", "gst")
    e("s_barrier")
    A.vmi("flag", "buffer_store_dword v6, v4, s[56:59], 0 offen sc1")
    A.stamp(17)
    while pend:
        land_tile()
        issue_tiles(nd)
    e("s_barrier")
    free = [0, 1, 2, 3]
    A.stamp(23)

    ACC0, AR0, DA = 16, 80, 3
    VXE, VGE, VDS, VB2 = 224, 240, 248, 250
    VL = 8

    def ACC(db, tb4):
        return ACC0 + (db * 4 + tb4) * 4

    e("s_mov_b32 s92, s64")
    e(f"s_mul_i32 s93, s92, {AF_RT}")
    e(f"s_mul_i32 s3, s6, {22 * 4096}")
    e("s_add_u32 s93, s93, s3")
    e(f"v_lshlrev_b32 v{VL}, 4, v1")
    e("s_lshr_b32 s3, s92, 1")
    e("s_lshl_b32 s3, s3, 8")
    e(f"s_add_u32 s3, s3, {FL_OFF}")
    e("v_and_b32 v4, 15, v1")
    e("v_lshl_add_u32 v9, v4, 2, s3")
    LP, LPO = A.newlab("fpoll"), A.newlab("fok")
    e("s_mov_b32 s96, 0x20000")
    A.lab(LP)
    e("buffer_load_dword v10, v9, s[56:59], 0 offen sc1")
    e("s_waitcnt vmcnt(0)")
    e("v_cmp_ne_u32 vcc, s95, v10")
    A.nop(4)
    e("s_cmp_eq_u64 vcc, 0")
    e(f"s_cbranch_scc1 {LPO}")
    e("s_sub_u32 s96, s96, 1")
    e("s_cmp_eq_u32 s96, 0")
    e(f"s_cbranch_scc1 {LPO}")
    e("s_sleep 2")
    e(f"s_branch {LP}")
    A.lab(LPO)
    A.vm = []
    A.stamp(24)

    def a_loads(t):
        b = AR0 + 16 * (t % DA)
        return [(f"a{t}", f"buffer_load_dwordx4 {vr(b + 4 * x, 4)}, v{VL}, s[56:59], s93 offen"
                          f"{f' offset:{x * 1024}' if x else ''} sc1") for x in range(4)]

    for t in range(DA - 1):
        for tag, ins in a_loads(t):
            A.vmi(tag, ins)
        e("s_add_u32 s93, s93, 4096")
    e("s_cmp_eq_u32 s92, 31")
    e("s_cselect_b32 s3, 1, 0")
    e("s_cmp_eq_u32 s89, 7")
    e("s_cselect_b32 s3, s3, 0")
    e("s_cmp_eq_u32 s6, 0")
    e("s_cselect_b32 s3, s3, 0")
    e("v_cmp_gt_u32 vcc, s3, v1")
    e(f"v_mov_b32 v4, {N_OFF}")
    e(f"v_mov_b32 v5, {OOB:#x}")
    e("v_mov_b32 v6, s94")
    e("v_cndmask_b32 v4, v5, v4, vcc")
    A.vmi("yst", "buffer_store_dword v6, v4, s[56:59], 0 offen sc1")
    e("v_lshrrev_b32 v6, 2, v2")
    e("v_lshlrev_b32 v6, 3, v6")
    e("v_and_b32 v7, 3, v2")
    e("v_add_u32 v6, v6, v7")
    e("v_mul_u32_u24 v12, 272, v6")
    e("v_lshl_add_u32 v12, v3, 4, v12")
    e(f"s_mul_i32 s3, s6, {RSTR}")
    e(f"s_add_u32 s3, s3, {LDS_R}")
    e("v_add_u32 v13, s3, v12")
    e(f"v_add_u32 v12, {LDS_R + 4 * RSTR}, v12")

    def ep_loads():
        def a():
            e("s_lshl_b32 s3, s92, 6")
            e("s_lshl_b32 s7, s6, 4")
            e("s_add_u32 s3, s3, s7")
            e("v_add_u32 v14, s3, v3")
            e("s_lshl_b32 s7, s89, 7")
            e("v_lshl_add_u32 v10, v2, 3, s7")
        A.group(a)
        e("v_lshlrev_b32 v9, 10, v14")
        e("v_add_u32 v9, v9, v10")
        e("v_lshlrev_b32 v11, 3, v14")
        e(f"v_add_u32 v11, {G_OFF}, v11")
        e("s_mov_b32 s84, 0")
        for it in range(4):
            if it:
                e("s_add_u32 s84, s84, 4096")
            A.vmi("ep", f"buffer_load_dwordx2 {vr(VXE + 2 * it, 2)}, v9, s[8:11], s84 offen")
        for it in range(4):
            A.vmi("ep", f"buffer_load_dwordx2 {vr(VGE + 2 * it, 2)}, v11, s[56:59], 0 offen offset:{it * 32} sc1")
        A.vmi("ep", f"global_load_dwordx2 {vr(VDS, 2)}, v10, s[32:33]")
        A.vmi("ep", f"global_load_dwordx2 {vr(VB2, 2)}, v10, s[42:43]")
        srd(A, 12, 46, 47, 2048 * 2048)

    A.push("ep", A.record(ep_loads))

    def mfmas(t, zero):
        b = AR0 + 16 * (t % DA)
        it = []
        for db in range(4):
            for tb4 in range(4):
                d = vr(ACC(db, tb4), 4)
                cc = "0" if zero else d
                it.append(f"v_mfma_f32_16x16x32_bf16 {d}, {breg(t, 4 * db, 4)}, {vr(b + 4 * tb4, 4)}, {cc}")
        return it

    def dump(vaddr):
        for db in range(4):
            for tb4 in range(4):
                ro = 32 * (tb4 >> 1) + 4 * (tb4 & 1)
                e(f"ds_write_b128 v{vaddr}, {vr(ACC(db, tb4), 4)} offset:{ro * 272 + db * 64}")

    def step(t, zero):
        ld = a_loads(t + DA - 1) if t + DA - 1 < 22 else []
        li = 0
        for k, m in enumerate(mfmas(t, zero)):
            e(m)
            if (k & 1) and li < len(ld):
                A.vmi(*ld[li])
                li += 1
            elif not ld and nxt_dma >= 22 and not pend:
                A.pop("ep", 2)
        if ld:
            e("s_add_u32 s93, s93, 4096")

    for t in range(22):
        while pend and pend[0] <= t + 1:
            land_tile()
        if len(pend) >= cfg.get("g2_inflight", 2):
            land_tile()
        if t >= 1:
            issue_tiles(min(22, nxt_dma + 1))
        assert t not in pend and t < nxt_dma
        A.vm_wait(f"a{t}")
        if t in (0, 5, 10, 15, 20):
            A.stamp(25 + t // 5)
        if t == 10:
            LN, LJ = A.newlab("nrm"), A.newlab("join")
            e("s_cmp_eq_u32 s6, 1")
            e(f"s_cbranch_scc0 {LN}")
            saved = list(A.vm)
            savedq = [list(x) for x in A.q.get("ep", [])]
            A.nop(8)
            dump(12)
            e("s_waitcnt lgkmcnt(0)")
            step(t, True)
            after = list(A.vm)
            e(f"s_branch {LJ}")
            A.lab(LN)
            A.vm = list(saved)
            A.q["ep"] = savedq
            step(t, False)
            assert A.vm == after
            A.lab(LJ)
        else:
            step(t, t == 0)
    A.drain("ep")
    A.stamp(30)
    A.nop(4)
    dump(13)
    e("s_lshl_b32 s3, s6, 4")
    e("v_add_u32 v6, s3, v3")
    e("v_mul_u32_u24 v6, 272, v6")
    e("v_lshl_add_u32 v6, v2, 4, v6")
    e(f"v_add_u32 v6, {LDS_R}, v6")
    e(f"v_add_u32 v7, {3 * RSTR}, v6")
    A.vm_wait("ep")
    DS, B2 = 96, 100
    for k, src in ((DS, VDS), (B2, VB2)):
        e(f"v_lshlrev_b32 v{k}, 16, v{src}")
        e(f"v_and_b32 v{k + 1}, 0xffff0000, v{src}")
        e(f"v_lshlrev_b32 v{k + 2}, 16, v{src + 1}")
        e(f"v_and_b32 v{k + 3}, 0xffff0000, v{src + 1}")
    e("v_lshlrev_b32 v9, 11, v14")
    e("s_lshl_b32 s3, s89, 8")
    e("v_lshl_add_u32 v10, v2, 4, s3")
    e("v_add_u32 v9, v9, v10")
    for it in range(4):
        X = 104 + 8 * it
        xs = VXE + 2 * it
        e(f"v_lshlrev_b32 v{X}, 16, v{xs}")
        e(f"v_and_b32 v{X + 1}, 0xffff0000, v{xs}")
        e(f"v_lshlrev_b32 v{X + 2}, 16, v{xs + 1}")
        e(f"v_and_b32 v{X + 3}, 0xffff0000, v{xs + 1}")
        for h in range(2):
            e(f"v_pk_mul_f32 {vr(X + 2 * h, 2)}, {vr(X + 2 * h, 2)}, {vr(DS + 2 * h, 2)}")
        e(f"v_cvt_pk_bf16_f32 v{X + 4}, v{X}, v{X + 1}")
        e(f"v_cvt_pk_bf16_f32 v{X + 5}, v{X + 2}, v{X + 3}")
        e(f"v_lshlrev_b32 v{X}, 16, v{X + 4}")
        e(f"v_and_b32 v{X + 1}, 0xffff0000, v{X + 4}")
        e(f"v_lshlrev_b32 v{X + 2}, 16, v{X + 5}")
        e(f"v_and_b32 v{X + 3}, 0xffff0000, v{X + 5}")
    e("s_waitcnt lgkmcnt(0)")
    e("s_barrier")
    A.stamp(31)
    P0 = 16
    for it in range(4):
        for b in range(5):
            base, o = (6, b * RSTR) if b < 3 else (7, (b - 3) * RSTR)
            e(f"ds_read_b128 {vr(P0 + (it * 5 + b) * 4, 4)}, v{base} offset:{o + it * 4 * 272}")
    e("s_mov_b32 s84, 0")
    for it in range(4):
        X = 104 + 8 * it
        P = [P0 + (it * 5 + b) * 4 for b in range(5)]
        g, omg = VGE + 2 * it, VGE + 2 * it + 1
        e(f"s_waitcnt lgkmcnt({15 - 5 * it})")
        for h in range(2):
            o = 2 * h
            e(f"v_pk_add_f32 {vr(X + o, 2)}, {vr(X + o, 2)}, {vr(P[0] + o, 2)}")
            e(f"v_pk_add_f32 {vr(P[1] + o, 2)}, {vr(P[1] + o, 2)}, {vr(B2 + o, 2)}")
            e(f"v_pk_add_f32 {vr(X + o, 2)}, {vr(X + o, 2)}, {vr(P[4] + o, 2)}")
            e(f"v_pk_add_f32 {vr(P[2] + o, 2)}, {vr(P[2] + o, 2)}, {vr(P[3] + o, 2)}")
        for h in range(2):
            o = 2 * h
            e(f"v_pk_add_f32 {vr(P[1] + o, 2)}, {vr(P[1] + o, 2)}, {vr(P[2] + o, 2)}")
        for r in range(4):
            e(f"v_mul_f32 v{X + r}, v{g}, v{X + r}")
        for r in range(4):
            e(f"v_fmac_f32 v{X + r}, v{omg}, v{P[1] + r}")
        if it:
            e("s_add_u32 s84, s84, 8192")
        A.vmi("ost", f"buffer_store_dwordx4 {vr(X, 4)}, v9, s[12:15], s84 offen{OSF}")
    A.stamp(32)
    if A.stamps:
        A.vm_all()
    A.stamp(33, True)
    A.stamp_flush(0, 56)
    A.lab(END)
    e("s_endpgm")


def kd(name, vgpr, accum, sgpr=102):
    return f""".amdhsa_kernel {name}
  .amdhsa_next_free_vgpr {vgpr}
  .amdhsa_next_free_sgpr {sgpr}
  .amdhsa_accum_offset {accum}
  .amdhsa_group_segment_fixed_size 0
  .amdhsa_kernarg_size 144
  .amdhsa_user_sgpr_count 2
  .amdhsa_user_sgpr_kernarg_segment_ptr 1
  .amdhsa_system_sgpr_workgroup_id_x 1
  .amdhsa_float_denorm_mode_32 3
.end_amdhsa_kernel
"""


HEADER = open("cdna_kernels/" + KN[:-7] + ".s.ref").read().split("; Override launch")[0]


def generate(cfg):
    out = [HEADER.rstrip("\n")]
    out.append("; @launch grid=(256,1,1) block=(256,1,1) lds=163840")
    out.append('.amdgcn_target "amdgcn-amd-amdhsa--gfx950"')
    out.append(".text")
    for name, fn in ((KN, gen_k1),):
        A = Asm()
        A.stamps = bool(cfg.get("stamps"))
        fn(A, cfg)
        out.append(f".globl {name}")
        out.append(".p2align 8")
        out.append(f".type {name},@function")
        out.append(f"{name}:")
        out.extend(A.L)
    out.append('.section .rodata,"a"')
    out.append(".p2align 6")
    out.append(kd(KN, 512, 256))
    return "\n".join(out) + "\n"


if __name__ == "__main__":
    cfg = {"map1": "4x8", "vm_gap": 5}
    path = "cdna_kernels/" + KN[:-7] + ".s"
    for a in sys.argv[1:]:
        if a.startswith("-o"):
            path = a[2:]
        elif "=" in a:
            k, v = a.split("=")
            cfg[k] = int(v) if v.isdigit() else v.replace("_", " ").replace("none", "")
    open(path, "w").write(generate(cfg))
    print("wrote", path)
```

```python
import sys

KN = "gated_mix__ssm_conv_s5__dense_activation_squared_relu__prompt_kernel"
K2N = "gated_mix_stage2_kernel"

AF_RT = 88 * 4096
AF_OFF = 0
E_OFF = 32 * AF_RT
G_OFF = E_OFF + 16 * 8192
N_OFF = G_OFF + 2048 * 8
Y_OFF = N_OFF + 256
FL_OFF = Y_OFF + 16 * 256
WS_USED = FL_OFF + 16 * 256
STAMP_OFF = 0x1000000
OOB = 0x7FFFFF00

LOG2E = 0x3FB8AA3B
INV2PI = 0x3E22F983


class Asm:
    def __init__(self):
        self.L = []
        self.vm = []
        self.nlab = 0
        self.stamps = False
        self.rec = None
        self.q = {}

    def e(self, s):
        if self.rec is not None:
            self.rec.append([("e", s)])
        else:
            self.L.append("    " + s)

    def record(self, fn):
        assert self.rec is None
        self.rec = []
        fn()
        out, self.rec = self.rec, None
        return out

    def group(self, fn):
        outer = self.rec
        self.rec = []
        fn()
        merged = [op for it in self.rec for op in it]
        self.rec = outer
        self.rec.append(merged)

    def push(self, q, items):
        self.q.setdefault(q, []).extend(items)

    def pop(self, q, n=1):
        lst = self.q.get(q, [])
        while n > 0 and lst:
            it = lst.pop(0)
            for op in it:
                if op[0] == "e":
                    self.e(op[1])
                elif op[0] == "vmi":
                    self.vmi(op[1], op[2])
                elif op[0] == "vmw":
                    self.vm_wait(*op[1])
                elif op[0] == "lab":
                    self.lab(op[1])
            n -= 1

    def head_is_vmem(self, q):
        lst = self.q.get(q, [])
        return bool(lst) and any(op[0] == "vmi" for op in lst[0])

    def drain(self, q):
        self.pop(q, 1 << 30)

    def qlen(self, q):
        return len(self.q.get(q, []))

    def lab(self, s):
        if self.rec is not None:
            self.rec.append([("lab", s)])
        else:
            self.L.append(s + ":")

    def c(self, s):
        self.L.append("    ; " + s)

    def newlab(self, p):
        self.nlab += 1
        return f"L_{p}_{self.nlab}"

    def vmi(self, tag, s):
        if self.rec is not None:
            self.rec.append([("vmi", tag, s)])
            return
        self.e(s)
        self.vm.append(tag)
        assert len(self.vm) <= 63, "vmcnt overflow"

    def vm_wait(self, *tags):
        if self.rec is not None:
            self.rec.append([("vmw", tags)])
            return
        idx = [i for i, t in enumerate(self.vm) if t in tags]
        if not idx:
            return
        i = max(idx)
        n = len(self.vm) - 1 - i
        self.e(f"s_waitcnt vmcnt({n})")
        self.vm = self.vm[i + 1:]

    def vm_all(self):
        self.e("s_waitcnt vmcnt(0)")
        self.vm = []

    def stamp(self, idx, last=False):
        if not self.stamps:
            return
        self.e("s_memtime s[98:99]")
        self.e("s_waitcnt lgkmcnt(0)")
        self.e(f"v_writelane_b32 v255, s98, {idx}")
        if idx == 0 or last:
            self.e("s_memrealtime s[98:99]")
            self.e("s_waitcnt lgkmcnt(0)")
            self.e(f"v_writelane_b32 v255, s98, {63 if last else 62}")

    def stamp_flush(self, slot, srd_):
        if not self.stamps:
            return
        self.e("s_lshl_b32 s98, s2, 2")
        self.e("s_add_u32 s98, s98, s6")
        self.e("s_lshl_b32 s98, s98, 8")
        self.e(f"s_add_u32 s98, s98, {STAMP_OFF + slot * 0x40000}")
        self.e("v_lshlrev_b32 v254, 2, v1")
        self.e(f"s_mov_b32 s{srd_ + 2}, {STAMP_OFF + 0x100000:#x}")
        self.e(f"buffer_store_dword v255, v254, s[{srd_}:{srd_ + 3}], s98 offen")

    def nop(self, n):
        while n > 0:
            k = min(n, 16)
            self.e(f"s_nop {k - 1}")
            n -= k


def vr(a, n=1):
    return f"v{a}" if n == 1 else f"v[{a}:{a + n - 1}]"


def ar(a, n=1):
    return f"a{a}" if n == 1 else f"a[{a}:{a + n - 1}]"


def sr(a, n=1):
    return f"s{a}" if n == 1 else f"s[{a}:{a + n - 1}]"


def srd(A, s, lo, hi, nrec):
    A.e(f"s_mov_b32 s{s}, s{lo}")
    A.e(f"s_and_b32 s{s + 1}, s{hi}, 0xffff")
    A.e(f"s_mov_b32 s{s + 2}, {nrec:#x}")
    A.e(f"s_mov_b32 s{s + 3}, 0x20000")


def cfma(A, dr, di, ar_, ai, br, bi):
    A.e(f"v_fmac_f32 v{dr}, v{ar_}, v{br}")
    A.e(f"v_fmac_f32 v{di}, v{ar_}, v{bi}")
    A.e(f"v_fma_f32 v{dr}, -v{ai}, v{bi}, v{dr}")
    A.e(f"v_fmac_f32 v{di}, v{ai}, v{br}")


def cmul(A, dr, di, ar_, ai, br, bi):
    A.e(f"v_mul_f32 v{dr}, v{ar_}, v{br}")
    A.e(f"v_mul_f32 v{di}, v{ar_}, v{bi}")
    A.e(f"v_fma_f32 v{dr}, -v{ai}, v{bi}, v{dr}")
    A.e(f"v_fmac_f32 v{di}, v{ai}, v{br}")


def interleave(main, fill, first=0, per=1):
    out = []
    fi = 0
    for i, m in enumerate(main):
        out.append(m)
        if i >= first:
            for _ in range(per):
                if fi < len(fill):
                    out.append(fill[fi])
                    fi += 1
    out.extend(fill[fi:])
    return out


LDS_S = 0
LDS_X = [65536, 98304, 131072]
LDS_F = [98304, 131072, 0, 65536]
LDS_BIAS = 126976
LDS_SCR = 128000
LDS_T = 65536
LDS_RING = [32768, 49152, 0, 16384, 98304, 114688, 131072, 147456]
LDS_HI = 98304
LDS_R = 65536
RSTR = 17408


def SACC(tb, ct, r=0):
    return 8 + (tb * 4 + ct) * 4 + r


def FACC(nt, tb, r=0):
    return 40 + (nt * 2 + tb) * 4 + r


VX = 96
VS = 104
VRX = 108
VRX2 = 112
VRS = 116
VF = 120
VFR = 127
VBIAS = 128
CB = 156
VCIN = 200
VWIN = 204
VT = 208


def C(pb, k):
    return CB + 22 * pb + k


C_LR, C_LI, C_NLI = 0, 1, 2
C_L8, C_L16, C_L32, C_L8Q, C_MC, C_L32W, C_LQ, C_L4, C_MA, C_C2 = 3, 5, 7, 9, 11, 13, 15, 17, 19, 20


def XF(ks, tb):
    return (ks * 2 + tb) * 4


def flit(x):
    import struct
    return "%#x" % struct.unpack("<I", struct.pack("<f", x))[0]


def gen_k1(A, cfg):
    e = A.e
    STF = cfg.get("stf", " sc1")
    END = "L_k1_end"
    e("s_cmp_ge_u32 s2, 256")
    e(f"s_cbranch_scc1 {END}")
    e("s_load_dwordx16 s[16:31], s[0:1], 0")
    e("s_load_dwordx16 s[32:47], s[0:1], 64")
    e("s_load_dwordx4 s[48:51], s[0:1], 128")
    A.stamp(0)
    if cfg.get("codepf", 1):
        e("s_getpc_b64 s[60:61]")
        A.lab("L_pc")
        e("s_and_b32 s61, s61, 0xffff")
        e("s_mov_b32 s62, L_code_end-L_pc")
        e("s_mov_b32 s63, 0x20000")
        e("s_lshr_b32 s3, s2, 3")
        e("s_lshl_b32 s3, s3, 10")
        e("v_lshlrev_b32 v4, 2, v0")
        e("v_add_u32 v4, s3, v4")
        A.vmi("cpf", "buffer_load_dword v252, v4, s[60:63], 0 offen")
    e("v_and_b32 v1, 63, v0")
    e("v_lshrrev_b32 v4, 6, v0")
    e("v_and_b32 v2, 15, v1")
    e("v_readfirstlane_b32 s6, v4")
    e("v_lshrrev_b32 v3, 4, v1")
    if cfg["map1"] == "2x16":
        e("s_and_b32 s3, s2, 7")
        e("s_lshl_b32 s3, s3, 1")
        e("s_lshr_b32 s7, s2, 7")
        e("s_add_u32 s4, s3, s7")
        e("s_lshr_b32 s5, s2, 3")
        e("s_and_b32 s5, s5, 15")
    elif cfg["map1"] == "8x4":
        e("s_and_b32 s3, s2, 1")
        e("s_lshl_b32 s3, s3, 3")
        e("s_lshr_b32 s7, s2, 3")
        e("s_and_b32 s7, s7, 7")
        e("s_add_u32 s4, s3, s7")
        e("s_lshr_b32 s5, s2, 1")
        e("s_and_b32 s5, s5, 3")
        e("s_lshl_b32 s5, s5, 2")
        e("s_lshr_b32 s7, s2, 6")
        e("s_add_u32 s5, s5, s7")
    else:
        e("s_lshr_b32 s3, s2, 1")
        e("s_and_b32 s3, s3, 3")
        e("s_lshl_b32 s3, s3, 2")
        e("s_lshr_b32 s7, s2, 6")
        e("s_add_u32 s4, s3, s7")
        e("s_lshr_b32 s5, s2, 3")
        e("s_and_b32 s5, s5, 7")
        e("s_and_b32 s7, s2, 1")
        e("s_lshl_b32 s7, s7, 3")
        e("s_add_u32 s5, s5, s7")
    e("v_xor_b32 v4, v2, v3")
    e("v_lshlrev_b32 v4, 4, v4")
    e("v_lshl_or_b32 v5, v3, 10, v4")
    for m in range(8):
        x = (m >> 1) << 6
        a = (m & 3) * 3072
        if x:
            e(f"v_xor_b32 v{VX + m}, {x}, v5")
            if a:
                e(f"v_add_u32 v{VX + m}, {a}, v{VX + m}")
        elif a:
            e(f"v_add_u32 v{VX + m}, {a}, v5")
        else:
            e(f"v_mov_b32 v{VX + m}, v5")
    for m in range(4):
        if m:
            e(f"v_xor_b32 v{VS + m}, {m << 6}, v5")
            e(f"v_add_u32 v{VS + m}, {m * 3072}, v{VS + m}")
        else:
            e(f"v_mov_b32 v{VS}, v5")
    e("s_lshl_b32 s64, s4, 7")
    e("s_lshl_b32 s3, s6, 5")
    e("s_add_u32 s64, s64, s3")
    e("s_lshl_b32 s64, s64, 10")
    e("s_lshl_b32 s65, s5, 5")
    e("s_and_b32 s3, s6, 1")
    e("s_lshl_b32 s3, s3, 4")
    e("s_add_u32 s65, s65, s3")
    e("s_lshl_b32 s65, s65, 10")
    e(f"s_mul_i32 s66, s6, {32 * 3584}")
    e("s_mul_i32 s3, s5, 224")
    e("s_add_u32 s66, s66, s3")
    SXC, SSC, SFC = [72, 73, 74, 75], [34, 35, 48, 49], [85, 86, 87, 88]
    e("s_lshl_b32 s67, s6, 13")
    e("s_lshl_b32 s68, s6, 12")
    e("s_mul_i32 s69, s6, 7168")
    e("s_lshl_b32 s3, s5, 5")
    e("v_and_b32 v6, 31, v1")
    e("v_add_u32 v6, s3, v6")
    e("v_lshlrev_b32 v6, 1, v6")
    e(f"s_mov_b32 s7, {N_OFF}")
    e("s_add_u32 s82, s4, s5")
    if not cfg.get("rot", 1):
        e("s_mov_b32 s82, 0")
    e("s_waitcnt lgkmcnt(0)")
    A.stamp(18)
    e("s_load_dword s97, s[50:51], s7")
    for t in range(4):
        e(f"s_add_u32 s3, s82, {t}")
        e("s_and_b32 s3, s3, 3")
        e("s_lshl_b32 s7, s3, 8")
        e(f"s_add_u32 s{SXC[t]}, s64, s7")
        e(f"s_add_u32 s{SSC[t]}, s65, s7")
        e(f"s_mul_i32 s7, s3, {128 * 3584}")
        e(f"s_add_u32 s{SFC[t]}, s66, s7")
    T = VT
    A.vmi("cst", f"global_load_ushort v{T}, v6, s[18:19]")
    A.vmi("cst", f"global_load_ushort v{T + 1}, v6, s[20:21]")
    A.vmi("cst", f"global_load_ushort v{T + 2}, v6, s[30:31]")
    srd(A, 8, 16, 17, 2048 * 1024)
    e("s_cmp_lt_u32 s6, 2")
    e("s_cselect_b32 s12, s22, s24")
    e("s_cselect_b32 s13, s23, s25")
    e("s_and_b32 s13, s13, 0xffff")
    e(f"s_mov_b32 s14, {512 * 1024:#x}")
    e("s_mov_b32 s15, 0x20000")

    def dma_group(tag, m0base, m0imm, sbase, simm, vaddrs, srd_):
        def fn():
            for k, va in enumerate(vaddrs):
                off = f" offset:{k * 1024}" if k else ""

                def one(k=k, va=va, off=off):
                    if k == 0:
                        e(f"s_add_u32 m0, s{m0base}, {m0imm}")
                        if simm:
                            e(f"s_add_u32 s70, s{sbase}, {simm}")
                        else:
                            e(f"s_mov_b32 s70, s{sbase}")
                    A.vmi(tag, f"buffer_load_dwordx4 v{va}, s[{srd_}:{srd_ + 3}], s70 offen{off}{cfg.get('ldf_' + tag[0], '')} lds")
                A.group(one)
        return A.record(fn)

    def dma_x(c, buf):
        it = []
        for h in range(2):
            it += dma_group(f"x{c}", 67, LDS_X[buf] + h * 4096, SXC[c], h * 16384,
                            [VX + 4 * h + k for k in range(4)], 8)
        return it

    def dma_s(c):
        return dma_group(f"s{c}", 68, LDS_S + c * 16384, SSC[c], 0, [VS + k for k in range(4)], 12)

    def dma_f(c):
        it = []
        for h in range(2):
            it += dma_group(f"f{c}", 69, LDS_F[c] + h * 4096, SFC[c], 0,
                            [VF + 4 * h + k for k in range(4 if h == 0 else 3)], 52)
        return it

    def fill_patterns():
        e("v_xor_b32 v4, v2, v3")
        e("v_lshrrev_b32 v5, 2, v2")
        e("v_lshlrev_b32 v5, 3, v5")
        e("v_and_b32 v6, 3, v2")
        e("v_add_u32 v5, v5, v6")
        e("v_lshlrev_b32 v5, 8, v5")
        A.group(lambda: (e(f"s_add_u32 s3, s67, {LDS_X[0]}"), e("v_add_u32 v5, s3, v5")))
        e("v_lshlrev_b32 v6, 8, v2")
        for k in range(4):
            e(f"v_xor_b32 v7, {4 * k}, v4")
            e("v_lshlrev_b32 v7, 4, v7")
            e(f"v_add_u32 v{VRX + k}, v5, v7")
            e(f"v_add_u32 v{VRS + k}, v6, v7")
            e(f"v_add_u32 v{VRX2 + k}, 0x10000, v{VRX + k}")

    def fill_srds():
        srd(A, 52, 36, 37, 512 * 3584)
        srd(A, 56, 50, 51, WS_USED)

        def esrd():
            e("s_lshl_b32 s3, s5, 13")
            e(f"s_add_u32 s3, s3, {E_OFF}")
            e("s_add_u32 s76, s50, s3")
            e("s_addc_u32 s77, s51, 0")
            e("s_and_b32 s77, s77, 0xffff")
            e("s_mov_b32 s78, 8192")
            e("s_mov_b32 s79, 0x20000")
        A.group(esrd)
        srd(A, 60, 38, 39, 3584)
        e(f"s_mov_b32 s80, {LOG2E:#x}")
        e(f"s_mov_b32 s81, {INV2PI:#x}")

    Z = VT + 4
    TP = VT + 12

    def spread(d0, d1):
        e(f"v_mov_b32 v{d1}, v{d0}")
        e(f"v_mov_b32 v{d1 + 1}, v{d0 + 1}")
        A.nop(1)
        e(f"v_permlane16_swap_b32 v{d0}, v{d1}")
        e(f"v_permlane16_swap_b32 v{d0 + 1}, v{d1 + 1}")

    def cpow1(k, zr, a1, dr, di, t, kreg=None):
        if kreg is not None:
            e(f"v_mul_f32 v{t}, v{kreg}, v{zr}")
            e(f"v_mul_f32 v{t + 1}, v{kreg}, v{a1}")
        elif k == 1.0:
            e(f"v_mov_b32 v{t}, v{zr}")
            e(f"v_mov_b32 v{t + 1}, v{a1}")
        else:
            e(f"v_mul_f32 v{t}, {flit(k)}, v{zr}")
            e(f"v_mul_f32 v{t + 1}, {flit(k)}, v{a1}")
        e(f"v_exp_f32 v{t}, v{t}")
        e(f"v_fract_f32 v{t + 1}, v{t + 1}")
        e(f"v_cos_f32 v{t + 2}, v{t + 1}")
        e(f"v_sin_f32 v{t + 3}, v{t + 1}")
        e(f"v_mul_f32 v{dr}, v{t}, v{t + 2}")
        e(f"v_mul_f32 v{di}, v{t}, v{t + 3}")

    def fill_consts():
        A.vm_wait("cst")
        e(f"v_lshlrev_b32 v{Z}, 16, v{T}")
        e(f"v_lshlrev_b32 v{Z + 1}, 16, v{T + 1}")
        e(f"v_lshlrev_b32 v{T + 2}, 16, v{T + 2}")
        e(f"v_mul_f32 v{T + 2}, s80, v{T + 2}")
        e(f"v_exp_f32 v{T + 2}, v{T + 2}")
        A.nop(1)
        e(f"v_cvt_pk_bf16_f32 v{T + 2}, v{T + 2}, v{T + 2}")
        e(f"v_lshlrev_b32 v{T + 2}, 16, v{T + 2}")
        e(f"v_mul_f32 v{Z + 2}, v{T + 2}, v{Z}")
        e(f"v_mul_f32 v{Z + 3}, v{T + 2}, v{Z + 1}")
        e(f"v_mul_f32 v{Z + 2}, s80, v{Z + 2}")
        e(f"v_mul_f32 v{Z + 3}, s81, v{Z + 3}")
        cpow1(1.0, Z + 2, Z + 3, C(0, C_LR), C(0, C_LI), TP)
        t = TP
        e(f"v_subrev_f32 v{t}, 1.0, v{C(0, C_LR)}")
        e(f"v_mul_f32 v{t + 1}, v{Z}, v{Z}")
        e(f"v_fmac_f32 v{t + 1}, v{Z + 1}, v{Z + 1}")
        e(f"v_rcp_f32 v{t + 1}, v{t + 1}")
        e(f"v_mul_f32 v{t + 2}, v{t}, v{Z}")
        e(f"v_fmac_f32 v{t + 2}, v{C(0, C_LI)}, v{Z + 1}")
        e(f"v_mul_f32 v{t + 3}, v{C(0, C_LI)}, v{Z}")
        e(f"v_fma_f32 v{t + 3}, -v{t}, v{Z + 1}, v{t + 3}")
        e(f"v_add_f32 v{t + 1}, v{t + 1}, v{t + 1}")
        e(f"v_mul_f32 v{C(0, C_C2)}, v{t + 2}, v{t + 1}")
        e(f"v_mul_f32 v{C(0, C_C2 + 1)}, v{t + 3}, v{t + 1}")
        spread(C(0, C_C2), C(1, C_C2))
        spread(C(0, C_LR), C(1, C_LR))
        for pb in range(2):
            e(f"v_sub_f32 v{C(pb, C_NLI)}, 0, v{C(pb, C_LI)}")
        for k, dst in ((8.0, C_L8), (16.0, C_L16), (32.0, C_L32), (512.0, C_L4)):
            cpow1(k, Z + 2, Z + 3, C(0, dst), C(0, dst + 1), TP)
            spread(C(0, dst), C(1, dst))
        KR = T
        A.group(lambda: (e("s_lshl_b32 s3, s6, 5"), e(f"v_cvt_f32_u32 v{KR}, s3")))
        cpow1(None, Z + 2, Z + 3, C(0, C_L32W), C(0, C_L32W + 1), TP, kreg=KR)
        spread(C(0, C_L32W), C(1, C_L32W))
        spread(Z + 2, Z + 6)
        e(f"v_cvt_f32_u32 v{KR}, v3")
        e(f"v_mul_f32 v{KR + 1}, 0x41000000, v{KR}")
        e(f"v_mul_f32 v{KR + 2}, 0x43000000, v{KR}")
        for kr, dst in ((KR + 1, C_L8Q), (KR + 2, C_LQ)):
            for pb in range(2):
                cpow1(None, Z + 2 + 4 * pb, Z + 3 + 4 * pb, C(pb, dst), C(pb, dst + 1), TP + 4 * pb, kreg=kr)
        e("v_cmp_eq_u32 vcc, 3, v3")
        e("v_cmp_eq_u32 s[82:83], 2, v3")
        e("v_and_b32 v4, 1, v3")
        e(f"v_cvt_f32_u32 v{C(0, C_MA)}, v4")
        e("v_cndmask_b32 v5, 0, 1.0, s[82:83]")
        for pb in range(2):
            e(f"v_cndmask_b32 v{C(pb, C_MC)}, v5, v{C(pb, C_L8)}, vcc")
            e(f"v_cndmask_b32 v{C(pb, C_MC + 1)}, 0, v{C(pb, C_L8 + 1)}, vcc")

    def fill_vf():
        A.group(lambda: (e("s_and_b32 s3, s5, 1"), e("s_lshl_b32 s7, s3, 1")))
        for m in range(7):
            d = VF + m
            e(f"v_add_u32 v4, {64 * m}, v1")
            e("v_mul_u32_u24 v5, 4682, v4")
            e("v_lshrrev_b32 v5, 16, v5")
            e("v_mul_u32_u24 v6, 14, v5")
            e("v_sub_u32 v4, v4, v6")
            e("v_add_u32 v4, s7, v4")
            e("v_subrev_u32 v6, 14, v4")
            e("v_min_u32 v4, v4, v6")
            e("v_and_b32 v6, 12, v5")
            e("v_lshlrev_b32 v6, 1, v6")
            e("v_and_b32 v7, 3, v5")
            e("v_add_u32 v6, v6, v7")
            e("v_lshrrev_b32 v7, 4, v5")
            e("v_lshl_add_u32 v6, v7, 2, v6")
            e("v_mul_u32_u24 v6, 3584, v6")
            e("v_lshl_add_u32 v6, v4, 4, v6")
            if m & 3:
                e(f"v_subrev_u32 v{d}, {(m & 3) * 1024}, v6")
            else:
                e(f"v_mov_b32 v{d}, v6")
        e("v_lshrrev_b32 v4, 2, v2")
        e("v_lshl_add_u32 v4, v3, 2, v4")
        e("v_mul_u32_u24 v4, 224, v4")
        e("v_and_b32 v5, 3, v2")
        e("v_lshl_add_u32 v4, v5, 3, v4")
        e(f"v_add_u32 v{VFR}, {LDS_F[0]}, v4")
        e(f"v_lshlrev_b32 v{VT + 30}, 2, v1")

    def dma_bias():
        def one():
            e("s_lshl_b32 s70, s6, 8")
            e(f"s_add_u32 m0, s70, {LDS_BIAS}")
            e("s_mul_i32 s70, s5, 224")
            A.vmi("bias", f"buffer_load_dword v{VT + 30}, s[60:63], s70 offen lds")
        return A.record(lambda: A.group(one))

    BT = VT + 8

    def fill_bias():
        def addr():
            e("s_lshl_b32 s3, s6, 8")
            e(f"s_add_u32 s3, s3, {LDS_BIAS}")
            e("v_lshl_add_u32 v4, v3, 3, s3")
            e("s_and_b32 s3, s5, 1")
            e("s_lshl_b32 s7, s3, 5")
            e("v_add_u32 v5, s7, v4")
            e(f"s_mul_i32 s7, s3, {6 * 32}")
            e("s_sub_u32 s7, 192, s7")
            e("v_add_u32 v6, s7, v4")
        A.group(addr)
        A.vm_wait("bias")
        for nt in range(6):
            e(f"ds_read_b64 {vr(BT + 2 * nt, 2)}, v5 offset:{32 * nt}")
        e(f"ds_read_b64 {vr(BT + 12, 2)}, v6")
        e("s_waitcnt lgkmcnt(0)")
        for nt in range(7):
            b = VBIAS + 4 * nt
            e(f"v_lshlrev_b32 v{b}, 16, v{BT + 2 * nt}")
            e(f"v_and_b32 v{b + 1}, 0xffff0000, v{BT + 2 * nt}")
            e(f"v_lshlrev_b32 v{b + 2}, 16, v{BT + 2 * nt + 1}")
            e(f"v_and_b32 v{b + 3}, 0xffff0000, v{BT + 2 * nt + 1}")

    A.push("v0", A.record(fill_patterns))
    A.push("v0", A.record(fill_srds))
    A.push("v", A.record(fill_consts))
    n_const = A.qlen("v")
    A.push("v", A.record(fill_vf))
    A.push("d", dma_x(0, 0) + dma_s(0) + dma_x(1, 1) + dma_s(1))
    per = cfg.get("pre_fill", 9)
    npop = 0
    while A.qlen("d"):
        A.pop("d")
        npop += 1
        if npop in (1, 6, 12, 18):
            A.stamp(19 + (1, 6, 12, 18).index(npop))
        if A.qlen("v0"):
            A.pop("v0", per)
        else:
            A.pop("v", per)
    A.drain("v0")
    A.stamp(1)

    def ssm_reads(s):
        c, ksl = s >> 2, s & 3
        buf = [0, 1, 2, 0][c]
        it = []
        for tb in range(2):
            if buf == 2:
                it.append(f"ds_read_b128 {ar(XF(s, tb), 4)}, v{VRX2 + ksl} offset:{tb * 1024}")
            else:
                it.append(f"ds_read_b128 {ar(XF(s, tb), 4)}, v{VRX + ksl} offset:{buf * 32768 + tb * 1024}")
        for ct in range(4):
            it.append(f"ds_read_b128 {ar(128 + (s & 1) * 16 + ct * 4, 4)}, v{VRS + ksl} "
                      f"offset:{LDS_S + c * 16384 + ct * 4096}")
        return it

    def ssm_mfma(s):
        it = []
        for ct in range(4):
            for tb in range(2):
                d = vr(SACC(tb, ct), 4)
                cc = "0" if s == 0 else d
                it.append(f"v_mfma_f32_16x16x32_bf16 {d}, {ar(XF(s, tb), 4)}, "
                          f"{ar(128 + (s & 1) * 16 + ct * 4, 4)}, {cc}")
        return it

    e("s_waitcnt lgkmcnt(0)")
    e("s_add_u32 s94, s97, 0x3c6ef372")
    e("s_add_u32 s95, s97, 0x7f4a7c15")
    e("s_add_u32 s97, s97, 0x9e3779b9")
    A.vm_wait("x0", "s0")
    e("s_barrier")
    A.stamp(2)
    for r in ssm_reads(0):
        e(r)
    vper = cfg.get("ssm_fill", 5)
    for s in range(16):
        c = s >> 2
        if s == 0:
            A.push("d", dma_x(2, 2) + dma_s(2))
        if s == 4:
            A.push("d", dma_x(3, 0) + dma_s(3))
        if s == 8:
            A.drain("v")
            A.push("d", dma_bias() + dma_f(0))
        if s == 12:
            A.push("d", dma_f(1))
            A.push("v", A.record(fill_bias))
        e("s_waitcnt lgkmcnt(0)")
        if s in (3, 7, 11):
            A.drain("d")
            A.vm_wait(f"x{c + 1}", f"s{c + 1}")
            e("s_barrier")
            A.stamp(3 + c)
        rd = ssm_reads(s + 1) if s < 15 else []
        mf = ssm_mfma(s)
        nd = [3, 3, 2, 2][c]
        for k, m in enumerate(mf):
            e(m)
            if k < 3:
                for r in rd[2 * k:2 * k + 2]:
                    e(r)
            else:
                if k - 3 < nd:
                    A.pop("d")
                A.pop("v", vper)
    A.drain("d")
    A.drain("v")
    A.stamp(7)

    def touch_weights():
        e("s_lshl_b32 s3, s2, 2")
        e("s_add_u32 s3, s3, s6")
        e("s_sub_u32 s7, s3, 640")
        e("s_sub_u32 s71, s3, 832")
        e("s_cmp_lt_u32 s3, 832")
        e("s_cselect_b32 s60, s26, s28")
        e("s_cselect_b32 s61, s27, s29")
        e("s_cselect_b32 s7, s7, s71")
        e(f"s_mov_b32 s62, {512 * 1024:#x}")
        e("s_cmp_lt_u32 s3, 640")
        e("s_cselect_b32 s60, s40, s60")
        e("s_cselect_b32 s61, s41, s61")
        e("s_cselect_b32 s7, s3, s7")
        e(f"s_cselect_b32 s62, {1792 * 1024:#x}, s62")
        e("s_and_b32 s61, s61, 0xffff")
        e("s_mov_b32 s63, 0x20000")
        e(f"s_mul_i32 s7, s7, {23 * 128}")
        e("v_lshlrev_b32 v4, 7, v1")
        e("v_add_u32 v4, s7, v4")
        e("v_cmp_gt_u32 vcc, 23, v1")
        e(f"v_mov_b32 v5, {OOB:#x}")
        e("s_nop 0")
        e("v_cndmask_b32 v4, v5, v4, vcc")
        A.vmi("pf", "buffer_load_dword v253, v4, s[60:63], 0 offen")

    if cfg.get("touch", 1):
        touch_weights()
    A.push("d", dma_f(2))
    A.nop(4)
    EA = 96

    def U(pb, tau, im):
        return SACC(tau >> 2, pb + 2 * im, tau & 3)

    cur = [None, None]
    for tau in range(1, 8):
        for pb in range(2):
            dst = EA + 4 * pb + 2 * (tau & 1)
            lr, li, nli = C(pb, C_LR), C(pb, C_LI), C(pb, C_NLI)
            pr, pi = (U(pb, 0, 0), U(pb, 0, 1)) if tau == 1 else cur[pb]
            e(f"v_fma_f32 v{dst}, v{lr}, v{pr}, v{U(pb, tau, 0)}")
            e(f"v_fma_f32 v{dst + 1}, v{lr}, v{pi}, v{U(pb, tau, 1)}")
            e(f"v_fmac_f32 v{dst}, v{nli}, v{pi}")
            e(f"v_fmac_f32 v{dst + 1}, v{li}, v{pr}")
            cur[pb] = (dst, dst + 1)
        if tau in (2, 4, 6):
            A.pop("d")
    TB, AA, CC = 104, 108, 112
    for pb in range(2):
        for k in range(2):
            e(f"v_mov_b32 v{TB + 2 * pb + k}, v{cur[pb][k]}")
            e(f"v_mov_b32 v{AA + 2 * pb + k}, v{cur[pb][k]}")
    A.nop(2)
    for x in range(4):
        e(f"v_permlane16_swap_b32 v{AA + x}, v{TB + x}")
    A.nop(1)
    for pb in range(2):
        cfma(A, TB + 2 * pb, TB + 2 * pb + 1, C(pb, C_L8), C(pb, C_L8 + 1), AA + 2 * pb, AA + 2 * pb + 1)
    A.pop("d")
    for x in range(4):
        e(f"v_mov_b32 v{CC + x}, v{TB + x}")
    A.nop(2)
    for x in range(4):
        e(f"v_permlane32_swap_b32 v{CC + x}, v{TB + x}")
    A.nop(1)
    for pb in range(2):
        cfma(A, TB + 2 * pb, TB + 2 * pb + 1, C(pb, C_L16), C(pb, C_L16 + 1), CC + 2 * pb, CC + 2 * pb + 1)
    A.pop("d")
    e("v_lshlrev_b32 v4, 4, v2")
    e("s_lshl_b32 s3, s6, 8")
    e(f"s_add_u32 s3, s3, {LDS_SCR}")
    e("v_add_u32 v5, s3, v4")
    e(f"v_add_u32 v4, {LDS_SCR}, v4")
    e(f"ds_write_b128 v5, {vr(TB, 4)}")
    for pb in range(2):
        ci = VCIN + 2 * pb
        e(f"v_mul_f32 v{ci}, v{C(0, C_MA)}, v{AA + 2 * pb}")
        e(f"v_mul_f32 v{ci + 1}, v{C(0, C_MA)}, v{AA + 2 * pb + 1}")
        cfma(A, ci, ci + 1, C(pb, C_MC), C(pb, C_MC + 1), CC + 2 * pb, CC + 2 * pb + 1)
    e("s_waitcnt lgkmcnt(0)")
    A.vm_wait("f0")
    e("s_barrier")
    A.stamp(8)
    W = 96
    for w_ in range(4):
        e(f"ds_read_b128 {vr(W + 4 * w_, 4)}, v4 offset:{w_ * 256}")

    def ffn_reads(s):
        ksl = s & 3
        it = []
        for nt in range(7):
            for h in range(2):
                it.append(f"ds_read_b64_tr_b16 {ar(128 + (s & 1) * 28 + nt * 4 + 2 * h, 2)}, v{VFR} "
                          f"offset:{ksl * 7168 + h * 3584 + nt * 32}")
        return it

    for r in ffn_reads(0):
        e(r)
    e("s_lshl_b32 s3, s4, 9")
    e("v_lshlrev_b32 v4, 5, v2")
    e("v_lshl_add_u32 v4, v3, 4, v4")
    e("v_add_u32 v4, s3, v4")
    e("s_cmp_eq_u32 s6, 3")
    e("s_cselect_b32 s3, 32, 0")
    e(f"v_mov_b32 v5, {OOB:#x}")
    e("v_cmp_gt_u32 vcc, s3, v1")
    e("v_cmp_eq_u32 s[82:83], 1, v3")
    e(f"v_mov_b32 v{114}, s97")
    e(f"v_mov_b32 v{115}, s97")
    e("v_cndmask_b32 v4, v5, v4, vcc")
    e("s_waitcnt lgkmcnt(14)")
    for w_ in range(1, 4):
        for pb in range(2):
            d = W + 4 * w_ + 2 * pb
            s_ = W + 4 * (w_ - 1) + 2 * pb
            cfma(A, d, d + 1, C(pb, C_L32), C(pb, C_L32 + 1), s_, s_ + 1)
    A.drain("d")
    e(f"v_cndmask_b32 v112, v{W + 12}, v{W + 14}, s[82:83]")
    e(f"v_cndmask_b32 v113, v{W + 13}, v{W + 15}, s[82:83]")
    A.vmi("epub", f"buffer_store_dwordx4 {vr(112, 4)}, v4, s[76:79], 0 offen sc1")
    LW = A.newlab("win")
    for x in range(4):
        e(f"v_mov_b32 v{VWIN + x}, 0")
    for w_ in range(1, 4):
        e(f"s_cmp_lt_u32 s6, {w_}")
        e(f"s_cbranch_scc1 {LW}")
        for x in range(4):
            e(f"v_mov_b32 v{VWIN + x}, v{W + 4 * (w_ - 1) + x}")
    A.lab(LW)
    A.stamp(9)

    GX = 208
    GS = 240

    def gate_loads():
        def a():
            e("s_lshl_b32 s3, s4, 7")
            e("s_lshl_b32 s7, s5, 3")
            e("s_add_u32 s3, s3, s7")
            e("s_lshl_b32 s7, s6, 1")
            e("s_add_u32 s84, s3, s7")
        A.group(a)
        e("v_lshrrev_b32 v4, 5, v1")
        e("v_add_u32 v4, s84, v4")
        e("v_lshlrev_b32 v4, 10, v4")
        e("v_and_b32 v5, 31, v1")
        e("v_lshlrev_b32 v5, 4, v5")
        e("v_add_u32 v4, v4, v5")
        A.vmi("gate", f"global_load_dwordx4 {vr(GX, 4)}, v4, s[16:17]")
        A.vmi("gate", f"global_load_dwordx4 {vr(GX + 4, 4)}, v4, s[16:17] offset:512")
        A.vmi("gate", f"global_load_dwordx4 {vr(GX + 8, 4)}, v5, s[44:45]")
        A.vmi("gate", f"global_load_dwordx4 {vr(GX + 12, 4)}, v5, s[44:45] offset:512")

    VC, VW, VRC, VRW, VB = 232, 233, 234, 235, 239
    VRC2, VRW2 = 224, 225

    def BREG(t):
        if t < 4:
            return ("a", 192 + 16 * t)
        if t < 12:
            return ("a", 16 * (t - 4))
        if t < 16:
            return ("a", 128 + 16 * (t - 12))
        return ("v", 128 + 16 * (t - 16))

    def breg(t, off, n):
        f, b = BREG(t)
        return (ar if f == "a" else vr)(b + off, n)

    def tile_patterns():
        e("v_lshrrev_b32 v4, 2, v1")
        e("v_lshlrev_b32 v4, 10, v4")
        e("v_sub_u32 v5, 0, v3")
        e("v_xor_b32 v5, v5, v1")
        e("v_and_b32 v5, 3, v5")
        e(f"v_lshl_add_u32 v{VC}, v5, 4, v4")
        e("v_lshrrev_b32 v4, 3, v1")
        e("v_lshlrev_b32 v4, 10, v4")
        e("v_lshrrev_b32 v5, 1, v1")
        e("v_xor_b32 v5, v5, v3")
        e("v_and_b32 v5, 3, v5")
        e("v_lshlrev_b32 v5, 1, v5")
        e("v_and_b32 v6, 1, v1")
        e("v_add_u32 v5, v5, v6")
        e(f"v_lshl_add_u32 v{VW}, v5, 4, v4")
        e("v_lshrrev_b32 v4, 2, v2")
        e("v_sub_u32 v5, 0, v4")
        e("v_xor_b32 v5, v5, v3")
        e("v_and_b32 v5, 3, v5")
        e("v_lshlrev_b32 v5, 4, v5")
        e("v_lshl_add_u32 v5, v2, 6, v5")
        e(f"v_add_u32 v{VRC}, s68, v5")
        e("v_lshl_add_u32 v4, v3, 2, v4")
        e("v_lshlrev_b32 v4, 7, v4")
        e("v_and_b32 v5, 3, v2")
        e("v_lshl_add_u32 v4, v5, 3, v4")
        e("v_add_u32 v4, s68, v4")
        e("v_lshrrev_b32 v5, 3, v2")
        e("v_lshl_add_u32 v5, v3, 1, v5")
        for db in range(4):
            e(f"v_xor_b32 v6, {db}, v5")
            e("v_and_b32 v6, 3, v6")
            e(f"v_lshl_add_u32 v{VRW + db}, v6, 5, v4")

        e(f"v_add_u32 v{VRC2}, {LDS_HI}, v{VRC}")
        for db in range(4):
            e(f"v_add_u32 v{VRW2 + db}, {LDS_HI}, v{VRW + db}")

        def sc():
            e("s_mul_i32 s90, s6, 22")
            if cfg.get("map2", "8x4") == "8x4":
                e("s_and_b32 s3, s2, 1")
                e("s_lshl_b32 s3, s3, 2")
                e("s_lshr_b32 s7, s2, 3")
                e("s_and_b32 s7, s7, 3")
                e("s_add_u32 s89, s3, s7")
                e("s_lshr_b32 s3, s2, 1")
                e("s_and_b32 s3, s3, 3")
                e("s_lshl_b32 s3, s3, 3")
                e("s_lshr_b32 s7, s2, 5")
                e("s_add_u32 s92, s3, s7")
            else:
                e("s_and_b32 s3, s2, 7")
                e("s_lshl_b32 s3, s3, 2")
                e("s_lshr_b32 s7, s2, 6")
                e("s_add_u32 s92, s3, s7")
                e("s_lshr_b32 s89, s2, 3")
                e("s_and_b32 s89, s89, 7")
            e("s_mov_b32 s64, s92")
            e("s_lshl_b32 s3, s90, 5")
            e("s_lshl_b32 s7, s89, 16")
            e("s_add_u32 s66, s3, s7")
            e("s_sub_u32 s3, s90, 32")
            e("s_lshl_b32 s3, s3, 15")
            e("s_lshl_b32 s7, s89, 7")
            e("s_add_u32 s65, s3, s7")
            e("s_sub_u32 s90, 32, s90")
            e("s_mov_b32 s101, 0x2000")
            e("s_mov_b32 s62, 0x1c0000")
            e("s_mov_b32 s63, 0x20000")
            e("s_and_b32 s27, s27, 0xffff")
            e("s_and_b32 s29, s29, 0xffff")
            e("s_and_b32 s41, s41, 0xffff")
        A.group(sc)

    def tile_dma(t, slot):
        cp = 26 + 2 * (t & 1)

        def first():
            e(f"s_add_u32 s7, s66, {64 * (t >> 1)}")
            e(f"s_add_u32 s71, s65, {t * 32768}")
            e(f"s_add_u32 m0, s68, {LDS_RING[slot]}")
            e(f"s_cmp_gt_i32 s90, {t}")
            e(f"s_cselect_b32 s60, s{cp}, s40")
            e(f"s_cselect_b32 s61, s{cp + 1}, s41")
            e("s_cselect_b32 s70, s7, s71")
            e("s_cselect_b64 vcc, -1, 0")
            e("s_cselect_b32 s100, 0x4000, s101")
            e(f"v_cndmask_b32 v{VB}, v{VW}, v{VC}, vcc")
            A.vmi(f"b{t}", f"buffer_load_dwordx4 v{VB}, s[60:63], s70 offen lds")

        def nxt():
            e("s_add_u32 m0, m0, 1024")
            e("s_add_u32 s70, s70, s100")
            A.vmi(f"b{t}", f"buffer_load_dwordx4 v{VB}, s[60:63], s70 offen lds")

        def fn():
            A.group(first)
            for _ in range(3):
                A.group(nxt)
        return A.record(fn)

    def tile_read(t, slot):
        hi = slot >= 4
        base = LDS_RING[slot] - (LDS_HI if hi else 0)
        vc, vw = (VRC2, VRW2) if hi else (VRC, VRW)

        def body():
            L1, L2 = A.newlab("tr"), A.newlab("tj")
            A.vm_wait(f"b{t}")
            e(f"s_cmp_gt_i32 s90, {t}")
            e(f"s_cbranch_scc0 {L1}")
            for db in range(4):
                e(f"ds_read_b128 {breg(t, 4 * db, 4)}, v{vc} offset:{base + db * 1024}")
            e(f"s_branch {L2}")
            A.lab(L1)
            for db in range(4):
                for hh in range(2):
                    e(f"ds_read_b64_tr_b16 {breg(t, 4 * db + 2 * hh, 2)}, v{vw + db} "
                      f"offset:{base + hh * 2048}")
            A.lab(L2)
        return A.record(lambda: A.group(body))

    def lgkm0():
        return A.record(lambda: e("s_waitcnt lgkmcnt(0)"))

    def gate_finish():
        A.vm_wait("gate")
        e(f"v_dot2_f32_bf16 v{GS}, v{GX}, v{GX + 8}, 0")
        e(f"v_dot2_f32_bf16 v{GS + 1}, v{GX + 1}, v{GX + 9}, 0")
        for d in range(2, 8):
            e(f"v_dot2_f32_bf16 v{GS + (d & 1)}, v{GX + d}, v{GX + 8 + d}, v{GS + (d & 1)}")
        A.nop(3)
        e(f"v_add_f32 v{GS}, v{GS}, v{GS + 1}")
        for ctl in ("quad_perm:[1,0,3,2]", "quad_perm:[2,3,0,1]", "row_half_mirror", "row_mirror"):
            A.nop(2)
            e(f"v_add_f32_dpp v{GS}, v{GS}, v{GS} {ctl} row_mask:0xf bank_mask:0xf")
        e(f"v_mov_b32 v{GS + 1}, v{GS}")
        A.nop(2)
        e(f"v_permlane16_swap_b32 v{GS + 1}, v{GS}")
        A.nop(1)
        e(f"v_add_f32 v{GS}, v{GS}, v{GS + 1}")
        e(f"v_cvt_pk_bf16_f32 v{GS}, v{GS}, v{GS}")
        e(f"v_lshlrev_b32 v{GS}, 16, v{GS}")
        e(f"v_mul_f32 v{GS}, s80, v{GS}")
        e(f"v_sub_f32 v{GS}, 0, v{GS}")
        e(f"v_exp_f32 v{GS}, v{GS}")
        A.nop(1)
        e(f"v_add_f32 v{GS}, 1.0, v{GS}")
        e(f"v_rcp_f32 v{GS}, v{GS}")
        A.nop(1)
        e(f"v_cvt_pk_bf16_f32 v{GS}, v{GS}, v{GS}")
        e(f"v_lshlrev_b32 v{GS + 2}, 16, v{GS}")
        e(f"v_sub_f32 v{GS + 3}, 1.0, v{GS + 2}")
        e(f"v_cvt_pk_bf16_f32 v{GS + 3}, v{GS + 3}, v{GS + 3}")
        e(f"v_lshlrev_b32 v{GS + 3}, 16, v{GS + 3}")
        e("v_lshrrev_b32 v4, 5, v1")
        e("v_add_u32 v4, s84, v4")
        e("v_lshlrev_b32 v4, 3, v4")
        e(f"v_add_u32 v4, {G_OFF}, v4")
        e("v_and_b32 v5, 31, v1")
        e("v_cmp_eq_u32 vcc, 0, v5")
        e(f"v_mov_b32 v5, {OOB:#x}")
        A.nop(1)
        e("v_cndmask_b32 v4, v5, v4, vcc")
        A.vmi("gst", f"buffer_store_dwordx2 {vr(GS + 2, 2)}, v4, s[56:59], 0 offen{STF}")

    EM = 96
    EMR = [128, 136, 144, 96]

    def e_loads():
        A.group(lambda: (e("s_sub_u32 s3, s4, 1"), e("v_sub_u32 v4, s3, v3")))
        e("v_lshlrev_b32 v4, 9, v4")
        e("v_lshl_add_u32 v4, v2, 5, v4")
        for m in range(4):
            if m:
                e("v_subrev_u32 v4, 2048, v4")
            e("v_and_b32 v7, 0x7fffffff, v4")
            A.vmi("eld", f"buffer_load_dwordx4 {vr(EMR[m], 4)}, v7, s[76:79], 0 offen sc1")
            A.vmi("eld", f"buffer_load_dwordx4 {vr(EMR[m] + 4, 4)}, v7, s[76:79], 0 offen offset:16 sc1")

    nf = cfg.get("ffn_tiles", 6)
    fslots = [0, 1, 4, 5, 6, 7, 2, 3][:nf]
    SLOT = {t: fslots[t] for t in range(nf)}
    early = [t for t in range(nf) if fslots[t] < 2]
    mid = [t for t in range(nf) if fslots[t] >= 4]
    late = [t for t in range(nf) if fslots[t] in (2, 3)]
    q0 = dma_f(3) + A.record(tile_patterns)
    for t in early:
        q0 += tile_dma(t, SLOT[t])
    q0 += A.record(gate_loads)
    sched = {0: q0}
    nmid0 = cfg.get("mid_before_e", 2)
    for t in mid[:nmid0]:
        sched.setdefault(8, []).extend(tile_dma(t, SLOT[t]))
    sched.setdefault(cfg.get("e_step", 11), []).extend(A.record(e_loads))
    for t in mid[nmid0:] + late:
        sched.setdefault(max(12, cfg.get("e_step", 11)), []).extend(tile_dma(t, SLOT[t]))

    def ffn_mfma(s):
        it = []
        for nt in range(7):
            for tb in range(2):
                d = vr(FACC(nt, tb), 4)
                cc = vr(VBIAS + 4 * nt, 4) if s == 0 else d
                it.append(f"v_mfma_f32_16x16x32_bf16 {d}, {ar(128 + (s & 1) * 28 + nt * 4, 4)}, "
                          f"{ar(XF(s, tb), 4)}, {cc}")
        return it

    def set_vfr(c_from, c_to):
        delta = LDS_F[c_to] - LDS_F[c_from]
        if delta >= 0:
            e(f"v_add_u32 v{VFR}, {delta}, v{VFR}")
        else:
            e(f"v_subrev_u32 v{VFR}, {-delta}, v{VFR}")

    since_vm = 99
    gap = cfg.get("vm_gap", 4)
    for s in range(16):
        if s in sched:
            A.push("f", sched[s])
        e("s_waitcnt lgkmcnt(0)")
        if s in (3, 7, 11):
            c = (s + 1) >> 2
            A.vm_wait(f"f{c}")
            e("s_barrier")
            set_vfr(c - 1, c)
            A.stamp(10 + c - 1)
        if s == 15:
            e("s_barrier")
        rd = ffn_reads(s + 1) if s < 15 else []
        mf = ffn_mfma(s)
        for k, m in enumerate(mf):
            e(m)
            since_vm += 1
            slots = 2
            if k < 7 and rd:
                e(rd[2 * k])
                e(rd[2 * k + 1])
                slots = 0
            if A.head_is_vmem("f"):
                if since_vm >= gap:
                    A.pop("f")
                    since_vm = 0
            else:
                while slots > 0 and A.qlen("f") and not A.head_is_vmem("f"):
                    A.pop("f")
                    slots -= 1
    A.drain("f")
    A.stamp(13)

    VA16, VA8 = 248, 249
    e("s_lshl_b32 s3, s4, 1")
    e("s_lshr_b32 s7, s6, 1")
    e("s_add_u32 s3, s3, s7")
    e(f"s_mul_i32 s91, s3, {AF_RT}")
    e("s_and_b32 s7, s6, 1")
    e("s_lshl_b32 s7, s7, 11")
    e("s_add_u32 s91, s91, s7")
    e("s_lshr_b32 s3, s5, 1")
    e("s_mul_i32 s3, s3, 7")
    e("s_add_u32 s3, s3, 32")
    e("s_and_b32 s7, s5, 1")
    e("s_lshl_b32 s92, s7, 2")
    e("s_add_u32 s92, s92, s3")
    e("s_lshl_b32 s92, s92, 12")
    e("s_add_u32 s92, s92, s91")
    e("s_add_u32 s93, s3, 3")
    e("s_lshl_b32 s93, s93, 12")
    e("s_add_u32 s93, s93, s91")
    e("s_lshl_b32 s7, s7, 3")
    e(f"v_lshlrev_b32 v{VA16}, 4, v1")
    e(f"v_add_u32 v{VA8}, s7, v{VA16}")
    PK = 112
    groups = [(sp, tb) for sp in range(4) for tb in range(2)]

    def ffn_group(gi):
        sp, tb = groups[gi]
        tiles = [2 * sp, 2 * sp + 1] if sp < 3 else [6]
        pk = PK + 4 * (gi & 1)
        for ti, nt in enumerate(tiles):
            a = FACC(nt, tb)
            for r in range(4):
                e(f"v_max_f32 v{a + r}, 0, v{a + r}")
            for h in range(2):
                e(f"v_pk_mul_f32 {vr(a + 2 * h, 2)}, {vr(a + 2 * h, 2)}, {vr(a + 2 * h, 2)}")
            e(f"v_cvt_pk_bf16_f32 v{pk + 2 * ti}, v{a}, v{a + 1}")
            e(f"v_cvt_pk_bf16_f32 v{pk + 2 * ti + 1}, v{a + 2}, v{a + 3}")
        off = f" offset:{tb * 1024}" if tb else ""
        if sp < 3:
            if sp and tb == 0:
                e("s_add_u32 s92, s92, 4096")
            A.vmi("hst", f"buffer_store_dwordx4 {vr(pk, 4)}, v{VA16}, s[56:59], s92 offen{off}{STF}")
        else:
            A.vmi("hst", f"buffer_store_dwordx2 {vr(pk, 2)}, v{VA8}, s[56:59], s93 offen{off}{STF}")

    MK = 104
    R = 120

    def masks():
        for m in range(4):
            e(f"v_add_u32 v4, {4 * m}, v3")
            e("v_cmp_gt_u32 vcc, s4, v4")
            A.nop(1)
            e(f"v_cndmask_b32 v{MK + m}, 0, -1, vcc")

    def e_check():
        LCK, LOK = A.newlab("echk"), A.newlab("eok")
        e("s_mov_b32 s96, 0x20000")
        A.vm_wait("eld")
        A.lab(LCK)
        e("v_mov_b32 v4, 0")
        for m in range(4):
            e(f"v_xor_b32 v5, s97, v{EMR[m] + 2}")
            e(f"v_xor_b32 v7, s97, v{EMR[m] + 6}")
            e("v_or_b32 v5, v5, v7")
            e(f"v_and_or_b32 v4, v5, v{MK + m}, v4")
        e("v_cmp_ne_u32 vcc, 0, v4")
        A.nop(4)
        e("s_cmp_eq_u64 vcc, 0")
        e(f"s_cbranch_scc1 {LOK}")
        e("s_sub_u32 s96, s96, 1")
        e("s_cmp_eq_u32 s96, 0")
        e(f"s_cbranch_scc1 {LOK}")
        e("s_sleep 4")
        for it in A.record(e_loads):
            for op in it:
                e(op[1] if op[0] == "e" else op[2])
        e("s_waitcnt vmcnt(0)")
        e(f"s_branch {LCK}")
        A.lab(LOK)

    def carry():
        for m in (2, 1, 0):
            for pb in range(2):
                d = EMR[m] + 4 * pb
                s_ = EMR[m + 1] + 4 * pb
                cfma(A, d, d + 1, C(pb, C_L4), C(pb, C_L4 + 1), s_, s_ + 1)
        for pb in range(2):
            cmul(A, R + 2 * pb, R + 2 * pb + 1, C(pb, C_LQ), C(pb, C_LQ + 1), EMR[0] + 4 * pb, EMR[0] + 4 * pb + 1)
        for swap in ("v_permlane16_swap_b32", "v_permlane32_swap_b32"):
            for x in range(4):
                e(f"v_mov_b32 v{R + 4 + x}, v{R + x}")
            A.nop(1)
            for x in range(4):
                e(f"{swap} v{R + 4 + x}, v{R + x}")
            A.nop(1)
            for x in range(4):
                e(f"v_add_f32 v{R + x}, v{R + x}, v{R + 4 + x}")
        for pb in range(2):
            cfma(A, VWIN + 2 * pb, VWIN + 2 * pb + 1, C(pb, C_L32W), C(pb, C_L32W + 1), R + 2 * pb, R + 2 * pb + 1)
        for pb in range(2):
            cfma(A, VCIN + 2 * pb, VCIN + 2 * pb + 1, C(pb, C_L8Q), C(pb, C_L8Q + 1),
                 VWIN + 2 * pb, VWIN + 2 * pb + 1)

    def recurrence():
        for tau in range(8):
            for pb in range(2):
                lr, li, nli = C(pb, C_LR), C(pb, C_LI), C(pb, C_NLI)
                if tau == 0:
                    pr, pi = VCIN + 2 * pb, VCIN + 2 * pb + 1
                else:
                    pr, pi = U(pb, tau - 1, 0), U(pb, tau - 1, 1)
                e(f"v_fmac_f32 v{U(pb, tau, 0)}, v{lr}, v{pr}")
                e(f"v_fmac_f32 v{U(pb, tau, 1)}, v{lr}, v{pi}")
                e(f"v_fmac_f32 v{U(pb, tau, 0)}, v{nli}, v{pi}")
                e(f"v_fmac_f32 v{U(pb, tau, 1)}, v{li}, v{pr}")

    TR, TI, CV = [128, 136], [132, 140], 144
    RD = [148, 96, 100, 104]

    def pack_store():
        e("v_lshrrev_b32 v4, 3, v2")
        e("v_mul_u32_u24 v4, 272, v4")
        e("v_lshl_add_u32 v4, v3, 6, v4")
        e("v_and_b32 v5, 7, v2")
        e("v_lshl_add_u32 v4, v5, 1, v4")

        def a():
            e("s_mul_i32 s3, s6, 4352")
            e(f"s_add_u32 s3, s3, {LDS_T}")
            e("v_add_u32 v4, s3, v4")
            e("v_mul_u32_u24 v5, 272, v3")
            e("v_lshl_add_u32 v5, v2, 4, v5")
            e("v_add_u32 v5, s3, v5")
            e("s_lshl_b32 s3, s5, 13")
            e("s_add_u32 s82, s3, s91")
            e("s_add_u32 s83, s82, 4096")
        A.group(a)
        for tb in range(2):
            for pb in range(2):
                c2 = vr(C(pb, C_C2), 2)
                for h in range(2):
                    P = vr(SACC(tb, pb, 2 * h), 2)
                    Q = vr(SACC(tb, 2 + pb, 2 * h), 2)
                    tr_, ti_ = vr(TR[pb] + 2 * h, 2), vr(TI[pb] + 2 * h, 2)
                    e(f"v_pk_mul_f32 {tr_}, {P}, {c2} op_sel_hi:[1,0]")
                    e(f"v_pk_mul_f32 {ti_}, {Q}, {c2} op_sel_hi:[1,0]")
                    e(f"v_pk_fma_f32 {tr_}, {Q}, {c2}, {tr_} op_sel:[0,1,0] op_sel_hi:[1,1,1] "
                      f"neg_lo:[1,0,0] neg_hi:[1,0,0]")
                    e(f"v_pk_fma_f32 {ti_}, {P}, {c2}, {ti_} op_sel:[0,1,0] op_sel_hi:[1,1,1]")
            for part in range(2):
                fo = (tb * 2 + part) * 1088
                for r in range(4):
                    cv = CV + (r & 1) + 2 * (part & 1)
                    if part == 0:
                        e(f"v_cvt_pk_bf16_f32 v{cv}, v{TR[0] + r}, v{TR[1] + r}")
                    else:
                        e(f"v_cvt_pk_bf16_f32 v{cv}, -v{TI[0] + r}, -v{TI[1] + r}")
                    e(f"ds_write_b16 v4, v{cv} offset:{fo + r * 16}")
                    e(f"ds_write_b16_d16_hi v4, v{cv} offset:{fo + r * 16 + 544}")
            e("s_waitcnt lgkmcnt(0)")
            for part in range(2):
                e(f"ds_read_b128 {vr(RD[tb * 2 + part], 4)}, v5 offset:{(tb * 2 + part) * 1088}")
            if tb == 1:
                for part in range(2):
                    A.vmi("sst", f"buffer_store_dwordx4 {vr(RD[part], 4)}, v{VA16}, s[56:59], "
                                 f"s{82 + part} offen{STF}")
        e("s_waitcnt lgkmcnt(0)")
        for part in range(2):
            A.vmi("sst", f"buffer_store_dwordx4 {vr(RD[2 + part], 4)}, v{VA16}, s[56:59], "
                         f"s{82 + part} offen offset:1024{STF}")

    per = cfg.get("tail_per", 40)
    A.push("b", A.record(gate_finish) + A.record(masks))
    for t in range(nf):
        A.push("b", tile_read(t, SLOT[t]))
    ffn_group(0)
    A.pop("b", per)
    ffn_group(1)
    A.pop("b", per)
    ffn_group(2)
    A.drain("b")
    A.stamp(14)
    e_check()
    A.stamp(15)
    A.push("b", A.record(carry) + A.record(recurrence) + A.record(pack_store))
    for gi in range(3, 8):
        ffn_group(gi)
        A.pop("b", per)
    A.drain("b")
    A.stamp(16)

    OSF = cfg.get("osf", " sc1")
    nd = cfg.get("drain_tiles", 16)
    e("s_waitcnt lgkmcnt(0)")
    free = [0, 1, 2, 3, 4, 5, 6, 7]
    nxt_dma = nf
    pend = []

    def issue_tiles(limit):
        nonlocal nxt_dma
        while free and nxt_dma < limit:
            sl = free.pop(0)
            SLOT[nxt_dma] = sl
            A.push("t", tile_dma(nxt_dma, sl))
            A.drain("t")
            pend.append(nxt_dma)
            nxt_dma += 1

    def land_tile(refill=True):
        t = pend.pop(0)
        A.push("t", tile_read(t, SLOT[t]) + lgkm0())
        A.drain("t")
        free.append(SLOT[t])
        return t

    issue_tiles(min(nd, nf + cfg.get("pre_flag_tiles", 8)))
    e("s_lshl_b32 s3, s4, 8")
    e("s_lshl_b32 s7, s5, 2")
    e("s_add_u32 s3, s3, s7")
    e(f"s_add_u32 s3, s3, {FL_OFF}")
    e("s_cmp_eq_u32 s6, 0")
    e("s_cselect_b32 s7, 1, 0")
    e("v_cmp_gt_u32 vcc, s7, v1")
    e("v_mov_b32 v4, s3")
    e(f"v_mov_b32 v5, {OOB:#x}")
    e("v_mov_b32 v6, s95")
    e("v_cndmask_b32 v4, v5, v4, vcc")
    A.vm_wait("hst", "sst", "gst")
    e("s_barrier")
    A.vmi("flag", "buffer_store_dword v6, v4, s[56:59], 0 offen sc1")
    A.stamp(17)
    while pend:
        land_tile()
        issue_tiles(nd)
    e("s_barrier")
    free = [0, 1, 2, 3]
    A.stamp(23)

    ACC0, AR0, DA = 16, 80, 3
    VXE, VGE, VDS, VB2 = 224, 240, 248, 250
    VL = 8

    def ACC(db, tb4):
        return ACC0 + (db * 4 + tb4) * 4

    e("s_mov_b32 s92, s64")
    e(f"s_mul_i32 s93, s92, {AF_RT}")
    e(f"s_mul_i32 s3, s6, {22 * 4096}")
    e("s_add_u32 s93, s93, s3")
    e(f"v_lshlrev_b32 v{VL}, 4, v1")
    e("s_lshr_b32 s3, s92, 1")
    e("s_lshl_b32 s3, s3, 8")
    e(f"s_add_u32 s3, s3, {FL_OFF}")
    e("v_and_b32 v4, 15, v1")
    e("v_lshl_add_u32 v9, v4, 2, s3")
    LP, LPO = A.newlab("fpoll"), A.newlab("fok")
    e("s_mov_b32 s96, 0x20000")
    A.lab(LP)
    e("buffer_load_dword v10, v9, s[56:59], 0 offen sc1")
    e("s_waitcnt vmcnt(0)")
    e("v_cmp_ne_u32 vcc, s95, v10")
    A.nop(4)
    e("s_cmp_eq_u64 vcc, 0")
    e(f"s_cbranch_scc1 {LPO}")
    e("s_sub_u32 s96, s96, 1")
    e("s_cmp_eq_u32 s96, 0")
    e(f"s_cbranch_scc1 {LPO}")
    e("s_sleep 2")
    e(f"s_branch {LP}")
    A.lab(LPO)
    A.vm = []
    A.stamp(24)

    def a_loads(t):
        b = AR0 + 16 * (t % DA)
        return [(f"a{t}", f"buffer_load_dwordx4 {vr(b + 4 * x, 4)}, v{VL}, s[56:59], s93 offen"
                          f"{f' offset:{x * 1024}' if x else ''} sc1") for x in range(4)]

    for t in range(DA - 1):
        for tag, ins in a_loads(t):
            A.vmi(tag, ins)
        e("s_add_u32 s93, s93, 4096")
    e("s_cmp_eq_u32 s92, 31")
    e("s_cselect_b32 s3, 1, 0")
    e("s_cmp_eq_u32 s89, 7")
    e("s_cselect_b32 s3, s3, 0")
    e("s_cmp_eq_u32 s6, 0")
    e("s_cselect_b32 s3, s3, 0")
    e("v_cmp_gt_u32 vcc, s3, v1")
    e(f"v_mov_b32 v4, {N_OFF}")
    e(f"v_mov_b32 v5, {OOB:#x}")
    e("v_mov_b32 v6, s94")
    e("v_cndmask_b32 v4, v5, v4, vcc")
    A.vmi("yst", "buffer_store_dword v6, v4, s[56:59], 0 offen sc1")
    e("v_lshrrev_b32 v6, 2, v2")
    e("v_lshlrev_b32 v6, 3, v6")
    e("v_and_b32 v7, 3, v2")
    e("v_add_u32 v6, v6, v7")
    e("v_mul_u32_u24 v12, 272, v6")
    e("v_lshl_add_u32 v12, v3, 4, v12")
    e(f"s_mul_i32 s3, s6, {RSTR}")
    e(f"s_add_u32 s3, s3, {LDS_R}")
    e("v_add_u32 v13, s3, v12")
    e(f"v_add_u32 v12, {LDS_R + 4 * RSTR}, v12")

    def ep_loads():
        def a():
            e("s_lshl_b32 s3, s92, 6")
            e("s_lshl_b32 s7, s6, 4")
            e("s_add_u32 s3, s3, s7")
            e("v_add_u32 v14, s3, v3")
            e("s_lshl_b32 s7, s89, 7")
            e("v_lshl_add_u32 v10, v2, 3, s7")
        A.group(a)
        e("v_lshlrev_b32 v9, 10, v14")
        e("v_add_u32 v9, v9, v10")
        e("v_lshlrev_b32 v11, 3, v14")
        e(f"v_add_u32 v11, {G_OFF}, v11")
        e("s_mov_b32 s84, 0")
        for it in range(4):
            if it:
                e("s_add_u32 s84, s84, 4096")
            A.vmi("ep", f"buffer_load_dwordx2 {vr(VXE + 2 * it, 2)}, v9, s[8:11], s84 offen")
        for it in range(4):
            A.vmi("ep", f"buffer_load_dwordx2 {vr(VGE + 2 * it, 2)}, v11, s[56:59], 0 offen offset:{it * 32} sc1")
        A.vmi("ep", f"global_load_dwordx2 {vr(VDS, 2)}, v10, s[32:33]")
        A.vmi("ep", f"global_load_dwordx2 {vr(VB2, 2)}, v10, s[42:43]")
        srd(A, 12, 46, 47, 2048 * 2048)

    A.push("ep", A.record(ep_loads))

    def mfmas(t, zero):
        b = AR0 + 16 * (t % DA)
        it = []
        for db in range(4):
            for tb4 in range(4):
                d = vr(ACC(db, tb4), 4)
                cc = "0" if zero else d
                it.append(f"v_mfma_f32_16x16x32_bf16 {d}, {breg(t, 4 * db, 4)}, {vr(b + 4 * tb4, 4)}, {cc}")
        return it

    def dump(vaddr):
        for db in range(4):
            for tb4 in range(4):
                ro = 32 * (tb4 >> 1) + 4 * (tb4 & 1)
                e(f"ds_write_b128 v{vaddr}, {vr(ACC(db, tb4), 4)} offset:{ro * 272 + db * 64}")

    def step(t, zero):
        ld = a_loads(t + DA - 1) if t + DA - 1 < 22 else []
        li = 0
        for k, m in enumerate(mfmas(t, zero)):
            e(m)
            if (k & 1) and li < len(ld):
                A.vmi(*ld[li])
                li += 1
            elif not ld and nxt_dma >= 22 and not pend:
                A.pop("ep", 2)
        if ld:
            e("s_add_u32 s93, s93, 4096")

    for t in range(22):
        while pend and pend[0] <= t + 1:
            land_tile()
        if len(pend) >= cfg.get("g2_inflight", 2):
            land_tile()
        if t >= 1:
            issue_tiles(min(22, nxt_dma + 1))
        assert t not in pend and t < nxt_dma
        A.vm_wait(f"a{t}")
        if t in (0, 5, 10, 15, 20):
            A.stamp(25 + t // 5)
        if t == 10:
            LN, LJ = A.newlab("nrm"), A.newlab("join")
            e("s_cmp_eq_u32 s6, 1")
            e(f"s_cbranch_scc0 {LN}")
            saved = list(A.vm)
            savedq = [list(x) for x in A.q.get("ep", [])]
            A.nop(8)
            dump(12)
            e("s_waitcnt lgkmcnt(0)")
            step(t, True)
            after = list(A.vm)
            e(f"s_branch {LJ}")
            A.lab(LN)
            A.vm = list(saved)
            A.q["ep"] = savedq
            step(t, False)
            assert A.vm == after
            A.lab(LJ)
        else:
            step(t, t == 0)
    A.drain("ep")
    A.stamp(30)
    A.nop(4)
    dump(13)
    e("s_lshl_b32 s3, s6, 4")
    e("v_add_u32 v6, s3, v3")
    e("v_mul_u32_u24 v6, 272, v6")
    e("v_lshl_add_u32 v6, v2, 4, v6")
    e(f"v_add_u32 v6, {LDS_R}, v6")
    e(f"v_add_u32 v7, {3 * RSTR}, v6")
    A.vm_wait("ep")
    DS, B2 = 96, 100
    for k, src in ((DS, VDS), (B2, VB2)):
        e(f"v_lshlrev_b32 v{k}, 16, v{src}")
        e(f"v_and_b32 v{k + 1}, 0xffff0000, v{src}")
        e(f"v_lshlrev_b32 v{k + 2}, 16, v{src + 1}")
        e(f"v_and_b32 v{k + 3}, 0xffff0000, v{src + 1}")
    e("v_lshlrev_b32 v9, 11, v14")
    e("s_lshl_b32 s3, s89, 8")
    e("v_lshl_add_u32 v10, v2, 4, s3")
    e("v_add_u32 v9, v9, v10")
    for it in range(4):
        X = 104 + 8 * it
        xs = VXE + 2 * it
        e(f"v_lshlrev_b32 v{X}, 16, v{xs}")
        e(f"v_and_b32 v{X + 1}, 0xffff0000, v{xs}")
        e(f"v_lshlrev_b32 v{X + 2}, 16, v{xs + 1}")
        e(f"v_and_b32 v{X + 3}, 0xffff0000, v{xs + 1}")
        for h in range(2):
            e(f"v_pk_mul_f32 {vr(X + 2 * h, 2)}, {vr(X + 2 * h, 2)}, {vr(DS + 2 * h, 2)}")
        e(f"v_cvt_pk_bf16_f32 v{X + 4}, v{X}, v{X + 1}")
        e(f"v_cvt_pk_bf16_f32 v{X + 5}, v{X + 2}, v{X + 3}")
        e(f"v_lshlrev_b32 v{X}, 16, v{X + 4}")
        e(f"v_and_b32 v{X + 1}, 0xffff0000, v{X + 4}")
        e(f"v_lshlrev_b32 v{X + 2}, 16, v{X + 5}")
        e(f"v_and_b32 v{X + 3}, 0xffff0000, v{X + 5}")
    e("s_waitcnt lgkmcnt(0)")
    e("s_barrier")
    A.stamp(31)
    P0 = 16
    for it in range(4):
        for b in range(5):
            base, o = (6, b * RSTR) if b < 3 else (7, (b - 3) * RSTR)
            e(f"ds_read_b128 {vr(P0 + (it * 5 + b) * 4, 4)}, v{base} offset:{o + it * 4 * 272}")
    e("s_mov_b32 s84, 0")
    for it in range(4):
        X = 104 + 8 * it
        P = [P0 + (it * 5 + b) * 4 for b in range(5)]
        g, omg = VGE + 2 * it, VGE + 2 * it + 1
        e(f"s_waitcnt lgkmcnt({15 - 5 * it})")
        for h in range(2):
            o = 2 * h
            e(f"v_pk_add_f32 {vr(X + o, 2)}, {vr(X + o, 2)}, {vr(P[0] + o, 2)}")
            e(f"v_pk_add_f32 {vr(P[1] + o, 2)}, {vr(P[1] + o, 2)}, {vr(B2 + o, 2)}")
            e(f"v_pk_add_f32 {vr(X + o, 2)}, {vr(X + o, 2)}, {vr(P[4] + o, 2)}")
            e(f"v_pk_add_f32 {vr(P[2] + o, 2)}, {vr(P[2] + o, 2)}, {vr(P[3] + o, 2)}")
        for h in range(2):
            o = 2 * h
            e(f"v_pk_add_f32 {vr(P[1] + o, 2)}, {vr(P[1] + o, 2)}, {vr(P[2] + o, 2)}")
        for r in range(4):
            e(f"v_mul_f32 v{X + r}, v{g}, v{X + r}")
        for r in range(4):
            e(f"v_fmac_f32 v{X + r}, v{omg}, v{P[1] + r}")
        if it:
            e("s_add_u32 s84, s84, 8192")
        A.vmi("ost", f"buffer_store_dwordx4 {vr(X, 4)}, v9, s[12:15], s84 offen{OSF}")
    A.stamp(32)
    if A.stamps:
        A.vm_all()
    A.stamp(33, True)
    A.stamp_flush(0, 56)
    A.lab(END)
    e("s_endpgm")
    A.lab("L_code_end")


def kd(name, vgpr, accum, sgpr=102):
    return f""".amdhsa_kernel {name}
  .amdhsa_next_free_vgpr {vgpr}
  .amdhsa_next_free_sgpr {sgpr}
  .amdhsa_accum_offset {accum}
  .amdhsa_group_segment_fixed_size 0
  .amdhsa_kernarg_size 144
  .amdhsa_user_sgpr_count 2
  .amdhsa_user_sgpr_kernarg_segment_ptr 1
  .amdhsa_system_sgpr_workgroup_id_x 1
  .amdhsa_float_denorm_mode_32 3
.end_amdhsa_kernel
"""


HEADER = open("cdna_kernels/" + KN[:-7] + ".s.ref").read().split("; Override launch")[0]


def generate(cfg):
    out = [HEADER.rstrip("\n")]
    out.append("; @launch grid=(256,1,1) block=(256,1,1) lds=163840")
    out.append('.amdgcn_target "amdgcn-amd-amdhsa--gfx950"')
    out.append(".text")
    for name, fn in ((KN, gen_k1),):
        A = Asm()
        A.stamps = bool(cfg.get("stamps"))
        fn(A, cfg)
        out.append(f".globl {name}")
        out.append(".p2align 8")
        out.append(f".type {name},@function")
        out.append(f"{name}:")
        out.extend(A.L)
    out.append('.section .rodata,"a"')
    out.append(".p2align 6")
    out.append(kd(KN, 512, 256))
    return "\n".join(out) + "\n"


if __name__ == "__main__":
    cfg = {"map1": "4x8", "vm_gap": 5}
    path = "cdna_kernels/" + KN[:-7] + ".s"
    for a in sys.argv[1:]:
        if a.startswith("-o"):
            path = a[2:]
        elif "=" in a:
            k, v = a.split("=")
            cfg[k] = int(v) if v.isdigit() else v.replace("_", " ").replace("none", "")
    open(path, "w").write(generate(cfg))
    print("wrote", path)
```

```python
import sys

KN = "gated_mix__ssm_conv_s5__dense_activation_squared_relu__prompt_kernel"
K2N = "gated_mix_stage2_kernel"

AF_RT = 88 * 4096
AF_OFF = 0
E_OFF = 32 * AF_RT
G_OFF = E_OFF + 16 * 8192
N_OFF = G_OFF + 2048 * 8
Y_OFF = N_OFF + 256
FL_OFF = Y_OFF + 16 * 256
WS_USED = FL_OFF + 16 * 256
STAMP_OFF = 0x1000000
OOB = 0x7FFFFF00

LOG2E = 0x3FB8AA3B
INV2PI = 0x3E22F983


class Asm:
    def __init__(self):
        self.L = []
        self.vm = []
        self.nlab = 0
        self.stamps = False
        self.rec = None
        self.q = {}

    def e(self, s):
        if self.rec is not None:
            self.rec.append([("e", s)])
        else:
            self.L.append("    " + s)

    def record(self, fn):
        assert self.rec is None
        self.rec = []
        fn()
        out, self.rec = self.rec, None
        return out

    def group(self, fn):
        outer = self.rec
        self.rec = []
        fn()
        merged = [op for it in self.rec for op in it]
        self.rec = outer
        self.rec.append(merged)

    def push(self, q, items):
        self.q.setdefault(q, []).extend(items)

    def pop(self, q, n=1):
        lst = self.q.get(q, [])
        while n > 0 and lst:
            it = lst.pop(0)
            for op in it:
                if op[0] == "e":
                    self.e(op[1])
                elif op[0] == "vmi":
                    self.vmi(op[1], op[2])
                elif op[0] == "vmw":
                    self.vm_wait(*op[1])
                elif op[0] == "lab":
                    self.lab(op[1])
            n -= 1

    def head_is_vmem(self, q):
        lst = self.q.get(q, [])
        return bool(lst) and any(op[0] == "vmi" for op in lst[0])

    def drain(self, q):
        self.pop(q, 1 << 30)

    def qlen(self, q):
        return len(self.q.get(q, []))

    def lab(self, s):
        if self.rec is not None:
            self.rec.append([("lab", s)])
        else:
            self.L.append(s + ":")

    def c(self, s):
        self.L.append("    ; " + s)

    def newlab(self, p):
        self.nlab += 1
        return f"L_{p}_{self.nlab}"

    def vmi(self, tag, s):
        if self.rec is not None:
            self.rec.append([("vmi", tag, s)])
            return
        self.e(s)
        self.vm.append(tag)
        assert len(self.vm) <= 63, "vmcnt overflow"

    def vm_wait(self, *tags):
        if self.rec is not None:
            self.rec.append([("vmw", tags)])
            return
        idx = [i for i, t in enumerate(self.vm) if t in tags]
        if not idx:
            return
        i = max(idx)
        n = len(self.vm) - 1 - i
        self.e(f"s_waitcnt vmcnt({n})")
        self.vm = self.vm[i + 1:]

    def vm_all(self):
        self.e("s_waitcnt vmcnt(0)")
        self.vm = []

    def stamp(self, idx, last=False):
        if not self.stamps:
            return
        self.e("s_memtime s[98:99]")
        self.e("s_waitcnt lgkmcnt(0)")
        self.e(f"v_writelane_b32 v255, s98, {idx}")
        if idx == 0 or last:
            self.e("s_memrealtime s[98:99]")
            self.e("s_waitcnt lgkmcnt(0)")
            self.e(f"v_writelane_b32 v255, s98, {63 if last else 62}")

    def stamp_flush(self, slot, srd_):
        if not self.stamps:
            return
        self.e("s_lshl_b32 s98, s2, 2")
        self.e("s_add_u32 s98, s98, s6")
        self.e("s_lshl_b32 s98, s98, 8")
        self.e(f"s_add_u32 s98, s98, {STAMP_OFF + slot * 0x40000}")
        self.e("v_lshlrev_b32 v254, 2, v1")
        self.e(f"s_mov_b32 s{srd_ + 2}, {STAMP_OFF + 0x100000:#x}")
        self.e(f"buffer_store_dword v255, v254, s[{srd_}:{srd_ + 3}], s98 offen")

    def nop(self, n):
        while n > 0:
            k = min(n, 16)
            self.e(f"s_nop {k - 1}")
            n -= k


def vr(a, n=1):
    return f"v{a}" if n == 1 else f"v[{a}:{a + n - 1}]"


def ar(a, n=1):
    return f"a{a}" if n == 1 else f"a[{a}:{a + n - 1}]"


def sr(a, n=1):
    return f"s{a}" if n == 1 else f"s[{a}:{a + n - 1}]"


def srd(A, s, lo, hi, nrec):
    A.e(f"s_mov_b32 s{s}, s{lo}")
    A.e(f"s_and_b32 s{s + 1}, s{hi}, 0xffff")
    A.e(f"s_mov_b32 s{s + 2}, {nrec:#x}")
    A.e(f"s_mov_b32 s{s + 3}, 0x20000")


def cfma(A, dr, di, ar_, ai, br, bi):
    A.e(f"v_fmac_f32 v{dr}, v{ar_}, v{br}")
    A.e(f"v_fmac_f32 v{di}, v{ar_}, v{bi}")
    A.e(f"v_fma_f32 v{dr}, -v{ai}, v{bi}, v{dr}")
    A.e(f"v_fmac_f32 v{di}, v{ai}, v{br}")


def cmul(A, dr, di, ar_, ai, br, bi):
    A.e(f"v_mul_f32 v{dr}, v{ar_}, v{br}")
    A.e(f"v_mul_f32 v{di}, v{ar_}, v{bi}")
    A.e(f"v_fma_f32 v{dr}, -v{ai}, v{bi}, v{dr}")
    A.e(f"v_fmac_f32 v{di}, v{ai}, v{br}")


def interleave(main, fill, first=0, per=1):
    out = []
    fi = 0
    for i, m in enumerate(main):
        out.append(m)
        if i >= first:
            for _ in range(per):
                if fi < len(fill):
                    out.append(fill[fi])
                    fi += 1
    out.extend(fill[fi:])
    return out


LDS_S = 0
LDS_X = [65536, 98304, 131072]
LDS_F = [98304, 131072, 0, 65536]
LDS_BIAS = 126976
LDS_SCR = 128000
LDS_T = 65536
LDS_RING = [32768, 49152, 0, 16384, 98304, 114688, 131072, 147456]
LDS_HI = 98304
LDS_R = 65536
RSTR = 17408


def SACC(tb, ct, r=0):
    return 8 + (tb * 4 + ct) * 4 + r


def FACC(nt, tb, r=0):
    return 40 + (nt * 2 + tb) * 4 + r


VX = 96
VS = 104
VRX = 108
VRX2 = 112
VRS = 116
VF = 120
VFR = 127
VBIAS = 128
CB = 156
VCIN = 200
VWIN = 204
VT = 208


def C(pb, k):
    return CB + 22 * pb + k


C_LR, C_LI, C_NLI = 0, 1, 2
C_L8, C_L16, C_L32, C_L8Q, C_MC, C_L32W, C_LQ, C_L4, C_MA, C_C2 = 3, 5, 7, 9, 11, 13, 15, 17, 19, 20


def XF(ks, tb):
    return (ks * 2 + tb) * 4


def flit(x):
    import struct
    return "%#x" % struct.unpack("<I", struct.pack("<f", x))[0]


def gen_k1(A, cfg):
    e = A.e
    STF = cfg.get("stf", " sc1")
    END = "L_k1_end"
    e("s_cmp_ge_u32 s2, 256")
    e(f"s_cbranch_scc1 {END}")
    e("s_load_dwordx16 s[16:31], s[0:1], 0")
    e("s_load_dwordx16 s[32:47], s[0:1], 64")
    e("s_load_dwordx4 s[48:51], s[0:1], 128")
    A.stamp(0)
    if cfg.get("codepf", 1):
        e("s_getpc_b64 s[60:61]")
        A.lab("L_pc")
        e("s_and_b32 s61, s61, 0xffff")
        e("s_mov_b32 s62, L_code_end-L_pc")
        e("s_mov_b32 s63, 0x20000")
        e("s_lshr_b32 s3, s2, 3")
        e("s_lshl_b32 s3, s3, 10")
        e("v_lshlrev_b32 v4, 2, v0")
        e("v_add_u32 v4, s3, v4")
        A.vmi("cpf", "buffer_load_dword v252, v4, s[60:63], 0 offen")
    e("v_and_b32 v1, 63, v0")
    e("v_lshrrev_b32 v4, 6, v0")
    e("v_and_b32 v2, 15, v1")
    e("v_readfirstlane_b32 s6, v4")
    e("v_lshrrev_b32 v3, 4, v1")
    if cfg["map1"] == "2x16":
        e("s_and_b32 s3, s2, 7")
        e("s_lshl_b32 s3, s3, 1")
        e("s_lshr_b32 s7, s2, 7")
        e("s_add_u32 s4, s3, s7")
        e("s_lshr_b32 s5, s2, 3")
        e("s_and_b32 s5, s5, 15")
    elif cfg["map1"] == "8x4":
        e("s_and_b32 s3, s2, 1")
        e("s_lshl_b32 s3, s3, 3")
        e("s_lshr_b32 s7, s2, 3")
        e("s_and_b32 s7, s7, 7")
        e("s_add_u32 s4, s3, s7")
        e("s_lshr_b32 s5, s2, 1")
        e("s_and_b32 s5, s5, 3")
        e("s_lshl_b32 s5, s5, 2")
        e("s_lshr_b32 s7, s2, 6")
        e("s_add_u32 s5, s5, s7")
    else:
        e("s_lshr_b32 s3, s2, 1")
        e("s_and_b32 s3, s3, 3")
        e("s_lshl_b32 s3, s3, 2")
        e("s_lshr_b32 s7, s2, 6")
        e("s_add_u32 s4, s3, s7")
        e("s_lshr_b32 s5, s2, 3")
        e("s_and_b32 s5, s5, 7")
        e("s_and_b32 s7, s2, 1")
        e("s_lshl_b32 s7, s7, 3")
        e("s_add_u32 s5, s5, s7")
    e("v_xor_b32 v4, v2, v3")
    e("v_lshlrev_b32 v4, 4, v4")
    e("v_lshl_or_b32 v5, v3, 10, v4")
    for m in range(8):
        x = (m >> 1) << 6
        a = (m & 3) * 3072
        if x:
            e(f"v_xor_b32 v{VX + m}, {x}, v5")
            if a:
                e(f"v_add_u32 v{VX + m}, {a}, v{VX + m}")
        elif a:
            e(f"v_add_u32 v{VX + m}, {a}, v5")
        else:
            e(f"v_mov_b32 v{VX + m}, v5")
    for m in range(4):
        if m:
            e(f"v_xor_b32 v{VS + m}, {m << 6}, v5")
            e(f"v_add_u32 v{VS + m}, {m * 3072}, v{VS + m}")
        else:
            e(f"v_mov_b32 v{VS}, v5")
    e("s_lshl_b32 s64, s4, 7")
    e("s_lshl_b32 s3, s6, 5")
    e("s_add_u32 s64, s64, s3")
    e("s_lshl_b32 s64, s64, 10")
    e("s_lshl_b32 s65, s5, 5")
    e("s_and_b32 s3, s6, 1")
    e("s_lshl_b32 s3, s3, 4")
    e("s_add_u32 s65, s65, s3")
    e("s_lshl_b32 s65, s65, 10")
    e(f"s_mul_i32 s66, s6, {32 * 3584}")
    e("s_mul_i32 s3, s5, 224")
    e("s_add_u32 s66, s66, s3")
    SXC, SSC, SFC = [72, 73, 74, 75], [34, 35, 48, 49], [85, 86, 87, 88]
    e("s_lshl_b32 s67, s6, 13")
    e("s_lshl_b32 s68, s6, 12")
    e("s_mul_i32 s69, s6, 7168")
    e("s_lshl_b32 s3, s5, 5")
    e("v_and_b32 v6, 31, v1")
    e("v_add_u32 v6, s3, v6")
    e("v_lshlrev_b32 v6, 1, v6")
    e(f"s_mov_b32 s7, {N_OFF}")
    e("s_add_u32 s82, s4, s5")
    if not cfg.get("rot", 1):
        e("s_mov_b32 s82, 0")
    e("s_waitcnt lgkmcnt(0)")
    A.stamp(18)
    e("s_load_dword s97, s[50:51], s7")
    for t in range(4):
        e(f"s_add_u32 s3, s82, {t}")
        e("s_and_b32 s3, s3, 3")
        e("s_lshl_b32 s7, s3, 8")
        e(f"s_add_u32 s{SXC[t]}, s64, s7")
        e(f"s_add_u32 s{SSC[t]}, s65, s7")
        e(f"s_mul_i32 s7, s3, {128 * 3584}")
        e(f"s_add_u32 s{SFC[t]}, s66, s7")
    T = VT
    A.vmi("cst", f"global_load_ushort v{T}, v6, s[18:19]")
    A.vmi("cst", f"global_load_ushort v{T + 1}, v6, s[20:21]")
    A.vmi("cst", f"global_load_ushort v{T + 2}, v6, s[30:31]")
    srd(A, 8, 16, 17, 2048 * 1024)
    e("s_cmp_lt_u32 s6, 2")
    e("s_cselect_b32 s12, s22, s24")
    e("s_cselect_b32 s13, s23, s25")
    e("s_and_b32 s13, s13, 0xffff")
    e(f"s_mov_b32 s14, {512 * 1024:#x}")
    e("s_mov_b32 s15, 0x20000")

    def dma_group(tag, m0base, m0imm, sbase, simm, vaddrs, srd_):
        def fn():
            for k, va in enumerate(vaddrs):
                off = f" offset:{k * 1024}" if k else ""

                def one(k=k, va=va, off=off):
                    if k == 0:
                        e(f"s_add_u32 m0, s{m0base}, {m0imm}")
                        if simm:
                            e(f"s_add_u32 s70, s{sbase}, {simm}")
                        else:
                            e(f"s_mov_b32 s70, s{sbase}")
                    A.vmi(tag, f"buffer_load_dwordx4 v{va}, s[{srd_}:{srd_ + 3}], s70 offen{off}{cfg.get('ldf_' + tag[0], '')} lds")
                A.group(one)
        return A.record(fn)

    def dma_x(c, buf):
        it = []
        for h in range(2):
            it += dma_group(f"x{c}", 67, LDS_X[buf] + h * 4096, SXC[c], h * 16384,
                            [VX + 4 * h + k for k in range(4)], 8)
        return it

    def dma_s(c):
        return dma_group(f"s{c}", 68, LDS_S + c * 16384, SSC[c], 0, [VS + k for k in range(4)], 12)

    def dma_f(c):
        it = []
        for h in range(2):
            it += dma_group(f"f{c}", 69, LDS_F[c] + h * 4096, SFC[c], 0,
                            [VF + 4 * h + k for k in range(4 if h == 0 else 3)], 52)
        return it

    def fill_patterns():
        e("v_xor_b32 v4, v2, v3")
        e("v_lshrrev_b32 v5, 2, v2")
        e("v_lshlrev_b32 v5, 3, v5")
        e("v_and_b32 v6, 3, v2")
        e("v_add_u32 v5, v5, v6")
        e("v_lshlrev_b32 v5, 8, v5")
        A.group(lambda: (e(f"s_add_u32 s3, s67, {LDS_X[0]}"), e("v_add_u32 v5, s3, v5")))
        e("v_lshlrev_b32 v6, 8, v2")
        for k in range(4):
            e(f"v_xor_b32 v7, {4 * k}, v4")
            e("v_lshlrev_b32 v7, 4, v7")
            e(f"v_add_u32 v{VRX + k}, v5, v7")
            e(f"v_add_u32 v{VRS + k}, v6, v7")
            e(f"v_add_u32 v{VRX2 + k}, 0x10000, v{VRX + k}")

    def fill_srds():
        srd(A, 52, 36, 37, 512 * 3584)
        srd(A, 56, 50, 51, WS_USED)

        def esrd():
            e("s_lshl_b32 s3, s5, 13")
            e(f"s_add_u32 s3, s3, {E_OFF}")
            e("s_add_u32 s76, s50, s3")
            e("s_addc_u32 s77, s51, 0")
            e("s_and_b32 s77, s77, 0xffff")
            e("s_mov_b32 s78, 8192")
            e("s_mov_b32 s79, 0x20000")
        A.group(esrd)
        srd(A, 60, 38, 39, 3584)
        e(f"s_mov_b32 s80, {LOG2E:#x}")
        e(f"s_mov_b32 s81, {INV2PI:#x}")

    Z = VT + 4
    TP = VT + 12

    def spread(d0, d1):
        e(f"v_mov_b32 v{d1}, v{d0}")
        e(f"v_mov_b32 v{d1 + 1}, v{d0 + 1}")
        A.nop(1)
        e(f"v_permlane16_swap_b32 v{d0}, v{d1}")
        e(f"v_permlane16_swap_b32 v{d0 + 1}, v{d1 + 1}")

    def cpow1(k, zr, a1, dr, di, t, kreg=None):
        if kreg is not None:
            e(f"v_mul_f32 v{t}, v{kreg}, v{zr}")
            e(f"v_mul_f32 v{t + 1}, v{kreg}, v{a1}")
        elif k == 1.0:
            e(f"v_mov_b32 v{t}, v{zr}")
            e(f"v_mov_b32 v{t + 1}, v{a1}")
        else:
            e(f"v_mul_f32 v{t}, {flit(k)}, v{zr}")
            e(f"v_mul_f32 v{t + 1}, {flit(k)}, v{a1}")
        e(f"v_exp_f32 v{t}, v{t}")
        e(f"v_fract_f32 v{t + 1}, v{t + 1}")
        e(f"v_cos_f32 v{t + 2}, v{t + 1}")
        e(f"v_sin_f32 v{t + 3}, v{t + 1}")
        e(f"v_mul_f32 v{dr}, v{t}, v{t + 2}")
        e(f"v_mul_f32 v{di}, v{t}, v{t + 3}")

    def fill_consts():
        A.vm_wait("cst")
        e(f"v_lshlrev_b32 v{Z}, 16, v{T}")
        e(f"v_lshlrev_b32 v{Z + 1}, 16, v{T + 1}")
        e(f"v_lshlrev_b32 v{T + 2}, 16, v{T + 2}")
        e(f"v_mul_f32 v{T + 2}, s80, v{T + 2}")
        e(f"v_exp_f32 v{T + 2}, v{T + 2}")
        A.nop(1)
        e(f"v_cvt_pk_bf16_f32 v{T + 2}, v{T + 2}, v{T + 2}")
        e(f"v_lshlrev_b32 v{T + 2}, 16, v{T + 2}")
        e(f"v_mul_f32 v{Z + 2}, v{T + 2}, v{Z}")
        e(f"v_mul_f32 v{Z + 3}, v{T + 2}, v{Z + 1}")
        e(f"v_mul_f32 v{Z + 2}, s80, v{Z + 2}")
        e(f"v_mul_f32 v{Z + 3}, s81, v{Z + 3}")
        cpow1(1.0, Z + 2, Z + 3, C(0, C_LR), C(0, C_LI), TP)
        t = TP
        e(f"v_subrev_f32 v{t}, 1.0, v{C(0, C_LR)}")
        e(f"v_mul_f32 v{t + 1}, v{Z}, v{Z}")
        e(f"v_fmac_f32 v{t + 1}, v{Z + 1}, v{Z + 1}")
        e(f"v_rcp_f32 v{t + 1}, v{t + 1}")
        e(f"v_mul_f32 v{t + 2}, v{t}, v{Z}")
        e(f"v_fmac_f32 v{t + 2}, v{C(0, C_LI)}, v{Z + 1}")
        e(f"v_mul_f32 v{t + 3}, v{C(0, C_LI)}, v{Z}")
        e(f"v_fma_f32 v{t + 3}, -v{t}, v{Z + 1}, v{t + 3}")
        e(f"v_add_f32 v{t + 1}, v{t + 1}, v{t + 1}")
        e(f"v_mul_f32 v{C(0, C_C2)}, v{t + 2}, v{t + 1}")
        e(f"v_mul_f32 v{C(0, C_C2 + 1)}, v{t + 3}, v{t + 1}")
        spread(C(0, C_C2), C(1, C_C2))
        spread(C(0, C_LR), C(1, C_LR))
        for pb in range(2):
            e(f"v_sub_f32 v{C(pb, C_NLI)}, 0, v{C(pb, C_LI)}")
        for k, dst in ((8.0, C_L8), (16.0, C_L16), (32.0, C_L32), (512.0, C_L4)):
            cpow1(k, Z + 2, Z + 3, C(0, dst), C(0, dst + 1), TP)
            spread(C(0, dst), C(1, dst))
        KR = T
        A.group(lambda: (e("s_lshl_b32 s3, s6, 5"), e(f"v_cvt_f32_u32 v{KR}, s3")))
        cpow1(None, Z + 2, Z + 3, C(0, C_L32W), C(0, C_L32W + 1), TP, kreg=KR)
        spread(C(0, C_L32W), C(1, C_L32W))
        spread(Z + 2, Z + 6)
        e(f"v_cvt_f32_u32 v{KR}, v3")
        e(f"v_mul_f32 v{KR + 1}, 0x41000000, v{KR}")
        e(f"v_mul_f32 v{KR + 2}, 0x43000000, v{KR}")
        for kr, dst in ((KR + 1, C_L8Q), (KR + 2, C_LQ)):
            for pb in range(2):
                cpow1(None, Z + 2 + 4 * pb, Z + 3 + 4 * pb, C(pb, dst), C(pb, dst + 1), TP + 4 * pb, kreg=kr)
        e("v_cmp_eq_u32 vcc, 3, v3")
        e("v_cmp_eq_u32 s[82:83], 2, v3")
        e("v_and_b32 v4, 1, v3")
        e(f"v_cvt_f32_u32 v{C(0, C_MA)}, v4")
        e("v_cndmask_b32 v5, 0, 1.0, s[82:83]")
        for pb in range(2):
            e(f"v_cndmask_b32 v{C(pb, C_MC)}, v5, v{C(pb, C_L8)}, vcc")
            e(f"v_cndmask_b32 v{C(pb, C_MC + 1)}, 0, v{C(pb, C_L8 + 1)}, vcc")

    def fill_vf():
        A.group(lambda: (e("s_and_b32 s3, s5, 1"), e("s_lshl_b32 s7, s3, 1")))
        for m in range(7):
            d = VF + m
            e(f"v_add_u32 v4, {64 * m}, v1")
            e("v_mul_u32_u24 v5, 4682, v4")
            e("v_lshrrev_b32 v5, 16, v5")
            e("v_mul_u32_u24 v6, 14, v5")
            e("v_sub_u32 v4, v4, v6")
            e("v_add_u32 v4, s7, v4")
            e("v_subrev_u32 v6, 14, v4")
            e("v_min_u32 v4, v4, v6")
            e("v_and_b32 v6, 12, v5")
            e("v_lshlrev_b32 v6, 1, v6")
            e("v_and_b32 v7, 3, v5")
            e("v_add_u32 v6, v6, v7")
            e("v_lshrrev_b32 v7, 4, v5")
            e("v_lshl_add_u32 v6, v7, 2, v6")
            e("v_mul_u32_u24 v6, 3584, v6")
            e("v_lshl_add_u32 v6, v4, 4, v6")
            if m & 3:
                e(f"v_subrev_u32 v{d}, {(m & 3) * 1024}, v6")
            else:
                e(f"v_mov_b32 v{d}, v6")
        e("v_lshrrev_b32 v4, 2, v2")
        e("v_lshl_add_u32 v4, v3, 2, v4")
        e("v_mul_u32_u24 v4, 224, v4")
        e("v_and_b32 v5, 3, v2")
        e("v_lshl_add_u32 v4, v5, 3, v4")
        e(f"v_add_u32 v{VFR}, {LDS_F[0]}, v4")
        e("v_lshlrev_b32 v231, 2, v1")

    def dma_bias():
        def one():
            e("s_lshl_b32 s70, s6, 8")
            e(f"s_add_u32 m0, s70, {LDS_BIAS}")
            e("s_mul_i32 s70, s5, 224")
            A.vmi("bias", f"buffer_load_dword v231, s[60:63], s70 offen lds")
        return A.record(lambda: A.group(one))

    BT = VT + 8

    def fill_bias():
        def addr():
            e("s_lshl_b32 s3, s6, 8")
            e(f"s_add_u32 s3, s3, {LDS_BIAS}")
            e("v_lshl_add_u32 v4, v3, 3, s3")
            e("s_and_b32 s3, s5, 1")
            e("s_lshl_b32 s7, s3, 5")
            e("v_add_u32 v5, s7, v4")
            e(f"s_mul_i32 s7, s3, {6 * 32}")
            e("s_sub_u32 s7, 192, s7")
            e("v_add_u32 v6, s7, v4")
        A.group(addr)
        A.vm_wait("bias")
        for nt in range(6):
            e(f"ds_read_b64 {vr(BT + 2 * nt, 2)}, v5 offset:{32 * nt}")
        e(f"ds_read_b64 {vr(BT + 12, 2)}, v6")
        e("s_waitcnt lgkmcnt(0)")
        for nt in range(7):
            b = VBIAS + 4 * nt
            e(f"v_lshlrev_b32 v{b}, 16, v{BT + 2 * nt}")
            e(f"v_and_b32 v{b + 1}, 0xffff0000, v{BT + 2 * nt}")
            e(f"v_lshlrev_b32 v{b + 2}, 16, v{BT + 2 * nt + 1}")
            e(f"v_and_b32 v{b + 3}, 0xffff0000, v{BT + 2 * nt + 1}")

    VC, VW, VRC, VRW = 232, 233, 234, 235
    VRC2, VRW2 = 224, 225
    VB = 240 + 6

    def BREG(t):
        if t < 4:
            return ("a", 192 + 16 * t)
        if t < 12:
            return ("a", 16 * (t - 4))
        if t < 16:
            return ("a", 128 + 16 * (t - 12))
        return ("v", 128 + 16 * (t - 16))

    def breg(t, off, n):
        f, b = BREG(t)
        return (ar if f == "a" else vr)(b + off, n)

    def tile_patterns():
        e("v_lshrrev_b32 v4, 2, v1")
        e("v_lshlrev_b32 v4, 10, v4")
        e("v_sub_u32 v5, 0, v3")
        e("v_xor_b32 v5, v5, v1")
        e("v_and_b32 v5, 3, v5")
        e(f"v_lshl_add_u32 v{VC}, v5, 4, v4")
        e("v_lshrrev_b32 v4, 3, v1")
        e("v_lshlrev_b32 v4, 10, v4")
        e("v_lshrrev_b32 v5, 1, v1")
        e("v_xor_b32 v5, v5, v3")
        e("v_and_b32 v5, 3, v5")
        e("v_lshlrev_b32 v5, 1, v5")
        e("v_and_b32 v6, 1, v1")
        e("v_add_u32 v5, v5, v6")
        e(f"v_lshl_add_u32 v{VW}, v5, 4, v4")
        e("v_lshrrev_b32 v4, 2, v2")
        e("v_sub_u32 v5, 0, v4")
        e("v_xor_b32 v5, v5, v3")
        e("v_and_b32 v5, 3, v5")
        e("v_lshlrev_b32 v5, 4, v5")
        e("v_lshl_add_u32 v5, v2, 6, v5")
        e(f"v_add_u32 v{VRC}, s68, v5")
        e("v_lshl_add_u32 v4, v3, 2, v4")
        e("v_lshlrev_b32 v4, 7, v4")
        e("v_and_b32 v5, 3, v2")
        e("v_lshl_add_u32 v4, v5, 3, v4")
        e("v_add_u32 v4, s68, v4")
        e("v_lshrrev_b32 v5, 3, v2")
        e("v_lshl_add_u32 v5, v3, 1, v5")
        for db in range(4):
            e(f"v_xor_b32 v6, {db}, v5")
            e("v_and_b32 v6, 3, v6")
            e(f"v_lshl_add_u32 v{VRW + db}, v6, 5, v4")

    def tile_hi():
        e(f"v_add_u32 v{VRC2}, {LDS_HI}, v{VRC}")
        for db in range(4):
            e(f"v_add_u32 v{VRW2 + db}, {LDS_HI}, v{VRW + db}")

    def tile_scalars_():
        e("s_mul_i32 s90, s6, 22")
        if cfg.get("map2", "8x4") == "8x4":
            e("s_and_b32 s3, s2, 1")
            e("s_lshl_b32 s3, s3, 2")
            e("s_lshr_b32 s7, s2, 3")
            e("s_and_b32 s7, s7, 3")
            e("s_add_u32 s89, s3, s7")
            e("s_lshr_b32 s3, s2, 1")
            e("s_and_b32 s3, s3, 3")
            e("s_lshl_b32 s3, s3, 3")
            e("s_lshr_b32 s7, s2, 5")
            e("s_add_u32 s64, s3, s7")
        else:
            e("s_and_b32 s3, s2, 7")
            e("s_lshl_b32 s3, s3, 2")
            e("s_lshr_b32 s7, s2, 6")
            e("s_add_u32 s64, s3, s7")
            e("s_lshr_b32 s89, s2, 3")
            e("s_and_b32 s89, s89, 7")
        e("s_lshl_b32 s3, s90, 5")
        e("s_lshl_b32 s7, s89, 16")
        e("s_add_u32 s66, s3, s7")
        e("s_sub_u32 s3, s90, 32")
        e("s_lshl_b32 s3, s3, 15")
        e("s_lshl_b32 s7, s89, 7")
        e("s_add_u32 s65, s3, s7")
        e("s_sub_u32 s90, 32, s90")
        e("s_and_b32 s27, s27, 0xffff")
        e("s_and_b32 s29, s29, 0xffff")
        e("s_and_b32 s41, s41, 0xffff")

    def tile_scalars():
        A.group(tile_scalars_)

    def tile_epoch(t0):
        def sel():
            e(f"s_add_u32 s3, s66, {64 * (t0 >> 1)}")
            e(f"s_add_u32 s7, s65, {t0 * 32768}")
            e("s_add_u32 s71, s7, 32768")
            e("s_mov_b32 s48, 0x10000")
            e(f"s_cmp_gt_i32 s90, {t0}")
            e("s_cselect_b32 s12, s26, s40")
            e("s_cselect_b32 s13, s27, s41")
            e("s_cselect_b32 s72, s28, s40")
            e("s_cselect_b32 s73, s29, s41")
            e("s_cselect_b32 s34, s3, s7")
            e("s_cselect_b32 s35, s3, s71")
            e("s_cselect_b32 s48, 64, s48")
            e("s_cselect_b64 vcc, -1, 0")

        def fn():
            A.group(sel)
            if t0 == 0:
                e("s_mov_b32 s14, 0x1c0000")
                e("s_mov_b32 s15, 0x20000")
                e("s_mov_b32 s74, 0x1c0000")
                e("s_mov_b32 s75, 0x20000")
            for m in range(4):
                e(f"v_add_u32 v4, {15360 * m}, v{VC}")
                e(f"v_add_u32 v5, {7168 * m}, v{VW}")
                e(f"v_cndmask_b32 v{VB + m}, v5, v4, vcc")
        return A.record(fn)

    def tile_dma(t, slot):
        sq, so = (12, 34) if t % 2 == 0 else (72, 35)
        ep = tile_epoch(10) if t == 10 else []

        def fn():
            e(f"s_add_u32 m0, s68, {LDS_RING[slot]}")
            e("s_nop 0")
            for m in range(4):
                off = f" offset:{m * 1024}" if m else ""
                A.vmi(f"b{t}", f"buffer_load_dwordx4 v{VB + m}, s[{sq}:{sq + 3}], s{so} offen{off} lds")
            e(f"s_add_u32 s{so}, s{so}, s48")
        return ep + A.record(fn)

    def tile_read(t, slot):
        hi = slot >= 4
        base = LDS_RING[slot] - (LDS_HI if hi else 0)
        vc, vw = (VRC2, VRW2) if hi else (VRC, VRW)

        def body():
            L1, L2 = A.newlab("tr"), A.newlab("tj")
            A.vm_wait(f"b{t}")
            e(f"s_cmp_gt_i32 s90, {t}")
            e(f"s_cbranch_scc0 {L1}")
            for db in range(4):
                e(f"ds_read_b128 {breg(t, 4 * db, 4)}, v{vc} offset:{base + db * 1024}")
            e(f"s_branch {L2}")
            A.lab(L1)
            for db in range(4):
                for hh in range(2):
                    e(f"ds_read_b64_tr_b16 {breg(t, 4 * db + 2 * hh, 2)}, v{vw + db} "
                      f"offset:{base + hh * 2048}")
            A.lab(L2)
        return A.record(lambda: A.group(body))

    def lgkm0():
        return A.record(lambda: e("s_waitcnt lgkmcnt(0)"))

    A.push("v0", A.record(fill_patterns))
    A.push("v0", A.record(fill_srds))
    A.push("v", A.record(fill_consts))
    n_const = A.qlen("v")
    A.push("v", A.record(fill_vf))
    A.push("d", dma_x(0, 0) + dma_s(0) + dma_x(1, 1) + dma_s(1))
    per = cfg.get("pre_fill", 9)
    npop = 0
    while A.qlen("d"):
        A.pop("d")
        npop += 1
        if npop in (1, 6, 12, 18):
            A.stamp(19 + (1, 6, 12, 18).index(npop))
        if A.qlen("v0"):
            A.pop("v0", per)
        else:
            A.pop("v", per)
    A.drain("v0")
    A.pop("v", cfg.get("post_fill", 0))
    A.stamp(1)

    def ssm_reads(s):
        c, ksl = s >> 2, s & 3
        buf = [0, 1, 2, 0][c]
        it = []
        for tb in range(2):
            if buf == 2:
                it.append(f"ds_read_b128 {ar(XF(s, tb), 4)}, v{VRX2 + ksl} offset:{tb * 1024}")
            else:
                it.append(f"ds_read_b128 {ar(XF(s, tb), 4)}, v{VRX + ksl} offset:{buf * 32768 + tb * 1024}")
        for ct in range(4):
            it.append(f"ds_read_b128 {ar(128 + (s & 1) * 16 + ct * 4, 4)}, v{VRS + ksl} "
                      f"offset:{LDS_S + c * 16384 + ct * 4096}")
        return it

    def ssm_mfma(s):
        it = []
        for ct in range(4):
            for tb in range(2):
                d = vr(SACC(tb, ct), 4)
                cc = "0" if s == 0 else d
                it.append(f"v_mfma_f32_16x16x32_bf16 {d}, {ar(XF(s, tb), 4)}, "
                          f"{ar(128 + (s & 1) * 16 + ct * 4, 4)}, {cc}")
        return it

    e("s_waitcnt lgkmcnt(0)")
    e("s_add_u32 s94, s97, 0x3c6ef372")
    e("s_add_u32 s95, s97, 0x7f4a7c15")
    e("s_add_u32 s97, s97, 0x9e3779b9")
    A.vm_wait("x0", "s0")
    e("s_barrier")
    A.stamp(2)
    for r in ssm_reads(0):
        e(r)
    vper = cfg.get("ssm_fill", 5)
    for s in range(16):
        c = s >> 2
        if s == 0:
            A.push("d", dma_x(2, 2) + dma_s(2))
        if s == 4:
            A.push("d", dma_x(3, 0) + dma_s(3))
        if s == 8:
            A.drain("v")
            A.push("d", dma_bias() + dma_f(0))
            A.push("v", A.record(tile_patterns) + A.record(tile_scalars) + tile_epoch(0))
        if s == 12:
            A.push("d", dma_f(1))
            A.push("v", A.record(fill_bias) + A.record(tile_hi))
        e("s_waitcnt lgkmcnt(0)")
        if s in (3, 7, 11):
            A.drain("d")
            A.vm_wait(f"x{c + 1}", f"s{c + 1}")
            e("s_barrier")
            A.stamp(3 + c)
        rd = ssm_reads(s + 1) if s < 15 else []
        mf = ssm_mfma(s)
        nd = [3, 3, 2, 2][c]
        for k, m in enumerate(mf):
            e(m)
            if k < 3:
                for r in rd[2 * k:2 * k + 2]:
                    e(r)
            else:
                if k - 3 < nd:
                    A.pop("d")
                A.pop("v", vper)
    A.drain("d")
    A.drain("v")
    A.stamp(7)

    def touch_weights():
        e("s_lshl_b32 s3, s2, 2")
        e("s_add_u32 s3, s3, s6")
        e("s_sub_u32 s7, s3, 640")
        e("s_sub_u32 s71, s3, 832")
        e("s_cmp_lt_u32 s3, 832")
        e("s_cselect_b32 s60, s26, s28")
        e("s_cselect_b32 s61, s27, s29")
        e("s_cselect_b32 s7, s7, s71")
        e(f"s_mov_b32 s62, {512 * 1024:#x}")
        e("s_cmp_lt_u32 s3, 640")
        e("s_cselect_b32 s60, s40, s60")
        e("s_cselect_b32 s61, s41, s61")
        e("s_cselect_b32 s7, s3, s7")
        e(f"s_cselect_b32 s62, {1792 * 1024:#x}, s62")
        e("s_and_b32 s61, s61, 0xffff")
        e("s_mov_b32 s63, 0x20000")
        e(f"s_mul_i32 s7, s7, {23 * 128}")
        e("v_lshlrev_b32 v4, 7, v1")
        e("v_add_u32 v4, s7, v4")
        e("v_cmp_gt_u32 vcc, 23, v1")
        e(f"v_mov_b32 v5, {OOB:#x}")
        e("s_nop 0")
        e("v_cndmask_b32 v4, v5, v4, vcc")
        A.vmi("pf", "buffer_load_dword v253, v4, s[60:63], 0 offen")

    if cfg.get("touch", 1):
        touch_weights()
    A.push("d", dma_f(2))
    A.nop(4)
    EA = 96

    def U(pb, tau, im):
        return SACC(tau >> 2, pb + 2 * im, tau & 3)

    cur = [None, None]
    for tau in range(1, 8):
        for pb in range(2):
            dst = EA + 4 * pb + 2 * (tau & 1)
            lr, li, nli = C(pb, C_LR), C(pb, C_LI), C(pb, C_NLI)
            pr, pi = (U(pb, 0, 0), U(pb, 0, 1)) if tau == 1 else cur[pb]
            e(f"v_fma_f32 v{dst}, v{lr}, v{pr}, v{U(pb, tau, 0)}")
            e(f"v_fma_f32 v{dst + 1}, v{lr}, v{pi}, v{U(pb, tau, 1)}")
            e(f"v_fmac_f32 v{dst}, v{nli}, v{pi}")
            e(f"v_fmac_f32 v{dst + 1}, v{li}, v{pr}")
            cur[pb] = (dst, dst + 1)
        if tau in (2, 4, 6):
            A.pop("d")
    TB, AA, CC = 104, 108, 112
    for pb in range(2):
        for k in range(2):
            e(f"v_mov_b32 v{TB + 2 * pb + k}, v{cur[pb][k]}")
            e(f"v_mov_b32 v{AA + 2 * pb + k}, v{cur[pb][k]}")
    A.nop(2)
    for x in range(4):
        e(f"v_permlane16_swap_b32 v{AA + x}, v{TB + x}")
    A.nop(1)
    for pb in range(2):
        cfma(A, TB + 2 * pb, TB + 2 * pb + 1, C(pb, C_L8), C(pb, C_L8 + 1), AA + 2 * pb, AA + 2 * pb + 1)
    A.pop("d")
    for x in range(4):
        e(f"v_mov_b32 v{CC + x}, v{TB + x}")
    A.nop(2)
    for x in range(4):
        e(f"v_permlane32_swap_b32 v{CC + x}, v{TB + x}")
    A.nop(1)
    for pb in range(2):
        cfma(A, TB + 2 * pb, TB + 2 * pb + 1, C(pb, C_L16), C(pb, C_L16 + 1), CC + 2 * pb, CC + 2 * pb + 1)
    A.pop("d")
    e("v_lshlrev_b32 v4, 4, v2")
    e("s_lshl_b32 s3, s6, 8")
    e(f"s_add_u32 s3, s3, {LDS_SCR}")
    e("v_add_u32 v5, s3, v4")
    e(f"v_add_u32 v4, {LDS_SCR}, v4")
    e(f"ds_write_b128 v5, {vr(TB, 4)}")
    for pb in range(2):
        ci = VCIN + 2 * pb
        e(f"v_mul_f32 v{ci}, v{C(0, C_MA)}, v{AA + 2 * pb}")
        e(f"v_mul_f32 v{ci + 1}, v{C(0, C_MA)}, v{AA + 2 * pb + 1}")
        cfma(A, ci, ci + 1, C(pb, C_MC), C(pb, C_MC + 1), CC + 2 * pb, CC + 2 * pb + 1)
    e("s_waitcnt lgkmcnt(0)")
    A.vm_wait("f0")
    e("s_barrier")
    A.stamp(8)
    W = 96
    for w_ in range(4):
        e(f"ds_read_b128 {vr(W + 4 * w_, 4)}, v4 offset:{w_ * 256}")

    def ffn_reads(s):
        ksl = s & 3
        it = []
        for nt in range(7):
            for h in range(2):
                it.append(f"ds_read_b64_tr_b16 {ar(128 + (s & 1) * 28 + nt * 4 + 2 * h, 2)}, v{VFR} "
                          f"offset:{ksl * 7168 + h * 3584 + nt * 32}")
        return it

    for r in ffn_reads(0):
        e(r)
    e("s_lshl_b32 s3, s4, 9")
    e("v_lshlrev_b32 v4, 5, v2")
    e("v_lshl_add_u32 v4, v3, 4, v4")
    e("v_add_u32 v4, s3, v4")
    e("s_cmp_eq_u32 s6, 3")
    e("s_cselect_b32 s3, 32, 0")
    e(f"v_mov_b32 v5, {OOB:#x}")
    e("v_cmp_gt_u32 vcc, s3, v1")
    e("v_cmp_eq_u32 s[82:83], 1, v3")
    e(f"v_mov_b32 v{114}, s97")
    e(f"v_mov_b32 v{115}, s97")
    e("v_cndmask_b32 v4, v5, v4, vcc")
    e("s_waitcnt lgkmcnt(14)")
    for w_ in range(1, 4):
        for pb in range(2):
            d = W + 4 * w_ + 2 * pb
            s_ = W + 4 * (w_ - 1) + 2 * pb
            cfma(A, d, d + 1, C(pb, C_L32), C(pb, C_L32 + 1), s_, s_ + 1)
    A.drain("d")
    e(f"v_cndmask_b32 v112, v{W + 12}, v{W + 14}, s[82:83]")
    e(f"v_cndmask_b32 v113, v{W + 13}, v{W + 15}, s[82:83]")
    A.vmi("epub", f"buffer_store_dwordx4 {vr(112, 4)}, v4, s[76:79], 0 offen sc1")
    LW = A.newlab("win")
    for x in range(4):
        e(f"v_mov_b32 v{VWIN + x}, 0")
    for w_ in range(1, 4):
        e(f"s_cmp_lt_u32 s6, {w_}")
        e(f"s_cbranch_scc1 {LW}")
        for x in range(4):
            e(f"v_mov_b32 v{VWIN + x}, v{W + 4 * (w_ - 1) + x}")
    A.lab(LW)
    A.stamp(9)

    GX = 208
    GS = 240

    def gate_loads():
        def a():
            e("s_lshl_b32 s3, s4, 7")
            e("s_lshl_b32 s7, s5, 3")
            e("s_add_u32 s3, s3, s7")
            e("s_lshl_b32 s7, s6, 1")
            e("s_add_u32 s84, s3, s7")
        A.group(a)
        e("v_lshrrev_b32 v4, 5, v1")
        e("v_add_u32 v4, s84, v4")
        e("v_lshlrev_b32 v4, 10, v4")
        e("v_and_b32 v5, 31, v1")
        e("v_lshlrev_b32 v5, 4, v5")
        e("v_add_u32 v4, v4, v5")
        A.vmi("gate", f"global_load_dwordx4 {vr(GX, 4)}, v4, s[16:17]")
        A.vmi("gate", f"global_load_dwordx4 {vr(GX + 4, 4)}, v4, s[16:17] offset:512")
        A.vmi("gate", f"global_load_dwordx4 {vr(GX + 8, 4)}, v5, s[44:45]")
        A.vmi("gate", f"global_load_dwordx4 {vr(GX + 12, 4)}, v5, s[44:45] offset:512")

    def gate_finish():
        A.vm_wait("gate")
        e(f"v_dot2_f32_bf16 v{GS}, v{GX}, v{GX + 8}, 0")
        e(f"v_dot2_f32_bf16 v{GS + 1}, v{GX + 1}, v{GX + 9}, 0")
        for d in range(2, 8):
            e(f"v_dot2_f32_bf16 v{GS + (d & 1)}, v{GX + d}, v{GX + 8 + d}, v{GS + (d & 1)}")
        A.nop(3)
        e(f"v_add_f32 v{GS}, v{GS}, v{GS + 1}")
        for ctl in ("quad_perm:[1,0,3,2]", "quad_perm:[2,3,0,1]", "row_half_mirror", "row_mirror"):
            A.nop(2)
            e(f"v_add_f32_dpp v{GS}, v{GS}, v{GS} {ctl} row_mask:0xf bank_mask:0xf")
        e(f"v_mov_b32 v{GS + 1}, v{GS}")
        A.nop(2)
        e(f"v_permlane16_swap_b32 v{GS + 1}, v{GS}")
        A.nop(1)
        e(f"v_add_f32 v{GS}, v{GS}, v{GS + 1}")
        e(f"v_cvt_pk_bf16_f32 v{GS}, v{GS}, v{GS}")
        e(f"v_lshlrev_b32 v{GS}, 16, v{GS}")
        e(f"v_mul_f32 v{GS}, s80, v{GS}")
        e(f"v_sub_f32 v{GS}, 0, v{GS}")
        e(f"v_exp_f32 v{GS}, v{GS}")
        A.nop(1)
        e(f"v_add_f32 v{GS}, 1.0, v{GS}")
        e(f"v_rcp_f32 v{GS}, v{GS}")
        A.nop(1)
        e(f"v_cvt_pk_bf16_f32 v{GS}, v{GS}, v{GS}")
        e(f"v_lshlrev_b32 v{GS + 2}, 16, v{GS}")
        e(f"v_sub_f32 v{GS + 3}, 1.0, v{GS + 2}")
        e(f"v_cvt_pk_bf16_f32 v{GS + 3}, v{GS + 3}, v{GS + 3}")
        e(f"v_lshlrev_b32 v{GS + 3}, 16, v{GS + 3}")
        e("v_lshrrev_b32 v4, 5, v1")
        e("v_add_u32 v4, s84, v4")
        e("v_lshlrev_b32 v4, 3, v4")
        e(f"v_add_u32 v4, {G_OFF}, v4")
        e("v_and_b32 v5, 31, v1")
        e("v_cmp_eq_u32 vcc, 0, v5")
        e(f"v_mov_b32 v5, {OOB:#x}")
        A.nop(1)
        e("v_cndmask_b32 v4, v5, v4, vcc")
        A.vmi("gst", f"buffer_store_dwordx2 {vr(GS + 2, 2)}, v4, s[56:59], 0 offen{STF}")

    EM = 96
    EMR = [128, 136, 144, 96]

    def e_loads():
        A.group(lambda: (e("s_sub_u32 s3, s4, 1"), e("v_sub_u32 v4, s3, v3")))
        e("v_lshlrev_b32 v4, 9, v4")
        e("v_lshl_add_u32 v4, v2, 5, v4")
        for m in range(4):
            if m:
                e("v_subrev_u32 v4, 2048, v4")
            e("v_and_b32 v7, 0x7fffffff, v4")
            A.vmi("eld", f"buffer_load_dwordx4 {vr(EMR[m], 4)}, v7, s[76:79], 0 offen sc1")
            A.vmi("eld", f"buffer_load_dwordx4 {vr(EMR[m] + 4, 4)}, v7, s[76:79], 0 offen offset:16 sc1")

    nf = cfg.get("ffn_tiles", 6)
    fslots = [0, 1, 4, 5, 6, 7, 2, 3][:nf]
    SLOT = {t: fslots[t] for t in range(nf)}
    early = [t for t in range(nf) if fslots[t] < 2]
    mid = [t for t in range(nf) if fslots[t] >= 4]
    late = [t for t in range(nf) if fslots[t] in (2, 3)]
    q0 = dma_f(3)
    for t in early:
        q0 += tile_dma(t, SLOT[t])
    q0 += A.record(gate_loads)
    sched = {0: q0}
    nmid0 = cfg.get("mid_before_e", 2)
    for t in mid[:nmid0]:
        sched.setdefault(8, []).extend(tile_dma(t, SLOT[t]))
    sched.setdefault(cfg.get("e_step", 11), []).extend(A.record(e_loads))
    for t in mid[nmid0:] + late:
        sched.setdefault(max(12, cfg.get("e_step", 11)), []).extend(tile_dma(t, SLOT[t]))

    def ffn_mfma(s):
        it = []
        for nt in range(7):
            for tb in range(2):
                d = vr(FACC(nt, tb), 4)
                cc = vr(VBIAS + 4 * nt, 4) if s == 0 else d
                it.append(f"v_mfma_f32_16x16x32_bf16 {d}, {ar(128 + (s & 1) * 28 + nt * 4, 4)}, "
                          f"{ar(XF(s, tb), 4)}, {cc}")
        return it

    def set_vfr(c_from, c_to):
        delta = LDS_F[c_to] - LDS_F[c_from]
        if delta >= 0:
            e(f"v_add_u32 v{VFR}, {delta}, v{VFR}")
        else:
            e(f"v_subrev_u32 v{VFR}, {-delta}, v{VFR}")

    since_vm = 99
    gap = cfg.get("vm_gap", 5)

    def flat(items):
        return [[op] for it in items for op in it]
    for s in range(16):
        if s in sched:
            A.push("f", flat(sched[s]))
        if s == 0 or s in (3, 7, 11, 15):
            e("s_waitcnt lgkmcnt(0)")
        else:
            e("s_waitcnt lgkmcnt(4)")
        if s in (3, 7, 11):
            c = (s + 1) >> 2
            A.vm_wait(f"f{c}")
            e("s_barrier")
            set_vfr(c - 1, c)
            A.stamp(10 + c - 1)
        if s == 15:
            e("s_barrier")
        if cfg.get("ffn_stamps"):
            A.stamp(34 + s)
        rd = ffn_reads(s + 1) if s < 15 else []
        mf = ffn_mfma(s)
        for k, m in enumerate(mf):
            if k == 10 and not (s == 0 or s in (3, 7, 11, 15)):
                e("s_waitcnt lgkmcnt(10)")
            e(m)
            since_vm += 1
            if rd:
                e(rd[k])
            for _ in range(1 if rd else 2):
                if A.head_is_vmem("f"):
                    if since_vm >= gap:
                        A.pop("f")
                        since_vm = 0
                else:
                    A.pop("f")
    A.drain("f")
    A.stamp(13)

    VA16, VA8 = 250, 251
    e("s_lshl_b32 s3, s4, 1")
    e("s_lshr_b32 s7, s6, 1")
    e("s_add_u32 s3, s3, s7")
    e(f"s_mul_i32 s91, s3, {AF_RT}")
    e("s_and_b32 s7, s6, 1")
    e("s_lshl_b32 s7, s7, 11")
    e("s_add_u32 s91, s91, s7")
    e("s_lshr_b32 s3, s5, 1")
    e("s_mul_i32 s3, s3, 7")
    e("s_add_u32 s3, s3, 32")
    e("s_and_b32 s7, s5, 1")
    e("s_lshl_b32 s92, s7, 2")
    e("s_add_u32 s92, s92, s3")
    e("s_lshl_b32 s92, s92, 12")
    e("s_add_u32 s92, s92, s91")
    e("s_add_u32 s93, s3, 3")
    e("s_lshl_b32 s93, s93, 12")
    e("s_add_u32 s93, s93, s91")
    e("s_lshl_b32 s7, s7, 3")
    e(f"v_lshlrev_b32 v{VA16}, 4, v1")
    e(f"v_add_u32 v{VA8}, s7, v{VA16}")
    PK = 112
    groups = [(sp, tb) for sp in range(4) for tb in range(2)]

    def ffn_group(gi):
        sp, tb = groups[gi]
        tiles = [2 * sp, 2 * sp + 1] if sp < 3 else [6]
        pk = PK + 4 * (gi & 1)
        for ti, nt in enumerate(tiles):
            a = FACC(nt, tb)
            for r in range(4):
                e(f"v_max_f32 v{a + r}, 0, v{a + r}")
            for h in range(2):
                e(f"v_pk_mul_f32 {vr(a + 2 * h, 2)}, {vr(a + 2 * h, 2)}, {vr(a + 2 * h, 2)}")
            e(f"v_cvt_pk_bf16_f32 v{pk + 2 * ti}, v{a}, v{a + 1}")
            e(f"v_cvt_pk_bf16_f32 v{pk + 2 * ti + 1}, v{a + 2}, v{a + 3}")
        off = f" offset:{tb * 1024}" if tb else ""
        if sp < 3:
            if sp and tb == 0:
                e("s_add_u32 s92, s92, 4096")
            A.vmi("hst", f"buffer_store_dwordx4 {vr(pk, 4)}, v{VA16}, s[56:59], s92 offen{off}{STF}")
        else:
            A.vmi("hst", f"buffer_store_dwordx2 {vr(pk, 2)}, v{VA8}, s[56:59], s93 offen{off}{STF}")

    MK = 104
    R = 120

    def masks():
        for m in range(4):
            e(f"v_add_u32 v4, {4 * m}, v3")
            e("v_cmp_gt_u32 vcc, s4, v4")
            A.nop(1)
            e(f"v_cndmask_b32 v{MK + m}, 0, -1, vcc")

    def e_check():
        LCK, LOK = A.newlab("echk"), A.newlab("eok")
        e("s_mov_b32 s96, 0x20000")
        A.vm_wait("eld")
        A.lab(LCK)
        e("v_mov_b32 v4, 0")
        for m in range(4):
            e(f"v_xor_b32 v5, s97, v{EMR[m] + 2}")
            e(f"v_xor_b32 v7, s97, v{EMR[m] + 6}")
            e("v_or_b32 v5, v5, v7")
            e(f"v_and_or_b32 v4, v5, v{MK + m}, v4")
        e("v_cmp_ne_u32 vcc, 0, v4")
        A.nop(4)
        e("s_cmp_eq_u64 vcc, 0")
        e(f"s_cbranch_scc1 {LOK}")
        e("s_sub_u32 s96, s96, 1")
        e("s_cmp_eq_u32 s96, 0")
        e(f"s_cbranch_scc1 {LOK}")
        e("s_sleep 4")
        for it in A.record(e_loads):
            for op in it:
                e(op[1] if op[0] == "e" else op[2])
        e("s_waitcnt vmcnt(0)")
        e(f"s_branch {LCK}")
        A.lab(LOK)

    def carry():
        for m in (2, 1, 0):
            for pb in range(2):
                d = EMR[m] + 4 * pb
                s_ = EMR[m + 1] + 4 * pb
                cfma(A, d, d + 1, C(pb, C_L4), C(pb, C_L4 + 1), s_, s_ + 1)
        for pb in range(2):
            cmul(A, R + 2 * pb, R + 2 * pb + 1, C(pb, C_LQ), C(pb, C_LQ + 1), EMR[0] + 4 * pb, EMR[0] + 4 * pb + 1)
        for swap in ("v_permlane16_swap_b32", "v_permlane32_swap_b32"):
            for x in range(4):
                e(f"v_mov_b32 v{R + 4 + x}, v{R + x}")
            A.nop(1)
            for x in range(4):
                e(f"{swap} v{R + 4 + x}, v{R + x}")
            A.nop(1)
            for x in range(4):
                e(f"v_add_f32 v{R + x}, v{R + x}, v{R + 4 + x}")
        for pb in range(2):
            cfma(A, VWIN + 2 * pb, VWIN + 2 * pb + 1, C(pb, C_L32W), C(pb, C_L32W + 1), R + 2 * pb, R + 2 * pb + 1)
        for pb in range(2):
            cfma(A, VCIN + 2 * pb, VCIN + 2 * pb + 1, C(pb, C_L8Q), C(pb, C_L8Q + 1),
                 VWIN + 2 * pb, VWIN + 2 * pb + 1)

    def recurrence():
        for tau in range(8):
            for pb in range(2):
                lr, li, nli = C(pb, C_LR), C(pb, C_LI), C(pb, C_NLI)
                if tau == 0:
                    pr, pi = VCIN + 2 * pb, VCIN + 2 * pb + 1
                else:
                    pr, pi = U(pb, tau - 1, 0), U(pb, tau - 1, 1)
                e(f"v_fmac_f32 v{U(pb, tau, 0)}, v{lr}, v{pr}")
                e(f"v_fmac_f32 v{U(pb, tau, 1)}, v{lr}, v{pi}")
                e(f"v_fmac_f32 v{U(pb, tau, 0)}, v{nli}, v{pi}")
                e(f"v_fmac_f32 v{U(pb, tau, 1)}, v{li}, v{pr}")

    TR, TI, CV = [128, 136], [132, 140], 144
    RD = [148, 96, 100, 104]

    def pack_store():
        e("v_lshrrev_b32 v4, 3, v2")
        e("v_mul_u32_u24 v4, 272, v4")
        e("v_lshl_add_u32 v4, v3, 6, v4")
        e("v_and_b32 v5, 7, v2")
        e("v_lshl_add_u32 v4, v5, 1, v4")

        def a():
            e("s_mul_i32 s3, s6, 4352")
            e(f"s_add_u32 s3, s3, {LDS_T}")
            e("v_add_u32 v4, s3, v4")
            e("v_mul_u32_u24 v5, 272, v3")
            e("v_lshl_add_u32 v5, v2, 4, v5")
            e("v_add_u32 v5, s3, v5")
            e("s_lshl_b32 s3, s5, 13")
            e("s_add_u32 s82, s3, s91")
            e("s_add_u32 s83, s82, 4096")
        A.group(a)
        for tb in range(2):
            for pb in range(2):
                c2 = vr(C(pb, C_C2), 2)
                for h in range(2):
                    P = vr(SACC(tb, pb, 2 * h), 2)
                    Q = vr(SACC(tb, 2 + pb, 2 * h), 2)
                    tr_, ti_ = vr(TR[pb] + 2 * h, 2), vr(TI[pb] + 2 * h, 2)
                    e(f"v_pk_mul_f32 {tr_}, {P}, {c2} op_sel_hi:[1,0]")
                    e(f"v_pk_mul_f32 {ti_}, {Q}, {c2} op_sel_hi:[1,0]")
                    e(f"v_pk_fma_f32 {tr_}, {Q}, {c2}, {tr_} op_sel:[0,1,0] op_sel_hi:[1,1,1] "
                      f"neg_lo:[1,0,0] neg_hi:[1,0,0]")
                    e(f"v_pk_fma_f32 {ti_}, {P}, {c2}, {ti_} op_sel:[0,1,0] op_sel_hi:[1,1,1]")
            for part in range(2):
                fo = (tb * 2 + part) * 1088
                for r in range(4):
                    cv = CV + (r & 1) + 2 * (part & 1)
                    if part == 0:
                        e(f"v_cvt_pk_bf16_f32 v{cv}, v{TR[0] + r}, v{TR[1] + r}")
                    else:
                        e(f"v_cvt_pk_bf16_f32 v{cv}, -v{TI[0] + r}, -v{TI[1] + r}")
                    e(f"ds_write_b16 v4, v{cv} offset:{fo + r * 16}")
                    e(f"ds_write_b16_d16_hi v4, v{cv} offset:{fo + r * 16 + 544}")
            e("s_waitcnt lgkmcnt(0)")
            for part in range(2):
                e(f"ds_read_b128 {vr(RD[tb * 2 + part], 4)}, v5 offset:{(tb * 2 + part) * 1088}")
            if tb == 1:
                for part in range(2):
                    A.vmi("sst", f"buffer_store_dwordx4 {vr(RD[part], 4)}, v{VA16}, s[56:59], "
                                 f"s{82 + part} offen{STF}")
        e("s_waitcnt lgkmcnt(0)")
        for part in range(2):
            A.vmi("sst", f"buffer_store_dwordx4 {vr(RD[2 + part], 4)}, v{VA16}, s[56:59], "
                         f"s{82 + part} offen offset:1024{STF}")

    per = cfg.get("tail_per", 40)
    A.push("b", A.record(gate_finish) + A.record(masks))
    for t in range(nf):
        A.push("b", tile_read(t, SLOT[t]))
    ffn_group(0)
    A.pop("b", per)
    ffn_group(1)
    A.pop("b", per)
    ffn_group(2)
    A.drain("b")
    A.stamp(14)
    e_check()
    A.stamp(15)
    A.push("b", A.record(carry) + A.record(recurrence) + A.record(pack_store))
    for gi in range(3, 8):
        ffn_group(gi)
        A.pop("b", per)
    A.drain("b")
    A.stamp(16)

    OSF = cfg.get("osf", " sc1")
    nd = cfg.get("drain_tiles", 16)
    e("s_waitcnt lgkmcnt(0)")
    free = [0, 1, 2, 3, 4, 5, 6, 7]
    nxt_dma = nf
    pend = []

    def issue_tiles(limit):
        nonlocal nxt_dma
        while free and nxt_dma < limit:
            sl = free.pop(0)
            SLOT[nxt_dma] = sl
            A.push("t", tile_dma(nxt_dma, sl))
            A.drain("t")
            pend.append(nxt_dma)
            nxt_dma += 1

    def land_tile(refill=True):
        t = pend.pop(0)
        A.push("t", tile_read(t, SLOT[t]) + lgkm0())
        A.drain("t")
        free.append(SLOT[t])
        return t

    issue_tiles(min(nd, nf + cfg.get("pre_flag_tiles", 8)))
    e("s_lshl_b32 s3, s4, 8")
    e("s_lshl_b32 s7, s5, 2")
    e("s_add_u32 s3, s3, s7")
    e(f"s_add_u32 s3, s3, {FL_OFF}")
    e("s_cmp_eq_u32 s6, 0")
    e("s_cselect_b32 s7, 1, 0")
    e("v_cmp_gt_u32 vcc, s7, v1")
    e("v_mov_b32 v4, s3")
    e(f"v_mov_b32 v5, {OOB:#x}")
    e("v_mov_b32 v6, s95")
    e("v_cndmask_b32 v4, v5, v4, vcc")
    A.vm_wait("hst", "sst", "gst")
    e("s_barrier")
    A.vmi("flag", "buffer_store_dword v6, v4, s[56:59], 0 offen sc1")
    A.stamp(17)
    while pend:
        land_tile()
        issue_tiles(nd)
    e("s_barrier")
    free = [0, 1, 2, 3]
    A.stamp(23)

    ACC0, AR0, DA = 16, 80, 3
    VXE, VGE, VDS, VB2 = 224, 240, 252, 250
    VL = 8

    def ACC(db, tb4):
        return ACC0 + (db * 4 + tb4) * 4

    e("s_mov_b32 s92, s64")
    e(f"s_mul_i32 s93, s92, {AF_RT}")
    e(f"s_mul_i32 s3, s6, {22 * 4096}")
    e("s_add_u32 s93, s93, s3")
    e(f"v_lshlrev_b32 v{VL}, 4, v1")
    e("s_lshr_b32 s3, s92, 1")
    e("s_lshl_b32 s3, s3, 8")
    e(f"s_add_u32 s3, s3, {FL_OFF}")
    e("v_and_b32 v4, 15, v1")
    e("v_lshl_add_u32 v9, v4, 2, s3")
    LP, LPO = A.newlab("fpoll"), A.newlab("fok")
    e("s_mov_b32 s96, 0x20000")
    A.lab(LP)
    e("buffer_load_dword v10, v9, s[56:59], 0 offen sc1")
    e("s_waitcnt vmcnt(0)")
    e("v_cmp_ne_u32 vcc, s95, v10")
    A.nop(4)
    e("s_cmp_eq_u64 vcc, 0")
    e(f"s_cbranch_scc1 {LPO}")
    e("s_sub_u32 s96, s96, 1")
    e("s_cmp_eq_u32 s96, 0")
    e(f"s_cbranch_scc1 {LPO}")
    e("s_sleep 2")
    e(f"s_branch {LP}")
    A.lab(LPO)
    A.vm = []
    A.stamp(24)

    def a_loads(t):
        b = AR0 + 16 * (t % DA)
        return [(f"a{t}", f"buffer_load_dwordx4 {vr(b + 4 * x, 4)}, v{VL}, s[56:59], s93 offen"
                          f"{f' offset:{x * 1024}' if x else ''} sc1") for x in range(4)]

    for t in range(DA - 1):
        for tag, ins in a_loads(t):
            A.vmi(tag, ins)
        e("s_add_u32 s93, s93, 4096")
    e("s_cmp_eq_u32 s92, 31")
    e("s_cselect_b32 s3, 1, 0")
    e("s_cmp_eq_u32 s89, 7")
    e("s_cselect_b32 s3, s3, 0")
    e("s_cmp_eq_u32 s6, 0")
    e("s_cselect_b32 s3, s3, 0")
    e("v_cmp_gt_u32 vcc, s3, v1")
    e(f"v_mov_b32 v4, {N_OFF}")
    e(f"v_mov_b32 v5, {OOB:#x}")
    e("v_mov_b32 v6, s94")
    e("v_cndmask_b32 v4, v5, v4, vcc")
    A.vmi("yst", "buffer_store_dword v6, v4, s[56:59], 0 offen sc1")
    e("v_lshrrev_b32 v6, 2, v2")
    e("v_lshlrev_b32 v6, 3, v6")
    e("v_and_b32 v7, 3, v2")
    e("v_add_u32 v6, v6, v7")
    e("v_mul_u32_u24 v12, 272, v6")
    e("v_lshl_add_u32 v12, v3, 4, v12")
    e(f"s_mul_i32 s3, s6, {RSTR}")
    e(f"s_add_u32 s3, s3, {LDS_R}")
    e("v_add_u32 v13, s3, v12")
    e(f"v_add_u32 v12, {LDS_R + 4 * RSTR}, v12")

    def ep_loads():
        def a():
            e("s_lshl_b32 s3, s92, 6")
            e("s_lshl_b32 s7, s6, 4")
            e("s_add_u32 s3, s3, s7")
            e("v_add_u32 v14, s3, v3")
            e("s_lshl_b32 s7, s89, 7")
            e("v_lshl_add_u32 v10, v2, 3, s7")
        A.group(a)
        e("v_lshlrev_b32 v9, 10, v14")
        e("v_add_u32 v9, v9, v10")
        e("v_lshlrev_b32 v11, 3, v14")
        e(f"v_add_u32 v11, {G_OFF}, v11")
        e("s_mov_b32 s84, 0")
        for it in range(4):
            if it:
                e("s_add_u32 s84, s84, 4096")
            A.vmi("ep", f"buffer_load_dwordx2 {vr(VXE + 2 * it, 2)}, v9, s[8:11], s84 offen")
        for it in range(4):
            A.vmi("ep", f"buffer_load_dwordx2 {vr(VGE + 2 * it, 2)}, v11, s[56:59], 0 offen offset:{it * 32} sc1")
        A.vmi("ep", f"global_load_dwordx2 {vr(VDS, 2)}, v10, s[32:33]")
        A.vmi("ep", f"global_load_dwordx2 {vr(VB2, 2)}, v10, s[42:43]")
        srd(A, 12, 46, 47, 2048 * 2048)

    A.push("ep", A.record(ep_loads))

    def mfmas(t, zero):
        b = AR0 + 16 * (t % DA)
        it = []
        for db in range(4):
            for tb4 in range(4):
                d = vr(ACC(db, tb4), 4)
                cc = "0" if zero else d
                it.append(f"v_mfma_f32_16x16x32_bf16 {d}, {breg(t, 4 * db, 4)}, {vr(b + 4 * tb4, 4)}, {cc}")
        return it

    def dump(vaddr):
        for db in range(4):
            for tb4 in range(4):
                ro = 32 * (tb4 >> 1) + 4 * (tb4 & 1)
                e(f"ds_write_b128 v{vaddr}, {vr(ACC(db, tb4), 4)} offset:{ro * 272 + db * 64}")

    def step(t, zero):
        ld = a_loads(t + DA - 1) if t + DA - 1 < 22 else []
        li = 0
        for k, m in enumerate(mfmas(t, zero)):
            e(m)
            if (k & 1) and li < len(ld):
                A.vmi(*ld[li])
                li += 1
            elif not ld and nxt_dma >= 22 and not pend:
                A.pop("ep", 2)
        if ld:
            e("s_add_u32 s93, s93, 4096")

    for t in range(22):
        while pend and pend[0] <= t + 1:
            land_tile()
        if len(pend) >= cfg.get("g2_inflight", 2):
            land_tile()
        if t >= 1:
            issue_tiles(min(22, nxt_dma + 1))
        assert t not in pend and t < nxt_dma
        A.vm_wait(f"a{t}")
        if t in (0, 5, 10, 15, 20):
            A.stamp(25 + t // 5)
        if t == 10:
            LN, LJ = A.newlab("nrm"), A.newlab("join")
            e("s_cmp_eq_u32 s6, 1")
            e(f"s_cbranch_scc0 {LN}")
            saved = list(A.vm)
            savedq = [list(x) for x in A.q.get("ep", [])]
            A.nop(8)
            dump(12)
            e("s_waitcnt lgkmcnt(0)")
            step(t, True)
            after = list(A.vm)
            e(f"s_branch {LJ}")
            A.lab(LN)
            A.vm = list(saved)
            A.q["ep"] = savedq
            step(t, False)
            assert A.vm == after
            A.lab(LJ)
        else:
            step(t, t == 0)
    A.drain("ep")
    A.stamp(30)
    A.nop(4)
    dump(13)
    e("s_lshl_b32 s3, s6, 4")
    e("v_add_u32 v6, s3, v3")
    e("v_mul_u32_u24 v6, 272, v6")
    e("v_lshl_add_u32 v6, v2, 4, v6")
    e(f"v_add_u32 v6, {LDS_R}, v6")
    e(f"v_add_u32 v7, {3 * RSTR}, v6")
    A.vm_wait("ep")
    DS, B2 = 96, 100
    for k, src in ((DS, VDS), (B2, VB2)):
        e(f"v_lshlrev_b32 v{k}, 16, v{src}")
        e(f"v_and_b32 v{k + 1}, 0xffff0000, v{src}")
        e(f"v_lshlrev_b32 v{k + 2}, 16, v{src + 1}")
        e(f"v_and_b32 v{k + 3}, 0xffff0000, v{src + 1}")
    e("v_lshlrev_b32 v9, 11, v14")
    e("s_lshl_b32 s3, s89, 8")
    e("v_lshl_add_u32 v10, v2, 4, s3")
    e("v_add_u32 v9, v9, v10")
    for it in range(4):
        X = 104 + 8 * it
        xs = VXE + 2 * it
        e(f"v_lshlrev_b32 v{X}, 16, v{xs}")
        e(f"v_and_b32 v{X + 1}, 0xffff0000, v{xs}")
        e(f"v_lshlrev_b32 v{X + 2}, 16, v{xs + 1}")
        e(f"v_and_b32 v{X + 3}, 0xffff0000, v{xs + 1}")
        for h in range(2):
            e(f"v_pk_mul_f32 {vr(X + 2 * h, 2)}, {vr(X + 2 * h, 2)}, {vr(DS + 2 * h, 2)}")
        e(f"v_cvt_pk_bf16_f32 v{X + 4}, v{X}, v{X + 1}")
        e(f"v_cvt_pk_bf16_f32 v{X + 5}, v{X + 2}, v{X + 3}")
        e(f"v_lshlrev_b32 v{X}, 16, v{X + 4}")
        e(f"v_and_b32 v{X + 1}, 0xffff0000, v{X + 4}")
        e(f"v_lshlrev_b32 v{X + 2}, 16, v{X + 5}")
        e(f"v_and_b32 v{X + 3}, 0xffff0000, v{X + 5}")
    e("s_waitcnt lgkmcnt(0)")
    e("s_barrier")
    A.stamp(31)
    P0 = 16
    for it in range(4):
        for b in range(5):
            base, o = (6, b * RSTR) if b < 3 else (7, (b - 3) * RSTR)
            e(f"ds_read_b128 {vr(P0 + (it * 5 + b) * 4, 4)}, v{base} offset:{o + it * 4 * 272}")
    e("s_mov_b32 s84, 0")
    for it in range(4):
        X = 104 + 8 * it
        P = [P0 + (it * 5 + b) * 4 for b in range(5)]
        g, omg = VGE + 2 * it, VGE + 2 * it + 1
        e(f"s_waitcnt lgkmcnt({15 - 5 * it})")
        for h in range(2):
            o = 2 * h
            e(f"v_pk_add_f32 {vr(X + o, 2)}, {vr(X + o, 2)}, {vr(P[0] + o, 2)}")
            e(f"v_pk_add_f32 {vr(P[1] + o, 2)}, {vr(P[1] + o, 2)}, {vr(B2 + o, 2)}")
            e(f"v_pk_add_f32 {vr(X + o, 2)}, {vr(X + o, 2)}, {vr(P[4] + o, 2)}")
            e(f"v_pk_add_f32 {vr(P[2] + o, 2)}, {vr(P[2] + o, 2)}, {vr(P[3] + o, 2)}")
        for h in range(2):
            o = 2 * h
            e(f"v_pk_add_f32 {vr(P[1] + o, 2)}, {vr(P[1] + o, 2)}, {vr(P[2] + o, 2)}")
        for r in range(4):
            e(f"v_mul_f32 v{X + r}, v{g}, v{X + r}")
        for r in range(4):
            e(f"v_fmac_f32 v{X + r}, v{omg}, v{P[1] + r}")
        if it:
            e("s_add_u32 s84, s84, 8192")
        A.vmi("ost", f"buffer_store_dwordx4 {vr(X, 4)}, v9, s[12:15], s84 offen{OSF}")
    A.stamp(32)
    if A.stamps:
        A.vm_all()
    A.stamp(33, True)
    A.stamp_flush(0, 56)
    A.lab(END)
    e("s_endpgm")
    A.lab("L_code_end")


def kd(name, vgpr, accum, sgpr=102):
    return f""".amdhsa_kernel {name}
  .amdhsa_next_free_vgpr {vgpr}
  .amdhsa_next_free_sgpr {sgpr}
  .amdhsa_accum_offset {accum}
  .amdhsa_group_segment_fixed_size 0
  .amdhsa_kernarg_size 144
  .amdhsa_user_sgpr_count 2
  .amdhsa_user_sgpr_kernarg_segment_ptr 1
  .amdhsa_system_sgpr_workgroup_id_x 1
  .amdhsa_float_denorm_mode_32 3
.end_amdhsa_kernel
"""


HEADER = open("cdna_kernels/" + KN[:-7] + ".s.ref").read().split("; Override launch")[0]


def generate(cfg):
    out = [HEADER.rstrip("\n")]
    out.append("; @launch grid=(256,1,1) block=(256,1,1) lds=163840")
    out.append('.amdgcn_target "amdgcn-amd-amdhsa--gfx950"')
    out.append(".text")
    for name, fn in ((KN, gen_k1),):
        A = Asm()
        A.stamps = bool(cfg.get("stamps"))
        fn(A, cfg)
        out.append(f".globl {name}")
        out.append(".p2align 8")
        out.append(f".type {name},@function")
        out.append(f"{name}:")
        body = A.L
        if cfg.get("align", 1):
            import align as _al
            before = _al.straddles(body)
            body = _al.align(body)
            print("straddling 8-byte instructions:", before, "->", _al.straddles(body), file=sys.stderr)
        out.extend(body)
    out.append('.section .rodata,"a"')
    out.append(".p2align 6")
    out.append(kd(KN, 512, 256))
    return "\n".join(out) + "\n"


if __name__ == "__main__":
    cfg = {"map1": "4x8", "vm_gap": 5}
    path = "cdna_kernels/" + KN[:-7] + ".s"
    for a in sys.argv[1:]:
        if a.startswith("-o"):
            path = a[2:]
        elif "=" in a:
            k, v = a.split("=")
            cfg[k] = int(v) if v.isdigit() else v.replace("_", " ").replace("none", "")
    open(path, "w").write(generate(cfg))
    print("wrote", path)
```

```python
import sys

KN = "gated_mix__ssm_conv_s5__dense_activation_squared_relu__prompt_kernel"
K2N = "gated_mix_stage2_kernel"

AF_RT = 88 * 4096
AF_OFF = 0
E_OFF = 32 * AF_RT
G_OFF = E_OFF + 16 * 8192
N_OFF = G_OFF + 2048 * 8
Y_OFF = N_OFF + 256
FL_OFF = Y_OFF + 16 * 256
WS_USED = FL_OFF + 16 * 256
STAMP_OFF = 0x1000000
OOB = 0x7FFFFF00

LOG2E = 0x3FB8AA3B
INV2PI = 0x3E22F983


class Asm:
    def __init__(self):
        self.L = []
        self.vm = []
        self.nlab = 0
        self.stamps = False
        self.rec = None
        self.q = {}

    def e(self, s):
        if self.rec is not None:
            self.rec.append([("e", s)])
        else:
            self.L.append("    " + s)

    def record(self, fn):
        assert self.rec is None
        self.rec = []
        fn()
        out, self.rec = self.rec, None
        return out

    def group(self, fn):
        outer = self.rec
        self.rec = []
        fn()
        merged = [op for it in self.rec for op in it]
        self.rec = outer
        self.rec.append(merged)

    def push(self, q, items):
        self.q.setdefault(q, []).extend(items)

    def pop(self, q, n=1):
        lst = self.q.get(q, [])
        while n > 0 and lst:
            it = lst.pop(0)
            for op in it:
                if op[0] == "e":
                    self.e(op[1])
                elif op[0] == "vmi":
                    self.vmi(op[1], op[2])
                elif op[0] == "vmw":
                    self.vm_wait(*op[1])
                elif op[0] == "lab":
                    self.lab(op[1])
            n -= 1

    def head_is_vmem(self, q):
        lst = self.q.get(q, [])
        return bool(lst) and any(op[0] == "vmi" for op in lst[0])

    def drain(self, q):
        self.pop(q, 1 << 30)

    def qlen(self, q):
        return len(self.q.get(q, []))

    def lab(self, s):
        if self.rec is not None:
            self.rec.append([("lab", s)])
        else:
            self.L.append(s + ":")

    def c(self, s):
        self.L.append("    ; " + s)

    def newlab(self, p):
        self.nlab += 1
        return f"L_{p}_{self.nlab}"

    def vmi(self, tag, s):
        if self.rec is not None:
            self.rec.append([("vmi", tag, s)])
            return
        self.e(s)
        self.vm.append(tag)
        assert len(self.vm) <= 63, "vmcnt overflow"

    def vm_wait(self, *tags):
        if self.rec is not None:
            self.rec.append([("vmw", tags)])
            return
        idx = [i for i, t in enumerate(self.vm) if t in tags]
        if not idx:
            return
        i = max(idx)
        n = len(self.vm) - 1 - i
        self.e(f"s_waitcnt vmcnt({n})")
        self.vm = self.vm[i + 1:]

    def vm_all(self):
        self.e("s_waitcnt vmcnt(0)")
        self.vm = []

    def stamp(self, idx, last=False):
        if not self.stamps or (self.stamps == 2 and idx != 0 and not last):
            return
        self.e("s_memtime s[98:99]")
        self.e("s_waitcnt lgkmcnt(0)")
        self.e(f"v_writelane_b32 v255, s98, {idx}")
        if idx == 0 or last:
            self.e("s_memrealtime s[98:99]")
            self.e("s_waitcnt lgkmcnt(0)")
            self.e(f"v_writelane_b32 v255, s98, {63 if last else 62}")

    def stamp_flush(self, slot, srd_):
        if not self.stamps:
            return
        self.e("s_lshl_b32 s98, s2, 2")
        self.e("s_add_u32 s98, s98, s6")
        self.e("s_lshl_b32 s98, s98, 8")
        self.e(f"s_add_u32 s98, s98, {STAMP_OFF + slot * 0x40000}")
        self.e("v_lshlrev_b32 v254, 2, v1")
        self.e(f"s_mov_b32 s{srd_ + 2}, {STAMP_OFF + 0x100000:#x}")
        self.e(f"buffer_store_dword v255, v254, s[{srd_}:{srd_ + 3}], s98 offen")

    def nop(self, n):
        while n > 0:
            k = min(n, 16)
            self.e(f"s_nop {k - 1}")
            n -= k


def vr(a, n=1):
    return f"v{a}" if n == 1 else f"v[{a}:{a + n - 1}]"


def ar(a, n=1):
    return f"a{a}" if n == 1 else f"a[{a}:{a + n - 1}]"


def sr(a, n=1):
    return f"s{a}" if n == 1 else f"s[{a}:{a + n - 1}]"


def srd(A, s, lo, hi, nrec):
    A.e(f"s_mov_b32 s{s}, s{lo}")
    A.e(f"s_and_b32 s{s + 1}, s{hi}, 0xffff")
    A.e(f"s_mov_b32 s{s + 2}, {nrec:#x}")
    A.e(f"s_mov_b32 s{s + 3}, 0x20000")


def cfma(A, dr, di, ar_, ai, br, bi):
    A.e(f"v_fmac_f32 v{dr}, v{ar_}, v{br}")
    A.e(f"v_fmac_f32 v{di}, v{ar_}, v{bi}")
    A.e(f"v_fma_f32 v{dr}, -v{ai}, v{bi}, v{dr}")
    A.e(f"v_fmac_f32 v{di}, v{ai}, v{br}")


def cmul(A, dr, di, ar_, ai, br, bi):
    A.e(f"v_mul_f32 v{dr}, v{ar_}, v{br}")
    A.e(f"v_mul_f32 v{di}, v{ar_}, v{bi}")
    A.e(f"v_fma_f32 v{dr}, -v{ai}, v{bi}, v{dr}")
    A.e(f"v_fmac_f32 v{di}, v{ai}, v{br}")


def interleave(main, fill, first=0, per=1):
    out = []
    fi = 0
    for i, m in enumerate(main):
        out.append(m)
        if i >= first:
            for _ in range(per):
                if fi < len(fill):
                    out.append(fill[fi])
                    fi += 1
    out.extend(fill[fi:])
    return out


LDS_S = 0
LDS_X = [65536, 98304, 131072]
LDS_F = [98304, 131072, 0, 65536]
LDS_BIAS = 0
LDS_SCR = 32768
LDS_T = 65536
LDS_RING = [32768, 49152, 0, 16384, 98304, 114688, 131072, 147456]
LDS_HI = 98304
LDS_R = 65536
RSTR = 16384


def SACC(tb, ct, r=0):
    return 8 + (tb * 4 + ct) * 4 + r


def FACC(nt, tb, r=0):
    return 40 + (nt * 2 + tb) * 4 + r


VX = 96
VS = 104
VRX = 108
VRX2 = 112
VRS = 116
VF = 120
VFR = [240, 241, 242, 243, 244, 245, 250]
VBIAS = 128
CB = 156
VCIN = 200
VWIN = 204
VT = 208


def C(pb, k):
    return CB + 22 * pb + k


C_LR, C_LI, C_NLI = 0, 1, 2
C_L8, C_L16, C_L32, C_L8Q, C_MC, C_L32W, C_LQ, C_L4, C_MA, C_C2 = 3, 5, 7, 9, 11, 13, 15, 17, 19, 20


def XF(ks, tb):
    return (ks * 2 + tb) * 4


def flit(x):
    import struct
    return "%#x" % struct.unpack("<I", struct.pack("<f", x))[0]


def gen_k1(A, cfg):
    e = A.e
    STF = cfg.get("stf", " sc1")
    END = "L_k1_end"
    e("s_cmp_ge_u32 s2, 256")
    e(f"s_cbranch_scc1 {END}")
    e("s_load_dwordx16 s[16:31], s[0:1], 0")
    e("s_load_dwordx16 s[32:47], s[0:1], 64")
    e("s_load_dwordx4 s[48:51], s[0:1], 128")
    A.stamp(0)
    if cfg.get("skew"):
        e(f"s_mul_i32 s3, s2, {cfg['skew']}")
        e("s_and_b32 s3, s3, 7")
        e("s_cmp_lg_u32 s3, 3")
        e("s_cbranch_scc1 L_noskew")
        e("s_mov_b32 s3, 12")
        A.lab("L_skew")
        e("s_sleep 100")
        e("s_sub_u32 s3, s3, 1")
        e("s_cmp_lg_u32 s3, 0")
        e("s_cbranch_scc1 L_skew")
        A.lab("L_noskew")
    if cfg.get("codepf", 1):
        e("s_getpc_b64 s[60:61]")
        A.lab("L_pc")
        e("s_and_b32 s61, s61, 0xffff")
        e("s_mov_b32 s62, L_code_end-L_pc")
        e("s_mov_b32 s63, 0x20000")
        e("s_lshr_b32 s3, s2, 3")
        e("s_lshl_b32 s3, s3, 10")
        e("v_lshlrev_b32 v4, 2, v0")
        e("v_add_u32 v4, s3, v4")
        A.vmi("cpf", "buffer_load_dword v252, v4, s[60:63], 0 offen")
    e("v_and_b32 v1, 63, v0")
    e("v_lshrrev_b32 v4, 6, v0")
    e("v_and_b32 v2, 15, v1")
    e("v_readfirstlane_b32 s6, v4")
    e("v_lshrrev_b32 v3, 4, v1")
    npads = cfg.get("pads", 0)
    if npads:
        A.nop(2)
        for k in range(1, 4):
            e(f"s_cmp_eq_u32 s6, {k}")
            e(f"s_cbranch_scc1 L_pad_{k}")
        A.lab("L_pad_back")
    if cfg["map1"] == "2x16":
        e("s_and_b32 s3, s2, 7")
        e("s_lshl_b32 s3, s3, 1")
        e("s_lshr_b32 s7, s2, 7")
        e("s_add_u32 s4, s3, s7")
        e("s_lshr_b32 s5, s2, 3")
        e("s_and_b32 s5, s5, 15")
    elif cfg["map1"] == "8x4":
        e("s_and_b32 s3, s2, 1")
        e("s_lshl_b32 s3, s3, 3")
        e("s_lshr_b32 s7, s2, 3")
        e("s_and_b32 s7, s7, 7")
        e("s_add_u32 s4, s3, s7")
        e("s_lshr_b32 s5, s2, 1")
        e("s_and_b32 s5, s5, 3")
        e("s_lshl_b32 s5, s5, 2")
        e("s_lshr_b32 s7, s2, 6")
        e("s_add_u32 s5, s5, s7")
    elif cfg["map1"] == "t4x8":
        e("s_lshr_b32 s3, s2, 1")
        e("s_and_b32 s3, s3, 3")
        e("s_lshr_b32 s7, s2, 6")
        e("s_lshl_b32 s7, s7, 2")
        e("s_add_u32 s4, s3, s7")
        e("s_lshr_b32 s5, s2, 3")
        e("s_and_b32 s5, s5, 7")
        e("s_and_b32 s7, s2, 1")
        e("s_lshl_b32 s7, s7, 3")
        e("s_add_u32 s5, s5, s7")
    else:
        e("s_lshr_b32 s3, s2, 1")
        e("s_and_b32 s3, s3, 3")
        e("s_lshl_b32 s3, s3, 2")
        e("s_lshr_b32 s7, s2, 6")
        e("s_add_u32 s4, s3, s7")
        e("s_lshr_b32 s5, s2, 3")
        e("s_and_b32 s5, s5, 7")
        e("s_and_b32 s7, s2, 1")
        e("s_lshl_b32 s7, s7, 3")
        e("s_add_u32 s5, s5, s7")
    SXC, SSC, SFC = [72, 73, 74, 75], [34, 35, 48, 49], [85, 86, 87, 88]

    def vx(m):
        x = (m >> 1) << 6
        a = (m & 3) * 3072
        if x:
            e(f"v_xor_b32 v{VX + m}, {x}, v5")
            if a:
                e(f"v_add_u32 v{VX + m}, {a}, v{VX + m}")
        elif a:
            e(f"v_add_u32 v{VX + m}, {a}, v5")
        else:
            e(f"v_mov_b32 v{VX + m}, v5")

    def rot(t, what):
        def fn():
            e(f"s_add_u32 s3, s82, {t}")
            e("s_and_b32 s3, s3, 3")
            if "x" in what or "s" in what:
                e("s_lshl_b32 s7, s3, 8")
            if "x" in what:
                e(f"s_add_u32 s{SXC[t]}, s64, s7")
            if "s" in what:
                e(f"s_add_u32 s{SSC[t]}, s65, s7")
            if "f" in what:
                e(f"s_mul_i32 s7, s3, {128 * 3584}")
                e(f"s_add_u32 s{SFC[t]}, s66, s7")
        return fn

    e("v_xor_b32 v4, v2, v3")
    e("v_lshlrev_b32 v4, 4, v4")
    e("v_lshl_or_b32 v5, v3, 10, v4")
    for m in range(4):
        vx(m)
    e("s_lshl_b32 s64, s4, 7")
    e("s_lshl_b32 s3, s6, 5")
    e("s_add_u32 s64, s64, s3")
    e("s_lshl_b32 s64, s64, 10")
    e("s_lshl_b32 s67, s6, 13")
    if cfg.get("rot", 1) == 2:
        e("s_lshr_b32 s82, s4, 2")
        e("s_add_u32 s82, s82, s5")
    else:
        e("s_add_u32 s82, s4, s5")
    if not cfg.get("rot", 1):
        e("s_mov_b32 s82, 0")
    rot(0, "x")()
    e("s_waitcnt lgkmcnt(0)")
    A.stamp(18)
    srd(A, 8, 16, 17, 2048 * 1024)
    T = VT

    def l1():
        for m in range(4, 8):
            vx(m)

    def l2():
        for m in range(4):
            if m:
                e(f"v_xor_b32 v{VS + m}, {m << 6}, v5")
                e(f"v_add_u32 v{VS + m}, {m * 3072}, v{VS + m}")
            else:
                e(f"v_mov_b32 v{VS}, v5")

        def sc():
            e("s_lshl_b32 s65, s5, 5")
            e("s_and_b32 s3, s6, 1")
            e("s_lshl_b32 s3, s3, 4")
            e("s_add_u32 s65, s65, s3")
            e("s_lshl_b32 s65, s65, 10")
            e("s_lshl_b32 s68, s6, 12")
        A.group(sc)

        def bs():
            e("s_cmp_lt_u32 s6, 2")
            e("s_cselect_b32 s12, s22, s24")
            e("s_cselect_b32 s13, s23, s25")
            e("s_and_b32 s13, s13, 0xffff")
            e(f"s_mov_b32 s14, {512 * 1024:#x}")
            e("s_mov_b32 s15, 0x20000")
        A.group(bs)
        A.group(rot(0, "s"))

    def l3():
        A.group(rot(1, "xs"))

    def l4():
        A.group(lambda: (e(f"s_mov_b32 s7, {N_OFF}"), e("s_load_dword s97, s[50:51], s7")))
        A.group(lambda: (e("s_lshl_b32 s3, s5, 5"), e("v_and_b32 v6, 31, v1"), e("v_add_u32 v6, s3, v6")))
        e("v_lshlrev_b32 v6, 1, v6")
        A.vmi("cst", f"global_load_ushort v{T}, v6, s[18:19]")
        A.vmi("cst", f"global_load_ushort v{T + 1}, v6, s[20:21]")
        A.vmi("cst", f"global_load_ushort v{T + 2}, v6, s[30:31]")
        if cfg.get("tlb"):
            e("v_and_b32 v7, 7, v1")
            e("v_min_u32 v7, 5, v7")
            e("v_lshlrev_b32 v7, 21, v7")
            A.vmi("tlb", "global_load_dword v251, v7, s[50:51]")
            e("v_and_b32 v7, 1, v1")
            e("v_lshlrev_b32 v7, 21, v7")
            A.vmi("tlb", "global_load_dword v251, v7, s[46:47]")
        A.group(rot(2, "xs"))
        A.group(rot(3, "xs"))

        def fb():
            e(f"s_mul_i32 s66, s6, {32 * 3584}")
            e("s_mul_i32 s3, s5, 224")
            e("s_add_u32 s66, s66, s3")
            e("s_and_b32 s3, s5, 1")
            e("s_lshl_b32 s3, s3, 5")
            e("s_sub_u32 s66, s66, s3")
        A.group(fb)
        for t in range(4):
            A.group(rot(t, "f"))

    def dma_group(tag, m0base, m0imm, sbase, simm, vaddrs, srd_):
        def fn():
            for k, va in enumerate(vaddrs):
                off = f" offset:{k * 1024}" if k else ""

                def one(k=k, va=va, off=off):
                    if k == 0:
                        e(f"s_add_u32 m0, s{m0base}, {m0imm}")
                        if simm:
                            e(f"s_add_u32 s70, s{sbase}, {simm}")
                        else:
                            e(f"s_mov_b32 s70, s{sbase}")
                    A.vmi(tag, f"buffer_load_dwordx4 v{va}, s[{srd_}:{srd_ + 3}], s70 offen{off}{cfg.get('ldf_' + tag[0], '')} lds")
                A.group(one)
        return A.record(fn)

    def dma_x(c, buf):
        it = []
        for h in range(2):
            it += dma_group(f"x{c}", 67, LDS_X[buf] + h * 4096, SXC[c], h * 16384,
                            [VX + 4 * h + k for k in range(4)], 8)
        return it

    def dma_s(c):
        return dma_group(f"s{c}", 68, LDS_S + c * 16384, SSC[c], 0, [VS + k for k in range(4)], 12)

    def dma_f(c):
        it = []
        for h in range(2):
            it += dma_group(f"f{c}", 67, LDS_F[c] + h * 4096, SFC[c], 0,
                            [VF + 4 * h + k for k in range(4)], 52)
        return it

    def fill_patterns():
        e("v_xor_b32 v4, v2, v3")
        e("v_lshrrev_b32 v5, 2, v2")
        e("v_lshlrev_b32 v5, 3, v5")
        e("v_and_b32 v6, 3, v2")
        e("v_add_u32 v5, v5, v6")
        e("v_lshlrev_b32 v5, 8, v5")
        A.group(lambda: (e(f"s_add_u32 s3, s67, {LDS_X[0]}"), e("v_add_u32 v5, s3, v5")))
        e("v_lshlrev_b32 v6, 8, v2")
        for k in range(4):
            e(f"v_xor_b32 v7, {4 * k}, v4")
            e("v_lshlrev_b32 v7, 4, v7")
            e(f"v_add_u32 v{VRX + k}, v5, v7")
            e(f"v_add_u32 v{VRS + k}, v6, v7")
            e(f"v_add_u32 v{VRX2 + k}, 0x10000, v{VRX + k}")

    def fill_srds():
        srd(A, 52, 36, 37, 512 * 3584)
        srd(A, 56, 50, 51, WS_USED)

        def esrd():
            e("s_lshl_b32 s3, s5, 13")
            e(f"s_add_u32 s3, s3, {E_OFF}")
            e("s_add_u32 s76, s50, s3")
            e("s_addc_u32 s77, s51, 0")
            e("s_and_b32 s77, s77, 0xffff")
            e("s_mov_b32 s78, 8192")
            e("s_mov_b32 s79, 0x20000")
        A.group(esrd)
        srd(A, 60, 38, 39, 3584)
        e(f"s_mov_b32 s80, {LOG2E:#x}")
        e(f"s_mov_b32 s81, {INV2PI:#x}")

    Z = VT + 4
    TP = VT + 12

    def spread(d0, d1):
        e(f"v_mov_b32 v{d1}, v{d0}")
        e(f"v_mov_b32 v{d1 + 1}, v{d0 + 1}")
        A.nop(1)
        e(f"v_permlane16_swap_b32 v{d0}, v{d1}")
        e(f"v_permlane16_swap_b32 v{d0 + 1}, v{d1 + 1}")

    def cpow1(k, zr, a1, dr, di, t, kreg=None):
        if kreg is not None:
            e(f"v_mul_f32 v{t}, v{kreg}, v{zr}")
            e(f"v_mul_f32 v{t + 1}, v{kreg}, v{a1}")
        elif k == 1.0:
            e(f"v_mov_b32 v{t}, v{zr}")
            e(f"v_mov_b32 v{t + 1}, v{a1}")
        else:
            e(f"v_mul_f32 v{t}, {flit(k)}, v{zr}")
            e(f"v_mul_f32 v{t + 1}, {flit(k)}, v{a1}")
        e(f"v_exp_f32 v{t}, v{t}")
        e(f"v_fract_f32 v{t + 1}, v{t + 1}")
        e(f"v_cos_f32 v{t + 2}, v{t + 1}")
        e(f"v_sin_f32 v{t + 3}, v{t + 1}")
        e(f"v_mul_f32 v{dr}, v{t}, v{t + 2}")
        e(f"v_mul_f32 v{di}, v{t}, v{t + 3}")

    def fill_consts():
        A.vm_wait("cst")
        e(f"v_lshlrev_b32 v{Z}, 16, v{T}")
        e(f"v_lshlrev_b32 v{Z + 1}, 16, v{T + 1}")
        e(f"v_lshlrev_b32 v{T + 2}, 16, v{T + 2}")
        e(f"v_mul_f32 v{T + 2}, s80, v{T + 2}")
        e(f"v_exp_f32 v{T + 2}, v{T + 2}")
        A.nop(1)
        e(f"v_cvt_pk_bf16_f32 v{T + 2}, v{T + 2}, v{T + 2}")
        e(f"v_lshlrev_b32 v{T + 2}, 16, v{T + 2}")
        e(f"v_mul_f32 v{Z + 2}, v{T + 2}, v{Z}")
        e(f"v_mul_f32 v{Z + 3}, v{T + 2}, v{Z + 1}")
        e(f"v_mul_f32 v{Z + 2}, s80, v{Z + 2}")
        e(f"v_mul_f32 v{Z + 3}, s81, v{Z + 3}")
        cpow1(1.0, Z + 2, Z + 3, C(0, C_LR), C(0, C_LI), TP)
        t = TP
        e(f"v_subrev_f32 v{t}, 1.0, v{C(0, C_LR)}")
        e(f"v_mul_f32 v{t + 1}, v{Z}, v{Z}")
        e(f"v_fmac_f32 v{t + 1}, v{Z + 1}, v{Z + 1}")
        e(f"v_rcp_f32 v{t + 1}, v{t + 1}")
        e(f"v_mul_f32 v{t + 2}, v{t}, v{Z}")
        e(f"v_fmac_f32 v{t + 2}, v{C(0, C_LI)}, v{Z + 1}")
        e(f"v_mul_f32 v{t + 3}, v{C(0, C_LI)}, v{Z}")
        e(f"v_fma_f32 v{t + 3}, -v{t}, v{Z + 1}, v{t + 3}")
        e(f"v_add_f32 v{t + 1}, v{t + 1}, v{t + 1}")
        e(f"v_mul_f32 v{C(0, C_C2)}, v{t + 2}, v{t + 1}")
        e(f"v_mul_f32 v{C(0, C_C2 + 1)}, v{t + 3}, v{t + 1}")
        spread(C(0, C_C2), C(1, C_C2))
        spread(C(0, C_LR), C(1, C_LR))
        for pb in range(2):
            e(f"v_sub_f32 v{C(pb, C_NLI)}, 0, v{C(pb, C_LI)}")
        for k, dst in ((8.0, C_L8), (16.0, C_L16), (32.0, C_L32), (512.0, C_L4)):
            cpow1(k, Z + 2, Z + 3, C(0, dst), C(0, dst + 1), TP)
            spread(C(0, dst), C(1, dst))
        KR = T
        A.group(lambda: (e("s_lshl_b32 s3, s6, 5"), e(f"v_cvt_f32_u32 v{KR}, s3")))
        cpow1(None, Z + 2, Z + 3, C(0, C_L32W), C(0, C_L32W + 1), TP, kreg=KR)
        spread(C(0, C_L32W), C(1, C_L32W))
        spread(Z + 2, Z + 6)
        e(f"v_cvt_f32_u32 v{KR}, v3")
        e(f"v_mul_f32 v{KR + 1}, 0x41000000, v{KR}")
        e(f"v_mul_f32 v{KR + 2}, 0x43000000, v{KR}")
        for kr, dst in ((KR + 1, C_L8Q), (KR + 2, C_LQ)):
            for pb in range(2):
                cpow1(None, Z + 2 + 4 * pb, Z + 3 + 4 * pb, C(pb, dst), C(pb, dst + 1), TP + 4 * pb, kreg=kr)
        e("v_cmp_eq_u32 vcc, 3, v3")
        e("v_cmp_eq_u32 s[82:83], 2, v3")
        e("v_and_b32 v4, 1, v3")
        e(f"v_cvt_f32_u32 v{C(0, C_MA)}, v4")
        e("v_cndmask_b32 v5, 0, 1.0, s[82:83]")
        for pb in range(2):
            e(f"v_cndmask_b32 v{C(pb, C_MC)}, v5, v{C(pb, C_L8)}, vcc")
            e(f"v_cndmask_b32 v{C(pb, C_MC + 1)}, 0, v{C(pb, C_L8 + 1)}, vcc")

    def fill_vf():
        e("v_mul_u32_u24 v4, 3584, v3")
        e("v_and_b32 v5, 1, v1")
        e("v_lshl_add_u32 v4, v5, 4, v4")
        e("v_lshrrev_b32 v5, 1, v2")
        e("v_xor_b32 v5, v5, v3")
        e("v_xor_b32 v6, 4, v5")
        e("v_lshl_add_u32 v5, v5, 5, v4")
        e("v_lshl_add_u32 v6, v6, 5, v4")
        for m in range(8):
            cst = (8 * (m & 3) + 4 * (m >> 2)) * 3584 - 1024 * (m & 3)
            if cst:
                e(f"v_add_u32 v{VF + m}, {cst}, v{5 + (m & 1)}")
            else:
                e(f"v_mov_b32 v{VF + m}, v5")
        e("v_lshlrev_b32 v253, 2, v1")

    def fill_vfr():
        e("v_lshrrev_b32 v4, 2, v2")
        e("v_and_b32 v5, 1, v3")
        e("v_lshl_add_u32 v5, v5, 2, v4")
        e("v_lshl_add_u32 v4, v3, 2, v4")
        e("v_lshlrev_b32 v4, 8, v4")
        e("v_and_b32 v6, 3, v2")
        e("v_lshl_add_u32 v4, v6, 3, v4")
        e(f"v_add_u32 v4, {LDS_F[0]}, v4")
        for nt in range(7):
            def one(nt=nt):
                e("s_bitcmp1_b32 s5, 0")
                e(f"s_cselect_b32 s3, {(nt + 1) % 7 + 1}, {nt}")
                e("v_xor_b32 v6, s3, v5")
                e(f"v_lshl_add_u32 v{VFR[nt]}, v6, 5, v4")
            A.group(one)

    def dma_bias():
        def one():
            e(f"s_add_u32 m0, s67, {LDS_BIAS}")
            e("s_mul_i32 s70, s5, 224")
            A.vmi("bias", f"buffer_load_dword v253, s[60:63], s70 offen lds")
        return A.record(lambda: A.group(one))

    BT = VT + 8

    def fill_bias():
        def addr():
            e(f"s_add_u32 s3, s67, {LDS_BIAS}")
            e("v_lshl_add_u32 v4, v3, 3, s3")
            e("s_and_b32 s3, s5, 1")
            e("s_lshl_b32 s7, s3, 5")
            e("v_add_u32 v5, s7, v4")
            e(f"s_mul_i32 s7, s3, {6 * 32}")
            e("s_sub_u32 s7, 192, s7")
            e("v_add_u32 v6, s7, v4")
        A.group(addr)
        A.vm_wait("bias")
        for nt in range(6):
            e(f"ds_read_b64 {vr(BT + 2 * nt, 2)}, v5 offset:{32 * nt}")
        e(f"ds_read_b64 {vr(BT + 12, 2)}, v6")
        e("s_waitcnt lgkmcnt(0)")
        for nt in range(7):
            b = VBIAS + 4 * nt
            e(f"v_lshlrev_b32 v{b}, 16, v{BT + 2 * nt}")
            e(f"v_and_b32 v{b + 1}, 0xffff0000, v{BT + 2 * nt}")
            e(f"v_lshlrev_b32 v{b + 2}, 16, v{BT + 2 * nt + 1}")
            e(f"v_and_b32 v{b + 3}, 0xffff0000, v{BT + 2 * nt + 1}")

    VC0, VC1, VW, VRW = 232, 233, 231, 235
    VRC = [234, 239]
    VRC2, VRW2 = [224, 230], 225
    VB = 240 + 6

    def BREG(t):
        if t < 4:
            return ("a", 192 + 16 * t)
        if t < 12:
            return ("a", 16 * (t - 4))
        if t < 16:
            return ("a", 128 + 16 * (t - 12))
        return ("v", 128 + 16 * (t - 16))

    def breg(t, off, n):
        f, b = BREG(t)
        return (ar if f == "a" else vr)(b + off, n)

    def tile_patterns():
        e("v_lshrrev_b32 v4, 3, v1")
        e("v_lshlrev_b32 v4, 10, v4")
        e("v_and_b32 v5, 7, v1")
        e("v_xor_b32 v5, v5, v3")
        e(f"v_lshl_add_u32 v{VC0}, v5, 4, v4")
        e("v_xor_b32 v5, 4, v5")
        e(f"v_lshl_add_u32 v{VC1}, v5, 4, v4")
        e("v_lshrrev_b32 v4, 3, v1")
        e("v_lshlrev_b32 v4, 10, v4")
        e("v_lshrrev_b32 v5, 1, v1")
        e("v_xor_b32 v5, v5, v3")
        e("v_and_b32 v5, 3, v5")
        e("v_lshlrev_b32 v5, 1, v5")
        e("v_and_b32 v6, 1, v1")
        e("v_add_u32 v5, v5, v6")
        e(f"v_lshl_add_u32 v{VW}, v5, 4, v4")
        e("v_lshrrev_b32 v5, 1, v2")
        e("v_xor_b32 v5, v5, v3")
        e("v_lshlrev_b32 v6, 7, v2")
        e("v_add_u32 v6, s68, v6")
        e(f"v_lshl_add_u32 v{VRC[0]}, v5, 4, v6")
        e("v_xor_b32 v5, 4, v5")
        e(f"v_lshl_add_u32 v{VRC[1]}, v5, 4, v6")
        e("v_lshrrev_b32 v4, 2, v2")
        e("v_lshl_add_u32 v4, v3, 2, v4")
        e("v_lshlrev_b32 v4, 7, v4")
        e("v_and_b32 v5, 3, v2")
        e("v_lshl_add_u32 v4, v5, 3, v4")
        e("v_add_u32 v4, s68, v4")
        e("v_lshrrev_b32 v5, 3, v2")
        e("v_lshl_add_u32 v5, v3, 1, v5")
        for db in range(4):
            e(f"v_xor_b32 v6, {db}, v5")
            e("v_and_b32 v6, 3, v6")
            e(f"v_lshl_add_u32 v{VRW + db}, v6, 5, v4")

    def tile_hi():
        for h in range(2):
            e(f"v_add_u32 v{VRC2[h]}, {LDS_HI}, v{VRC[h]}")
        for db in range(4):
            e(f"v_add_u32 v{VRW2 + db}, {LDS_HI}, v{VRW + db}")

    def tile_scalars_():
        e("s_mul_i32 s90, s6, 22")
        if cfg.get("map2", "t8x4") == "t8x4":
            e("s_and_b32 s3, s2, 1")
            e("s_lshl_b32 s3, s3, 2")
            e("s_lshr_b32 s7, s2, 4")
            e("s_and_b32 s7, s7, 3")
            e("s_add_u32 s89, s3, s7")
            e("s_and_b32 s3, s2, 6")
            e("s_lshr_b32 s7, s2, 3")
            e("s_and_b32 s7, s7, 1")
            e("s_add_u32 s3, s3, s7")
            e("s_lshr_b32 s7, s2, 6")
            e("s_lshl_b32 s7, s7, 3")
            e("s_add_u32 s64, s3, s7")
        elif cfg.get("map2") == "own":
            e("s_lshr_b32 s3, s5, 3")
            e("s_lshl_b32 s7, s4, 1")
            e("s_add_u32 s64, s3, s7")
            e("s_and_b32 s89, s5, 7")
        elif cfg.get("map2") == "t4x8":
            e("s_and_b32 s3, s2, 7")
            e("s_lshr_b32 s7, s2, 6")
            e("s_lshl_b32 s7, s7, 3")
            e("s_add_u32 s64, s3, s7")
            e("s_lshr_b32 s89, s2, 3")
            e("s_and_b32 s89, s89, 7")
        elif cfg.get("map2") == "8x4":
            e("s_and_b32 s3, s2, 1")
            e("s_lshl_b32 s3, s3, 2")
            e("s_lshr_b32 s7, s2, 3")
            e("s_and_b32 s7, s7, 3")
            e("s_add_u32 s89, s3, s7")
            e("s_lshr_b32 s3, s2, 1")
            e("s_and_b32 s3, s3, 3")
            e("s_lshl_b32 s3, s3, 3")
            e("s_lshr_b32 s7, s2, 5")
            e("s_add_u32 s64, s3, s7")
        else:
            e("s_and_b32 s3, s2, 7")
            e("s_lshl_b32 s3, s3, 2")
            e("s_lshr_b32 s7, s2, 6")
            e("s_add_u32 s64, s3, s7")
            e("s_lshr_b32 s89, s2, 3")
            e("s_and_b32 s89, s89, 7")
        e("s_lshl_b32 s7, s89, 16")
        e("s_cmp_eq_u32 s6, 1")
        e("s_cselect_b32 s3, 640, 0")
        e("s_add_u32 s66, s3, s7")
        e("s_cmp_eq_u32 s6, 1")
        e("s_cselect_b32 s3, 768, 0")
        e("s_add_u32 s69, s3, s7")
        e("s_sub_u32 s3, s90, 32")
        e("s_lshl_b32 s3, s3, 15")
        e("s_lshl_b32 s7, s89, 7")
        e("s_add_u32 s65, s3, s7")
        e("s_sub_u32 s90, 32, s90")
        e("s_and_b32 s27, s27, 0xffff")
        e("s_and_b32 s29, s29, 0xffff")
        e("s_and_b32 s41, s41, 0xffff")

    def tile_scalars():
        A.group(tile_scalars_)

    def tile_epoch(p0):
        pe, po = (p0, p0 + 1) if p0 % 2 == 0 else (p0 + 1, p0)

        def sel():
            e(f"s_add_u32 s3, s66, {128 * (pe >> 1)}")
            e(f"s_add_u32 s7, s69, {128 * (po >> 1)}")
            e(f"s_add_u32 s71, s65, {pe * 65536}")
            e(f"s_add_u32 s82, s65, {po * 65536}")
            e("s_mov_b32 s48, 0x20000")
            e("s_bitcmp1_b32 s6, 0")
            e("s_cselect_b32 s12, s28, s26")
            e("s_cselect_b32 s13, s29, s27")
            e("s_cselect_b32 s72, s26, s28")
            e("s_cselect_b32 s73, s27, s29")
            e(f"s_cmp_gt_i32 s90, {2 * p0}")
            e("s_cselect_b32 s12, s12, s40")
            e("s_cselect_b32 s13, s13, s41")
            e("s_cselect_b32 s72, s72, s40")
            e("s_cselect_b32 s73, s73, s41")
            e("s_cselect_b32 s34, s3, s71")
            e("s_cselect_b32 s35, s7, s82")
            e("s_cselect_b32 s48, 128, s48")
            e("s_cselect_b64 vcc, -1, 0")

        def fn():
            A.group(sel)
            if p0 == 0:
                e("s_mov_b32 s14, 0x1c0000")
                e("s_mov_b32 s15, 0x20000")
                e("s_mov_b32 s74, 0x1c0000")
                e("s_mov_b32 s75, 0x20000")
            for m in range(4):
                e(f"v_add_u32 v4, {7168 * m}, v{VC0 if m % 2 == 0 else VC1}")
                e(f"v_add_u32 v5, {7168 * m}, v{VW}")
                e(f"v_cndmask_b32 v{VB + m}, v5, v4, vcc")
        return A.record(fn)

    def pair_dma(p, slots):
        sq, so = (12, 34) if p % 2 == 0 else (72, 35)
        ep = tile_epoch(5) if p == 5 else []

        def fn():
            for h in range(2):
                e(f"s_add_u32 m0, s68, {LDS_RING[slots[h]]}")
                if h == 0:
                    e(f"s_add_u32 s70, s{so}, 32768")
                else:
                    e("s_nop 0")
                for m in range(4):
                    off = f" offset:{m * 1024}" if m else ""
                    sreg = so if h == 0 else 70
                    A.vmi(f"b{p}", f"buffer_load_dwordx4 v{VB + m}, s[{sq}:{sq + 3}], s{sreg} offen{off} lds")
            e(f"s_add_u32 s{so}, s{so}, s48")
        return ep + A.record(fn)

    def pair_read(p, slots):
        hi = slots[0] >= 4
        assert hi == (slots[1] >= 4)
        base = [LDS_RING[x] - (LDS_HI if hi else 0) for x in slots]
        vc, vw = (VRC2, VRW2) if hi else (VRC, VRW)

        def body():
            L1, L2 = A.newlab("tr"), A.newlab("tj")
            A.vm_wait(f"b{p}")
            e(f"s_cmp_gt_i32 s90, {2 * p}")
            e(f"s_cbranch_scc0 {L1}")
            for h in range(2):
                for db in range(4):
                    e(f"ds_read_b128 {breg(2 * p + h, 4 * db, 4)}, v{vc[h]} "
                      f"offset:{base[db >> 1] + (db & 1) * 2048}")
            e(f"s_branch {L2}")
            A.lab(L1)
            for h in range(2):
                for db in range(4):
                    for hh in range(2):
                        e(f"ds_read_b64_tr_b16 {breg(2 * p + h, 4 * db + 2 * hh, 2)}, v{vw + db} "
                          f"offset:{base[h] + hh * 2048}")
            A.lab(L2)
        return A.record(lambda: A.group(body))

    def lgkm0():
        return A.record(lambda: e("s_waitcnt lgkmcnt(0)"))

    l3_done = [False]
    A.push("d", dma_x(0, 0) + dma_s(0) + dma_x(1, 1) + dma_s(1))
    A.push("l1", A.record(l1))
    A.push("l2", A.record(l2))
    A.push("l3", A.record(l3) + A.record(l4))
    A.push("v0", A.record(fill_patterns) + A.record(fill_srds))
    early = cfg.get("early_fill", 0)
    if early:
        A.push("v", A.record(fill_vf) + A.record(tile_patterns) + A.record(fill_vfr) + A.record(tile_scalars))
        n_early = A.qlen("v")
        A.push("v", A.record(fill_consts))
    else:
        A.push("v", A.record(fill_vf) + A.record(fill_consts))
    n0 = cfg.get("n0", 18)
    pad_at = [1, 5, 8, 11, 14, 16][:npads]
    per = cfg.get("pre_fill", 9)
    for n in range(n0):
        if n == 4:
            A.drain("l1")
        if n == 8:
            A.drain("l2")
        if n == 12:
            assert l3_done[0]
        A.pop("d")
        if npads and n in pad_at:
            k = pad_at.index(n) + 1
            e(f"s_branch L_pad_over_{k}")
            A.lab(f"L_pad_{k}")
            e(f"s_branch L_pad_{k + 3}" if k + 3 <= npads else "s_branch L_pad_back")
            A.lab(f"L_pad_over_{k}")
        if n in (0, 5, 11, 17):
            A.stamp(19 + (0, 5, 11, 17).index(n))
        if n < 4:
            A.pop("l1", 2)
        elif n < 8:
            A.pop("l2", 3)
        elif A.qlen("l3"):
            A.pop("l3", 4)
            l3_done[0] = True
        else:
            A.pop("v0", per)
    A.drain("l3")
    A.drain("v0")
    if early:
        A.pop("v", n_early)
    A.stamp(1)

    def ssm_reads(s):
        c, ksl = s >> 2, s & 3
        buf = [0, 1, 2, 0][c]
        it = []
        for tb in range(2):
            if buf == 2:
                it.append(f"ds_read_b128 {ar(XF(s, tb), 4)}, v{VRX2 + ksl} offset:{tb * 1024}")
            else:
                it.append(f"ds_read_b128 {ar(XF(s, tb), 4)}, v{VRX + ksl} offset:{buf * 32768 + tb * 1024}")
        for ct in range(4):
            it.append(f"ds_read_b128 {ar(128 + (s & 1) * 16 + ct * 4, 4)}, v{VRS + ksl} "
                      f"offset:{LDS_S + c * 16384 + ct * 4096}")
        return it

    def ssm_mfma(s):
        it = []
        for ct in range(4):
            for tb in range(2):
                d = vr(SACC(tb, ct), 4)
                cc = "0" if s == 0 else d
                it.append(f"v_mfma_f32_16x16x32_bf16 {d}, {ar(XF(s, tb), 4)}, "
                          f"{ar(128 + (s & 1) * 16 + ct * 4, 4)}, {cc}")
        return it

    e("s_waitcnt lgkmcnt(0)")
    e("s_add_u32 s94, s97, 0x3c6ef372")
    e("s_add_u32 s95, s97, 0x7f4a7c15")
    e("s_add_u32 s97, s97, 0x9e3779b9")
    A.vm_wait("x0", "s0")
    e("s_barrier")
    A.stamp(2)
    for r in ssm_reads(0):
        e(r)
    vper = cfg.get("ssm_fill", 5)
    for s in range(16):
        c = s >> 2
        if s == 0:
            A.push("d", dma_x(2, 2) + dma_s(2))
            extra0 = A.qlen("d") - 12
        if s == 4:
            A.push("d", dma_x(3, 0) + dma_s(3))
        if s == 8:
            A.drain("v")
            A.push("d", dma_bias() + dma_f(0))
            A.push("v", ([] if early else A.record(tile_patterns) + A.record(tile_scalars)) + tile_epoch(0))
        if s == 12:
            if not cfg.get("f1_late"):
                A.push("d", dma_f(1))
            A.push("v", A.record(fill_bias) + A.record(tile_hi) + ([] if early else A.record(fill_vfr)))
        e("s_waitcnt lgkmcnt(0)")
        if s in (3, 7, 11):
            A.drain("d")
            A.vm_wait(f"x{c + 1}", f"s{c + 1}")
            e("s_barrier")
            A.stamp(3 + c)
        rd = ssm_reads(s + 1) if s < 15 else []
        mf = ssm_mfma(s)
        nd = [3 + (extra0 + 3) // 4, 3, 3, 2][c]
        for k, m in enumerate(mf):
            e(m)
            if k < 3:
                for r in rd[2 * k:2 * k + 2]:
                    e(r)
            else:
                if k - 3 < nd:
                    A.pop("d")
                A.pop("v", vper)
    A.drain("d")
    A.drain("v")
    A.stamp(7)

    def touch_weights():
        e("s_lshl_b32 s3, s2, 2")
        e("s_add_u32 s3, s3, s6")
        e("s_sub_u32 s7, s3, 640")
        e("s_sub_u32 s71, s3, 832")
        e("s_cmp_lt_u32 s3, 832")
        e("s_cselect_b32 s60, s26, s28")
        e("s_cselect_b32 s61, s27, s29")
        e("s_cselect_b32 s7, s7, s71")
        e(f"s_mov_b32 s62, {512 * 1024:#x}")
        e("s_cmp_lt_u32 s3, 640")
        e("s_cselect_b32 s60, s40, s60")
        e("s_cselect_b32 s61, s41, s61")
        e("s_cselect_b32 s7, s3, s7")
        e(f"s_cselect_b32 s62, {1792 * 1024:#x}, s62")
        e("s_and_b32 s61, s61, 0xffff")
        e("s_mov_b32 s63, 0x20000")
        e(f"s_mul_i32 s7, s7, {23 * 128}")
        e("v_lshlrev_b32 v4, 7, v1")
        e("v_add_u32 v4, s7, v4")
        e("v_cmp_gt_u32 vcc, 23, v1")
        e(f"v_mov_b32 v5, {OOB:#x}")
        e("s_nop 0")
        e("v_cndmask_b32 v4, v5, v4, vcc")
        A.vmi("pf", "buffer_load_dword v253, v4, s[60:63], 0 offen")

    if cfg.get("touch", 1):
        touch_weights()
    A.push("d", (dma_f(1) if cfg.get("f1_late") else []) + dma_f(2))
    npop = 2 if cfg.get("f1_late") else 1
    A.nop(4)
    EA = 96

    def U(pb, tau, im):
        return SACC(tau >> 2, pb + 2 * im, tau & 3)

    cur = [None, None]
    for tau in range(1, 8):
        for pb in range(2):
            dst = EA + 4 * pb + 2 * (tau & 1)
            lr, li, nli = C(pb, C_LR), C(pb, C_LI), C(pb, C_NLI)
            pr, pi = (U(pb, 0, 0), U(pb, 0, 1)) if tau == 1 else cur[pb]
            e(f"v_fma_f32 v{dst}, v{lr}, v{pr}, v{U(pb, tau, 0)}")
            e(f"v_fma_f32 v{dst + 1}, v{lr}, v{pi}, v{U(pb, tau, 1)}")
            e(f"v_fmac_f32 v{dst}, v{nli}, v{pi}")
            e(f"v_fmac_f32 v{dst + 1}, v{li}, v{pr}")
            cur[pb] = (dst, dst + 1)
        if tau in (2, 4, 6) or (npop == 2 and tau in (1, 3, 5, 7)):
            A.pop("d")
    TB, AA, CC = 104, 108, 112
    for pb in range(2):
        for k in range(2):
            e(f"v_mov_b32 v{TB + 2 * pb + k}, v{cur[pb][k]}")
            e(f"v_mov_b32 v{AA + 2 * pb + k}, v{cur[pb][k]}")
    A.nop(2)
    for x in range(4):
        e(f"v_permlane16_swap_b32 v{AA + x}, v{TB + x}")
    A.nop(1)
    for pb in range(2):
        cfma(A, TB + 2 * pb, TB + 2 * pb + 1, C(pb, C_L8), C(pb, C_L8 + 1), AA + 2 * pb, AA + 2 * pb + 1)
    A.pop("d", npop)
    for x in range(4):
        e(f"v_mov_b32 v{CC + x}, v{TB + x}")
    A.nop(2)
    for x in range(4):
        e(f"v_permlane32_swap_b32 v{CC + x}, v{TB + x}")
    A.nop(1)
    for pb in range(2):
        cfma(A, TB + 2 * pb, TB + 2 * pb + 1, C(pb, C_L16), C(pb, C_L16 + 1), CC + 2 * pb, CC + 2 * pb + 1)
    A.pop("d", npop)
    e("v_lshlrev_b32 v4, 4, v2")
    e("s_lshl_b32 s3, s6, 8")
    e(f"s_add_u32 s3, s3, {LDS_SCR}")
    e("v_add_u32 v5, s3, v4")
    e(f"v_add_u32 v4, {LDS_SCR}, v4")
    e(f"ds_write_b128 v5, {vr(TB, 4)}")
    for pb in range(2):
        ci = VCIN + 2 * pb
        e(f"v_mul_f32 v{ci}, v{C(0, C_MA)}, v{AA + 2 * pb}")
        e(f"v_mul_f32 v{ci + 1}, v{C(0, C_MA)}, v{AA + 2 * pb + 1}")
        cfma(A, ci, ci + 1, C(pb, C_MC), C(pb, C_MC + 1), CC + 2 * pb, CC + 2 * pb + 1)
    e("s_waitcnt lgkmcnt(0)")
    A.vm_wait("f0")
    e("s_barrier")
    A.stamp(8)
    W = 96
    for w_ in range(4):
        e(f"ds_read_b128 {vr(W + 4 * w_, 4)}, v4 offset:{w_ * 256}")

    def ffn_reads(s):
        ksl = s & 3
        it = []
        for nt in range(7):
            for h in range(2):
                it.append(f"ds_read_b64_tr_b16 {ar(128 + (s & 1) * 28 + nt * 4 + 2 * h, 2)}, v{VFR[nt]} "
                          f"offset:{ksl * 8192 + h * 4096}")
        return it

    for r in ffn_reads(0):
        e(r)
    e("s_lshl_b32 s3, s4, 9")
    e("v_lshlrev_b32 v4, 5, v2")
    e("v_lshl_add_u32 v4, v3, 4, v4")
    e("v_add_u32 v4, s3, v4")
    e("s_cmp_eq_u32 s6, 3")
    e("s_cselect_b32 s3, 32, 0")
    e(f"v_mov_b32 v5, {OOB:#x}")
    e("v_cmp_gt_u32 vcc, s3, v1")
    e("v_cmp_eq_u32 s[82:83], 1, v3")
    e(f"v_mov_b32 v{114}, s97")
    e(f"v_mov_b32 v{115}, s97")
    e("v_cndmask_b32 v4, v5, v4, vcc")
    e("s_waitcnt lgkmcnt(14)")
    for w_ in range(1, 4):
        for pb in range(2):
            d = W + 4 * w_ + 2 * pb
            s_ = W + 4 * (w_ - 1) + 2 * pb
            cfma(A, d, d + 1, C(pb, C_L32), C(pb, C_L32 + 1), s_, s_ + 1)
    A.drain("d")
    e(f"v_cndmask_b32 v112, v{W + 12}, v{W + 14}, s[82:83]")
    e(f"v_cndmask_b32 v113, v{W + 13}, v{W + 15}, s[82:83]")
    A.vmi("epub", f"buffer_store_dwordx4 {vr(112, 4)}, v4, s[76:79], 0 offen sc1")
    LW = A.newlab("win")
    for x in range(4):
        e(f"v_mov_b32 v{VWIN + x}, 0")
    for w_ in range(1, 4):
        e(f"s_cmp_lt_u32 s6, {w_}")
        e(f"s_cbranch_scc1 {LW}")
        for x in range(4):
            e(f"v_mov_b32 v{VWIN + x}, v{W + 4 * (w_ - 1) + x}")
    A.lab(LW)
    A.stamp(9)

    GX = 208
    GS = 240

    def gate_loads():
        def a():
            e("s_lshl_b32 s3, s4, 7")
            e("s_lshl_b32 s7, s5, 3")
            e("s_add_u32 s3, s3, s7")
            e("s_lshl_b32 s7, s6, 1")
            e("s_add_u32 s84, s3, s7")
        A.group(a)
        e("v_lshrrev_b32 v4, 5, v1")
        e("v_add_u32 v4, s84, v4")
        e("v_lshlrev_b32 v4, 10, v4")
        e("v_and_b32 v5, 31, v1")
        e("v_lshlrev_b32 v5, 4, v5")
        e("v_add_u32 v4, v4, v5")
        A.vmi("gate", f"global_load_dwordx4 {vr(GX, 4)}, v4, s[16:17]")
        A.vmi("gate", f"global_load_dwordx4 {vr(GX + 4, 4)}, v4, s[16:17] offset:512")
        A.vmi("gate", f"global_load_dwordx4 {vr(GX + 8, 4)}, v5, s[44:45]")
        A.vmi("gate", f"global_load_dwordx4 {vr(GX + 12, 4)}, v5, s[44:45] offset:512")

    def gate_finish():
        A.vm_wait("gate")
        e(f"v_dot2_f32_bf16 v{GS}, v{GX}, v{GX + 8}, 0")
        e(f"v_dot2_f32_bf16 v{GS + 1}, v{GX + 1}, v{GX + 9}, 0")
        for d in range(2, 8):
            e(f"v_dot2_f32_bf16 v{GS + (d & 1)}, v{GX + d}, v{GX + 8 + d}, v{GS + (d & 1)}")
        A.nop(3)
        e(f"v_add_f32 v{GS}, v{GS}, v{GS + 1}")
        for ctl in ("quad_perm:[1,0,3,2]", "quad_perm:[2,3,0,1]", "row_half_mirror", "row_mirror"):
            A.nop(2)
            e(f"v_add_f32_dpp v{GS}, v{GS}, v{GS} {ctl} row_mask:0xf bank_mask:0xf")
        e(f"v_mov_b32 v{GS + 1}, v{GS}")
        A.nop(2)
        e(f"v_permlane16_swap_b32 v{GS + 1}, v{GS}")
        A.nop(1)
        e(f"v_add_f32 v{GS}, v{GS}, v{GS + 1}")
        e(f"v_cvt_pk_bf16_f32 v{GS}, v{GS}, v{GS}")
        e(f"v_lshlrev_b32 v{GS}, 16, v{GS}")
        e(f"v_mul_f32 v{GS}, s80, v{GS}")
        e(f"v_sub_f32 v{GS}, 0, v{GS}")
        e(f"v_exp_f32 v{GS}, v{GS}")
        A.nop(1)
        e(f"v_add_f32 v{GS}, 1.0, v{GS}")
        e(f"v_rcp_f32 v{GS}, v{GS}")
        A.nop(1)
        e(f"v_cvt_pk_bf16_f32 v{GS}, v{GS}, v{GS}")
        e(f"v_lshlrev_b32 v{GS + 2}, 16, v{GS}")
        e(f"v_sub_f32 v{GS + 3}, 1.0, v{GS + 2}")
        e(f"v_cvt_pk_bf16_f32 v{GS + 3}, v{GS + 3}, v{GS + 3}")
        e(f"v_lshlrev_b32 v{GS + 3}, 16, v{GS + 3}")
        e("v_lshrrev_b32 v4, 5, v1")
        e("v_add_u32 v4, s84, v4")
        e("v_lshlrev_b32 v4, 3, v4")
        e(f"v_add_u32 v4, {G_OFF}, v4")
        e("v_and_b32 v5, 31, v1")
        e("v_cmp_eq_u32 vcc, 0, v5")
        e(f"v_mov_b32 v5, {OOB:#x}")
        A.nop(1)
        e("v_cndmask_b32 v4, v5, v4, vcc")
        A.vmi("gst", f"buffer_store_dwordx2 {vr(GS + 2, 2)}, v4, s[56:59], 0 offen{STF}")

    EM = 96
    EMR = [128, 136, 144, 96]

    def e_loads():
        A.group(lambda: (e("s_sub_u32 s3, s4, 1"), e("v_sub_u32 v4, s3, v3")))
        e("v_lshlrev_b32 v4, 9, v4")
        e("v_lshl_add_u32 v4, v2, 5, v4")
        for m in range(4):
            if m:
                e("v_subrev_u32 v4, 2048, v4")
            e("v_and_b32 v7, 0x7fffffff, v4")
            A.vmi("eld", f"buffer_load_dwordx4 {vr(EMR[m], 4)}, v7, s[76:79], 0 offen sc1")
            A.vmi("eld", f"buffer_load_dwordx4 {vr(EMR[m] + 4, 4)}, v7, s[76:79], 0 offen offset:16 sc1")

    nf = cfg.get("ffn_pairs", 3)
    fslots = [(0, 1), (4, 5), (6, 7), (2, 3)][:nf]
    SLOT = {p: fslots[p] for p in range(nf)}
    sched = {0: dma_f(3) + A.record(gate_loads), 3: pair_dma(0, SLOT[0])}
    for p, st in zip(range(1, nf), (4, 8, 12)):
        sched.setdefault(st, []).extend(pair_dma(p, SLOT[p]))
    sched.setdefault(cfg.get("e_step", 13), []).extend(A.record(e_loads))

    def ffn_mfma(s):
        it = []
        for nt in range(7):
            for tb in range(2):
                d = vr(FACC(nt, tb), 4)
                cc = vr(VBIAS + 4 * nt, 4) if s == 0 else d
                it.append(f"v_mfma_f32_16x16x32_bf16 {d}, {ar(128 + (s & 1) * 28 + nt * 4, 4)}, "
                          f"{ar(XF(s, tb), 4)}, {cc}")
        return it

    def set_vfr(c_from, c_to):
        delta = LDS_F[c_to] - LDS_F[c_from]
        for nt in range(7):
            if delta >= 0:
                e(f"v_add_u32 v{VFR[nt]}, {delta}, v{VFR[nt]}")
            else:
                e(f"v_subrev_u32 v{VFR[nt]}, {-delta}, v{VFR[nt]}")

    since_vm = 99
    gap = cfg.get("vm_gap", 5)

    def flat(items):
        return [[op] for it in items for op in it]
    for s in range(16):
        if s in sched:
            A.push("f", flat(sched[s]))
        if s == 0 or s in (3, 7, 11, 15):
            e("s_waitcnt lgkmcnt(0)")
        else:
            e("s_waitcnt lgkmcnt(4)")
        if s in (3, 7, 11):
            c = (s + 1) >> 2
            A.vm_wait(f"f{c}")
            e("s_barrier")
            set_vfr(c - 1, c)
            A.stamp(10 + c - 1)
        if s == 15:
            e("s_barrier")
        if cfg.get("ffn_stamps"):
            A.stamp(34 + s)
        rd = ffn_reads(s + 1) if s < 15 else []
        mf = ffn_mfma(s)
        for k, m in enumerate(mf):
            if k == 10 and not (s == 0 or s in (3, 7, 11, 15)):
                e("s_waitcnt lgkmcnt(10)")
            e(m)
            since_vm += 1
            if rd:
                e(rd[k])
            for _ in range(1 if rd else 2):
                if A.head_is_vmem("f"):
                    if since_vm >= gap:
                        A.pop("f")
                        since_vm = 0
                else:
                    A.pop("f")
    A.drain("f")
    A.stamp(13)

    VA16, VA8 = 250, 251
    e("s_lshl_b32 s3, s4, 1")
    e("s_lshr_b32 s7, s6, 1")
    e("s_add_u32 s3, s3, s7")
    e(f"s_mul_i32 s91, s3, {AF_RT}")
    e("s_and_b32 s7, s6, 1")
    e("s_lshl_b32 s7, s7, 11")
    e("s_add_u32 s91, s91, s7")
    e("s_lshr_b32 s3, s5, 1")
    e("s_mul_i32 s3, s3, 7")
    e("s_add_u32 s3, s3, 32")
    e("s_and_b32 s7, s5, 1")
    e("s_lshl_b32 s92, s7, 2")
    e("s_add_u32 s92, s92, s3")
    e("s_lshl_b32 s92, s92, 12")
    e("s_add_u32 s92, s92, s91")
    e("s_add_u32 s93, s3, 3")
    e("s_lshl_b32 s93, s93, 12")
    e("s_add_u32 s93, s93, s91")
    e("s_lshl_b32 s7, s7, 3")
    e(f"v_lshlrev_b32 v{VA16}, 4, v1")
    e(f"v_add_u32 v{VA8}, s7, v{VA16}")
    PK = 112
    groups = [(sp, tb) for sp in range(4) for tb in range(2)]

    def ffn_group(gi):
        sp, tb = groups[gi]
        tiles = [2 * sp, 2 * sp + 1] if sp < 3 else [6]
        pk = PK + 4 * (gi & 1)
        for ti, nt in enumerate(tiles):
            a = FACC(nt, tb)
            for r in range(4):
                e(f"v_max_f32 v{a + r}, 0, v{a + r}")
            for h in range(2):
                e(f"v_pk_mul_f32 {vr(a + 2 * h, 2)}, {vr(a + 2 * h, 2)}, {vr(a + 2 * h, 2)}")
            e(f"v_cvt_pk_bf16_f32 v{pk + 2 * ti}, v{a}, v{a + 1}")
            e(f"v_cvt_pk_bf16_f32 v{pk + 2 * ti + 1}, v{a + 2}, v{a + 3}")
        off = f" offset:{tb * 1024}" if tb else ""
        if sp < 3:
            if sp and tb == 0:
                e("s_add_u32 s92, s92, 4096")
            A.vmi("hst", f"buffer_store_dwordx4 {vr(pk, 4)}, v{VA16}, s[56:59], s92 offen{off}{STF}")
        else:
            A.vmi("hst", f"buffer_store_dwordx2 {vr(pk, 2)}, v{VA8}, s[56:59], s93 offen{off}{STF}")

    MK = 104
    R = 120

    def masks():
        for m in range(4):
            e(f"v_add_u32 v4, {4 * m}, v3")
            e("v_cmp_gt_u32 vcc, s4, v4")
            A.nop(1)
            e(f"v_cndmask_b32 v{MK + m}, 0, -1, vcc")

    def e_check():
        LCK, LOK = A.newlab("echk"), A.newlab("eok")
        e("s_mov_b32 s96, 0x20000")
        A.vm_wait("eld")
        A.lab(LCK)
        e("v_mov_b32 v4, 0")
        for m in range(4):
            e(f"v_xor_b32 v5, s97, v{EMR[m] + 2}")
            e(f"v_xor_b32 v7, s97, v{EMR[m] + 6}")
            e("v_or_b32 v5, v5, v7")
            e(f"v_and_or_b32 v4, v5, v{MK + m}, v4")
        e("v_cmp_ne_u32 vcc, 0, v4")
        A.nop(4)
        e("s_cmp_eq_u64 vcc, 0")
        e(f"s_cbranch_scc1 {LOK}")
        e("s_sub_u32 s96, s96, 1")
        e("s_cmp_eq_u32 s96, 0")
        e(f"s_cbranch_scc1 {LOK}")
        e("s_sleep 4")
        for it in A.record(e_loads):
            for op in it:
                e(op[1] if op[0] == "e" else op[2])
        e("s_waitcnt vmcnt(0)")
        e(f"s_branch {LCK}")
        A.lab(LOK)

    def carry():
        for m in (2, 1, 0):
            for pb in range(2):
                d = EMR[m] + 4 * pb
                s_ = EMR[m + 1] + 4 * pb
                cfma(A, d, d + 1, C(pb, C_L4), C(pb, C_L4 + 1), s_, s_ + 1)
        for pb in range(2):
            cmul(A, R + 2 * pb, R + 2 * pb + 1, C(pb, C_LQ), C(pb, C_LQ + 1), EMR[0] + 4 * pb, EMR[0] + 4 * pb + 1)
        for swap in ("v_permlane16_swap_b32", "v_permlane32_swap_b32"):
            for x in range(4):
                e(f"v_mov_b32 v{R + 4 + x}, v{R + x}")
            A.nop(1)
            for x in range(4):
                e(f"{swap} v{R + 4 + x}, v{R + x}")
            A.nop(1)
            for x in range(4):
                e(f"v_add_f32 v{R + x}, v{R + x}, v{R + 4 + x}")
        for pb in range(2):
            cfma(A, VWIN + 2 * pb, VWIN + 2 * pb + 1, C(pb, C_L32W), C(pb, C_L32W + 1), R + 2 * pb, R + 2 * pb + 1)
        for pb in range(2):
            cfma(A, VCIN + 2 * pb, VCIN + 2 * pb + 1, C(pb, C_L8Q), C(pb, C_L8Q + 1),
                 VWIN + 2 * pb, VWIN + 2 * pb + 1)

    def recurrence():
        for tau in range(8):
            for pb in range(2):
                lr, li, nli = C(pb, C_LR), C(pb, C_LI), C(pb, C_NLI)
                if tau == 0:
                    pr, pi = VCIN + 2 * pb, VCIN + 2 * pb + 1
                else:
                    pr, pi = U(pb, tau - 1, 0), U(pb, tau - 1, 1)
                e(f"v_fmac_f32 v{U(pb, tau, 0)}, v{lr}, v{pr}")
                e(f"v_fmac_f32 v{U(pb, tau, 1)}, v{lr}, v{pi}")
                e(f"v_fmac_f32 v{U(pb, tau, 0)}, v{nli}, v{pi}")
                e(f"v_fmac_f32 v{U(pb, tau, 1)}, v{li}, v{pr}")

    TR, TI, CV = [128, 136], [132, 140], 144
    RD = [148, 96, 100, 104]

    def pack_store():
        e("v_lshrrev_b32 v4, 3, v2")
        e("v_mul_u32_u24 v4, 272, v4")
        e("v_lshl_add_u32 v4, v3, 6, v4")
        e("v_and_b32 v5, 7, v2")
        e("v_lshl_add_u32 v4, v5, 1, v4")

        def a():
            e("s_mul_i32 s3, s6, 4352")
            e(f"s_add_u32 s3, s3, {LDS_T}")
            e("v_add_u32 v4, s3, v4")
            e("v_mul_u32_u24 v5, 272, v3")
            e("v_lshl_add_u32 v5, v2, 4, v5")
            e("v_add_u32 v5, s3, v5")
            e("s_lshr_b32 s3, s5, 1")
            e("s_lshl_b32 s3, s3, 2")
            e("s_and_b32 s7, s5, 1")
            e("s_add_u32 s3, s3, s7")
            e("s_lshl_b32 s3, s3, 12")
            e("s_add_u32 s82, s3, s91")
            e("s_add_u32 s83, s82, 8192")
        A.group(a)
        for tb in range(2):
            for pb in range(2):
                c2 = vr(C(pb, C_C2), 2)
                for h in range(2):
                    P = vr(SACC(tb, pb, 2 * h), 2)
                    Q = vr(SACC(tb, 2 + pb, 2 * h), 2)
                    tr_, ti_ = vr(TR[pb] + 2 * h, 2), vr(TI[pb] + 2 * h, 2)
                    e(f"v_pk_mul_f32 {tr_}, {P}, {c2} op_sel_hi:[1,0]")
                    e(f"v_pk_mul_f32 {ti_}, {Q}, {c2} op_sel_hi:[1,0]")
                    e(f"v_pk_fma_f32 {tr_}, {Q}, {c2}, {tr_} op_sel:[0,1,0] op_sel_hi:[1,1,1] "
                      f"neg_lo:[1,0,0] neg_hi:[1,0,0]")
                    e(f"v_pk_fma_f32 {ti_}, {P}, {c2}, {ti_} op_sel:[0,1,0] op_sel_hi:[1,1,1]")
            for part in range(2):
                fo = (tb * 2 + part) * 1088
                for r in range(4):
                    cv = CV + (r & 1) + 2 * (part & 1)
                    if part == 0:
                        e(f"v_cvt_pk_bf16_f32 v{cv}, v{TR[0] + r}, v{TR[1] + r}")
                    else:
                        e(f"v_cvt_pk_bf16_f32 v{cv}, -v{TI[0] + r}, -v{TI[1] + r}")
                    e(f"ds_write_b16 v4, v{cv} offset:{fo + r * 16}")
                    e(f"ds_write_b16_d16_hi v4, v{cv} offset:{fo + r * 16 + 544}")
            e("s_waitcnt lgkmcnt(0)")
            for part in range(2):
                e(f"ds_read_b128 {vr(RD[tb * 2 + part], 4)}, v5 offset:{(tb * 2 + part) * 1088}")
            if tb == 1:
                for part in range(2):
                    A.vmi("sst", f"buffer_store_dwordx4 {vr(RD[part], 4)}, v{VA16}, s[56:59], "
                                 f"s{82 + part} offen{STF}")
        e("s_waitcnt lgkmcnt(0)")
        for part in range(2):
            A.vmi("sst", f"buffer_store_dwordx4 {vr(RD[2 + part], 4)}, v{VA16}, s[56:59], "
                         f"s{82 + part} offen offset:1024{STF}")

    per = cfg.get("tail_per", 40)
    A.push("b", A.record(gate_finish) + A.record(masks))
    for p in range(nf):
        A.push("b", pair_read(p, SLOT[p]))
    ffn_group(0)
    A.pop("b", per)
    ffn_group(1)
    A.pop("b", per)
    ffn_group(2)
    A.drain("b")
    A.stamp(14)
    e_check()
    A.stamp(15)
    A.push("b", A.record(carry) + A.record(recurrence) + A.record(pack_store))
    for gi in range(3, 8):
        ffn_group(gi)
        A.pop("b", per)
    A.drain("b")
    A.stamp(16)

    OSF = cfg.get("osf", " sc1")
    nd = cfg.get("drain_pairs", 8)
    e("s_waitcnt lgkmcnt(0)")
    free = [(0, 1), (2, 3), (4, 5), (6, 7)]
    nxt_dma = nf
    pend = []

    def issue_tiles(limit):
        nonlocal nxt_dma
        while free and nxt_dma < limit:
            sl = free.pop(0)
            SLOT[nxt_dma] = sl
            A.push("t", pair_dma(nxt_dma, sl))
            A.drain("t")
            pend.append(nxt_dma)
            nxt_dma += 1

    def land_tile():
        p = pend.pop(0)
        A.push("t", pair_read(p, SLOT[p]) + lgkm0())
        A.drain("t")
        free.append(SLOT[p])
        return p

    issue_tiles(min(nd, nf + cfg.get("pre_flag_pairs", 1)))
    e("s_lshl_b32 s3, s4, 8")
    e("s_lshl_b32 s7, s5, 2")
    e("s_add_u32 s3, s3, s7")
    e(f"s_add_u32 s3, s3, {FL_OFF}")
    e("s_cmp_eq_u32 s6, 0")
    e("s_cselect_b32 s7, 1, 0")
    e("v_cmp_gt_u32 vcc, s7, v1")
    e("v_mov_b32 v4, s3")
    e(f"v_mov_b32 v5, {OOB:#x}")
    e("v_mov_b32 v6, s95")
    e("v_cndmask_b32 v4, v5, v4, vcc")
    A.vm_wait("hst", "sst", "gst")
    e("s_barrier")
    A.vmi("flag", "buffer_store_dword v6, v4, s[56:59], 0 offen sc1")
    A.stamp(17)
    issue_tiles(nd)
    while pend:
        land_tile()
        issue_tiles(nd)
    free = [(0, 1), (2, 3)]
    A.stamp(23)

    ACC0, AR0, DA = 16, 80, 3
    VXE, VGE, VDS, VB2 = 224, 240, 252, 250
    VL = 8

    def ACC(db, tb4):
        return ACC0 + (db * 4 + tb4) * 4

    e("s_mov_b32 s92, s64")
    e(f"s_mul_i32 s93, s92, {AF_RT}")
    e(f"s_mul_i32 s3, s6, {22 * 4096}")
    e("s_add_u32 s93, s93, s3")
    e(f"v_lshlrev_b32 v{VL}, 4, v1")
    e("s_lshr_b32 s3, s92, 1")
    e("s_lshl_b32 s3, s3, 8")
    e(f"s_add_u32 s3, s3, {FL_OFF}")
    e("v_and_b32 v4, 15, v1")
    e("v_lshl_add_u32 v9, v4, 2, s3")
    LP, LPO = A.newlab("fpoll"), A.newlab("fok")
    e("s_mov_b32 s96, 0x20000")
    A.lab(LP)
    e("buffer_load_dword v10, v9, s[56:59], 0 offen sc1")
    e("s_waitcnt vmcnt(0)")
    e("v_cmp_ne_u32 vcc, s95, v10")
    A.nop(4)
    e("s_cmp_eq_u64 vcc, 0")
    e(f"s_cbranch_scc1 {LPO}")
    e("s_sub_u32 s96, s96, 1")
    e("s_cmp_eq_u32 s96, 0")
    e(f"s_cbranch_scc1 {LPO}")
    e(f"s_sleep {cfg.get('poll_sleep', 1)}")
    e(f"s_branch {LP}")
    A.lab(LPO)
    A.vm = []
    A.stamp(24)

    def a_loads(t):
        b = AR0 + 16 * (t % DA)
        return [(f"a{t}", f"buffer_load_dwordx4 {vr(b + 4 * x, 4)}, v{VL}, s[56:59], s93 offen"
                          f"{f' offset:{x * 1024}' if x else ''}{cfg.get('alf', ' sc1')}") for x in range(4)]

    for t in range(DA - 1):
        for tag, ins in a_loads(t):
            A.vmi(tag, ins)
        e("s_add_u32 s93, s93, 4096")
    e("s_cmp_eq_u32 s92, 31")
    e("s_cselect_b32 s3, 1, 0")
    e("s_cmp_eq_u32 s89, 7")
    e("s_cselect_b32 s3, s3, 0")
    e("s_cmp_eq_u32 s6, 0")
    e("s_cselect_b32 s3, s3, 0")
    e("v_cmp_gt_u32 vcc, s3, v1")
    e(f"v_mov_b32 v4, {N_OFF}")
    e(f"v_mov_b32 v5, {OOB:#x}")
    e("v_mov_b32 v6, s94")
    e("v_cndmask_b32 v4, v5, v4, vcc")
    A.vmi("yst", "buffer_store_dword v6, v4, s[56:59], 0 offen sc1")
    e("v_lshrrev_b32 v6, 2, v2")
    e("v_lshlrev_b32 v6, 3, v6")
    e("v_and_b32 v7, 3, v2")
    e("v_add_u32 v6, v6, v7")
    e("v_lshlrev_b32 v6, 8, v6")
    e(f"s_mul_i32 s3, s6, {RSTR}")
    e(f"s_add_u32 s3, s3, {LDS_R}")
    e("v_add_u32 v6, s3, v6")
    e("v_and_b32 v7, 7, v2")
    e("v_xor_b32 v7, v7, v3")
    e("v_lshl_add_u32 v13, v7, 4, v6")
    e("v_xor_b32 v7, 4, v7")
    e("v_lshl_add_u32 v15, v7, 4, v6")

    def ep_loads():
        def a():
            e("s_lshl_b32 s3, s92, 6")
            e("s_lshl_b32 s7, s6, 4")
            e("s_add_u32 s3, s3, s7")
            e("v_add_u32 v14, s3, v3")
            e("s_lshl_b32 s7, s89, 7")
            e("v_lshl_add_u32 v10, v2, 3, s7")
        A.group(a)
        e("v_lshlrev_b32 v9, 10, v14")
        e("v_add_u32 v9, v9, v10")
        e("v_lshlrev_b32 v11, 3, v14")
        e(f"v_add_u32 v11, {G_OFF}, v11")
        e("s_mov_b32 s84, 0")
        for it in range(4):
            if it:
                e("s_add_u32 s84, s84, 4096")
            A.vmi("ep", f"buffer_load_dwordx2 {vr(VXE + 2 * it, 2)}, v9, s[8:11], s84 offen")
        for it in range(4):
            A.vmi("ep", f"buffer_load_dwordx2 {vr(VGE + 2 * it, 2)}, v11, s[56:59], 0 offen offset:{it * 32} sc1")
        A.vmi("ep", f"global_load_dwordx2 {vr(VDS, 2)}, v10, s[32:33]")
        A.vmi("ep", f"global_load_dwordx2 {vr(VB2, 2)}, v10, s[42:43]")
        srd(A, 12, 46, 47, 2048 * 2048)

    A.push("ep", A.record(ep_loads))

    def mfmas(t, zero):
        b = AR0 + 16 * (t % DA)
        it = []
        for db in range(4):
            for tb4 in range(4):
                d = vr(ACC(db, tb4), 4)
                cc = "0" if zero else d
                it.append(f"v_mfma_f32_16x16x32_bf16 {d}, {breg(t, 4 * db, 4)}, {vr(b + 4 * tb4, 4)}, {cc}")
        return it

    def dump(vaddr):
        for db in range(4):
            for tb4 in range(4):
                ro = 32 * (tb4 >> 1) + 4 * (tb4 & 1)
                e(f"ds_write_b128 v{vaddr}, {vr(ACC(db, tb4), 4)} offset:{ro * 272 + db * 64}")

    def wr(vaddr, k):
        db, tb4 = k >> 2, k & 3
        ro = 32 * (tb4 >> 1) + 4 * (tb4 & 1)
        return (f"ds_write_b128 v{13 if db % 2 == 0 else 15}, {vr(ACC(db, tb4), 4)} "
                f"offset:{vaddr + ro * 256 + (db >> 1) * 128}")

    ep_step = cfg.get("ep_step", 16)

    def step(t, zero, pre_dump=None, post_dump=None):
        ld = a_loads(t + DA - 1) if t + DA - 1 < 22 else []
        li = 0
        if pre_dump is not None:
            e(wr(pre_dump, 0))
            e(wr(pre_dump, 1))
        for k, m in enumerate(mfmas(t, zero)):
            if pre_dump is not None and k + 2 < 16:
                e(wr(pre_dump, k + 2))
            e(m)
            if post_dump is not None and k >= 8:
                e(wr(post_dump, k - 8))
            if (k & 1) and li < len(ld):
                A.vmi(*ld[li])
                li += 1
            elif ld:
                if t >= ep_step and k in (4, 10):
                    A.pop("ep", 1 if A.head_is_vmem("ep") else 4)
                    if A.qlen("ep") and not A.head_is_vmem("ep"):
                        A.pop("ep", 3)
            else:
                if A.qlen("ep"):
                    A.pop("ep", 2)
                elif post_dump is None:
                    A.pop("xd", 2)
                else:
                    A.pop("xd", 1)
        if ld:
            e("s_add_u32 s93, s93, 4096")
        if post_dump is not None:
            A.nop(2)
            for k in range(8, 16):
                A.pop("xd", 3)
                e(wr(post_dump, k))

    DS, B2, X0 = 128, 132, 136

    def xd_prep():
        A.group(lambda: (e("s_lshl_b32 s3, s6, 4"), e("v_add_u32 v6, s3, v3")))
        e("v_lshlrev_b32 v6, 8, v6")
        e(f"v_add_u32 v6, {LDS_R}, v6")
        e("v_xor_b32 v7, v2, v3")
        e("v_xor_b32 v5, 4, v7")
        e("v_lshl_add_u32 v5, v5, 4, v6")
        e("v_lshl_add_u32 v6, v7, 4, v6")
        e("v_mov_b32 v7, v5")
        e(f"v_add_u32 v4, {4 * RSTR}, v6")
        e(f"v_add_u32 v5, {4 * RSTR}, v7")
        e("v_lshlrev_b32 v9, 11, v14")
        A.group(lambda: (e("s_lshl_b32 s3, s89, 8"), e("v_lshl_add_u32 v10, v2, 4, s3")))
        e("v_add_u32 v9, v9, v10")
        A.vm_wait("ep")
        for k, src in ((DS, VDS), (B2, VB2)):
            e(f"v_lshlrev_b32 v{k}, 16, v{src}")
            e(f"v_and_b32 v{k + 1}, 0xffff0000, v{src}")
            e(f"v_lshlrev_b32 v{k + 2}, 16, v{src + 1}")
            e(f"v_and_b32 v{k + 3}, 0xffff0000, v{src + 1}")
        for it in range(4):
            X = X0 + 8 * it
            xs = VXE + 2 * it
            e(f"v_lshlrev_b32 v{X}, 16, v{xs}")
            e(f"v_and_b32 v{X + 1}, 0xffff0000, v{xs}")
            e(f"v_lshlrev_b32 v{X + 2}, 16, v{xs + 1}")
            e(f"v_and_b32 v{X + 3}, 0xffff0000, v{xs + 1}")
            for h in range(2):
                e(f"v_pk_mul_f32 {vr(X + 2 * h, 2)}, {vr(X + 2 * h, 2)}, {vr(DS + 2 * h, 2)}")
            e(f"v_cvt_pk_bf16_f32 v{X + 4}, v{X}, v{X + 1}")
            e(f"v_cvt_pk_bf16_f32 v{X + 5}, v{X + 2}, v{X + 3}")
            e(f"v_lshlrev_b32 v{X}, 16, v{X + 4}")
            e(f"v_and_b32 v{X + 1}, 0xffff0000, v{X + 4}")
            e(f"v_lshlrev_b32 v{X + 2}, 16, v{X + 5}")
            e(f"v_and_b32 v{X + 3}, 0xffff0000, v{X + 5}")

    A.push("xd", A.record(xd_prep))

    for t in range(22):
        while pend and 2 * pend[0] <= t + 1:
            land_tile()
        if t % 2 == cfg.get("g2_par", 0):
            if len(pend) >= 2 or (pend and nxt_dma >= 11):
                land_tile()
            issue_tiles(min(11, nxt_dma + 1))
        if t == 9:
            e("s_barrier")
        assert (t >> 1) not in pend and (t >> 1) < nxt_dma
        assert t < ep_step or (not pend and nxt_dma >= 11)
        A.vm_wait(f"a{t}")
        if cfg.get("wbl2") == t and t != 21:
            A.vmi("wb", "buffer_wbl2 sc1")
        if t in (0, 5, 10, 15, 20):
            A.stamp(25 + t // 5)
        if t == 10:
            LN, LJ = A.newlab("nrm"), A.newlab("join")
            e("s_cmp_eq_u32 s6, 1")
            e(f"s_cbranch_scc0 {LN}")
            saved = list(A.vm)
            A.nop(8)
            step(t, True, pre_dump=3 * RSTR)
            after = list(A.vm)
            e(f"s_branch {LJ}")
            A.lab(LN)
            A.vm = list(saved)
            step(t, False)
            assert A.vm == after
            A.lab(LJ)
        elif t == 21:
            A.drain("ep")
            if cfg.get("wbl2") == 21:
                A.vmi("wb", "buffer_wbl2 sc1")
            step(t, False, post_dump=0)
        else:
            step(t, t == 0)
    A.drain("xd")
    A.stamp(30)
    e("s_waitcnt lgkmcnt(0)")
    e("s_barrier")
    A.stamp(31)
    P0 = 16
    for it in range(4):
        for b in range(5):
            base, o = ((6, 7)[it >> 1], b * RSTR) if b < 4 else ((4, 5)[it >> 1], 0)
            e(f"ds_read_b128 {vr(P0 + (it * 5 + b) * 4, 4)}, v{base} offset:{o + it * 4 * 256}")
    e("s_mov_b32 s84, 0")
    for it in range(4):
        X = X0 + 8 * it
        P = [P0 + (it * 5 + b) * 4 for b in range(5)]
        g, omg = VGE + 2 * it, VGE + 2 * it + 1
        e(f"s_waitcnt lgkmcnt({15 - 5 * it})")
        for h in range(2):
            o = 2 * h
            e(f"v_pk_add_f32 {vr(X + o, 2)}, {vr(X + o, 2)}, {vr(P[0] + o, 2)}")
            e(f"v_pk_add_f32 {vr(P[1] + o, 2)}, {vr(P[1] + o, 2)}, {vr(B2 + o, 2)}")
            e(f"v_pk_add_f32 {vr(X + o, 2)}, {vr(X + o, 2)}, {vr(P[4] + o, 2)}")
            e(f"v_pk_add_f32 {vr(P[2] + o, 2)}, {vr(P[2] + o, 2)}, {vr(P[3] + o, 2)}")
        for h in range(2):
            o = 2 * h
            e(f"v_pk_add_f32 {vr(P[1] + o, 2)}, {vr(P[1] + o, 2)}, {vr(P[2] + o, 2)}")
        for r in range(4):
            e(f"v_mul_f32 v{X + r}, v{g}, v{X + r}")
        for r in range(4):
            e(f"v_fmac_f32 v{X + r}, v{omg}, v{P[1] + r}")
        if it:
            e("s_add_u32 s84, s84, 8192")
        A.vmi("ost", f"buffer_store_dwordx4 {vr(X, 4)}, v9, s[12:15], s84 offen{OSF}")
    A.stamp(32)
    if A.stamps:
        A.vm_all()
    A.stamp(33, True)
    A.stamp_flush(0, 56)
    A.lab(END)
    e("s_endpgm")
    A.lab("L_code_end")


def kd(name, vgpr, accum, sgpr=102):
    return f""".amdhsa_kernel {name}
  .amdhsa_next_free_vgpr {vgpr}
  .amdhsa_next_free_sgpr {sgpr}
  .amdhsa_accum_offset {accum}
  .amdhsa_group_segment_fixed_size 0
  .amdhsa_kernarg_size 144
  .amdhsa_user_sgpr_count 2
  .amdhsa_user_sgpr_kernarg_segment_ptr 1
  .amdhsa_system_sgpr_workgroup_id_x 1
  .amdhsa_float_denorm_mode_32 3
.end_amdhsa_kernel
"""


HEADER = open("cdna_kernels/" + KN[:-7] + ".s.ref").read().split("; Override launch")[0]


def generate(cfg):
    out = [HEADER.rstrip("\n")]
    if cfg.get("trail"):
        out.append(f"; @launch kernel={KN} grid=(256,1,1) block=(256,1,1) lds=163840")
        out.append("; @launch kernel=trail_kernel grid=(256,1,1) block=(64,1,1) lds=0")
    else:
        out.append("; @launch grid=(256,1,1) block=(256,1,1) lds=163840")
    out.append('.amdgcn_target "amdgcn-amd-amdhsa--gfx950"')
    out.append(".text")
    for name, fn in ((KN, gen_k1),):
        A = Asm()
        A.stamps = cfg.get("stamps", 0)
        fn(A, cfg)
        out.append(f".globl {name}")
        out.append(".p2align 8")
        out.append(f".type {name},@function")
        out.append(f"{name}:")
        body = A.L
        if cfg.get("align", 1):
            import align as _al
            before = _al.straddles(body)
            body = _al.align(body)
            print("straddling 8-byte instructions:", before, "->", _al.straddles(body), file=sys.stderr)
        out.extend(body)
    if cfg.get("trail"):
        out.append(""".globl trail_kernel
.p2align 8
.type trail_kernel,@function
trail_kernel:
    s_memrealtime s[8:9]
    s_cmp_ge_u32 s2, 1
    s_cbranch_scc1 L_trail_end
    s_load_dwordx2 s[4:5], s[0:1], 136
    s_waitcnt lgkmcnt(0)
    s_mov_b32 s16, s4
    s_and_b32 s17, s5, 0xffff
    s_mov_b32 s18, 0x2000000
    s_mov_b32 s19, 0x20000
    v_mov_b32 v1, s8
    v_mov_b32 v2, 0x1800000
    buffer_store_dword v1, v2, s[16:19], 0 offen
L_trail_end:
    s_endpgm""")
    out.append('.section .rodata,"a"')
    out.append(".p2align 6")
    out.append(kd(KN, 512, 256))
    if cfg.get("trail"):
        out.append(".p2align 6")
        out.append(kd("trail_kernel", 8, 8))
    return "\n".join(out) + "\n"


if __name__ == "__main__":
    cfg = {"map1": "t4x8", "vm_gap": 5, "pre_flag_pairs": 2, "e_step": 13, "early_fill": 1, "ssm_fill": 4}
    path = "cdna_kernels/" + KN[:-7] + ".s"
    for a in sys.argv[1:]:
        if a.startswith("-o"):
            path = a[2:]
        elif "=" in a:
            k, v = a.split("=")
            cfg[k] = int(v) if v.isdigit() else v.replace("_", " ").replace("none", "")
    open(path, "w").write(generate(cfg))
    print("wrote", path)
```
